```python
import torch

def _softmax(x, axis=-1):
    return torch.softmax(x, dim=axis)
def _gelu(x):
    return torch.nn.functional.gelu(x, approximate="tanh")
def _silu(x):
    return torch.nn.functional.silu(x)
def _sigmoid(x):
    return torch.sigmoid(x)
def _layernorm(x, axis=-1, eps=1e-5):
    m = x.mean(dim=axis, keepdim=True)
    v = x.var(dim=axis, keepdim=True, unbiased=False)
    return (x - m) / torch.sqrt(v + eps)
def _scatter_add(tgt, idx, src, axis=0):
    return tgt.clone().index_add_(axis, idx, src)
def _segment_sum(src, seg, n):
    out = torch.zeros((n,) + src.shape[1:], dtype=src.dtype)
    return out.index_add_(0, seg, src)
def _pad(x, pw):
    flat = tuple(v for pair in reversed(pw) for v in pair)
    return torch.nn.functional.pad(x, flat)

kernel_name = 'concat_heads__mha_block_cached__mha_block_cached__decode'

def setup_inputs():

    _w = (lambda a: (lambda t: t.to(torch.bfloat16) if t.is_floating_point() else t)(torch.as_tensor(a)))
    def _A_setup():
        B, Sq, D = 8, 1, 1024
        H, Sk, Dh = 32, 4096, 128
        return {
            "x": _w((lambda *s: torch.randn(*s, dtype=torch.bfloat16) * 0.8)(B, Sq, D)),
            "k_cache": _w((lambda *s: torch.randn(*s, dtype=torch.bfloat16) * 0.8)(B, H, Sk, Dh)),
            "v_cache": _w((lambda *s: torch.randn(*s, dtype=torch.bfloat16) * 0.05)(B, H, Sk, Dh)),
            "wq": _w((lambda *s: torch.randn(*s, dtype=torch.bfloat16) * 0.8)(D, H * Dh) * (D ** -0.5)),
            "wo": _w((lambda *s: torch.randn(*s, dtype=torch.bfloat16) * 0.05)(H * Dh, D) * ((H * Dh) ** -0.5)),
        }
    _A_in = _A_setup()

    def _B_setup():
        B, Sq, D = 8, 1, 1024
        H, Sk, Dh = 32, 4096, 128
        return {
            "x": _w((lambda *s: torch.randn(*s, dtype=torch.bfloat16) * 0.8)(B, Sq, D)),
            "k_cache": _w((lambda *s: torch.randn(*s, dtype=torch.bfloat16) * 0.8)(B, H, Sk, Dh)),
            "v_cache": _w((lambda *s: torch.randn(*s, dtype=torch.bfloat16) * 0.05)(B, H, Sk, Dh)),
            "wq": _w((lambda *s: torch.randn(*s, dtype=torch.bfloat16) * 0.8)(D, H * Dh) * (D ** -0.5)),
            "wo": _w((lambda *s: torch.randn(*s, dtype=torch.bfloat16) * 0.05)(H * Dh, D) * ((H * Dh) ** -0.5)),
        }
    _B_in = _B_setup()

    return {
        "A_x": _A_in["x"],
        "A_k_cache": _A_in["k_cache"],
        "A_v_cache": _A_in["v_cache"],
        "A_wq": _A_in["wq"],
        "A_wo": _A_in["wo"],
        "B_x": _B_in["x"],
        "B_k_cache": _B_in["k_cache"],
        "B_v_cache": _B_in["v_cache"],
        "B_wq": _B_in["wq"],
        "B_wo": _B_in["wo"],
    }

def reference(A_x, A_k_cache, A_v_cache, A_wq, A_wo, B_x, B_k_cache, B_v_cache, B_wq, B_wo):
    def _A_ref(x, k_cache, v_cache, wq, wo):
        B, Sq, D = x.shape
        H, Dh = 32, 128
        q = (lambda x, *d: x.permute(*d))((x @ wq).reshape(B, Sq, H, Dh), 0, 2, 1, 3)
        scores = torch.einsum("bhqd,bhkd->bhqk", q, k_cache) * (Dh ** -0.5)
        p = _softmax(scores, axis=-1)
        o = torch.einsum("bhqk,bhkd->bhqd", p, v_cache)
        return (lambda x, *d: x.permute(*d))(o, 0, 2, 1, 3).reshape(B, Sq, H * Dh) @ wo

    def _B_ref(x, k_cache, v_cache, wq, wo):
        B, Sq, D = x.shape
        H, Dh = 32, 128
        q = (lambda x, *d: x.permute(*d))((x @ wq).reshape(B, Sq, H, Dh), 0, 2, 1, 3)
        scores = torch.einsum("bhqd,bhkd->bhqk", q, k_cache) * (Dh ** -0.5)
        p = _softmax(scores, axis=-1)
        o = torch.einsum("bhqk,bhkd->bhqd", p, v_cache)
        return (lambda x, *d: x.permute(*d))(o, 0, 2, 1, 3).reshape(B, Sq, H * Dh) @ wo

    a = _A_ref(A_x, A_k_cache, A_v_cache, A_wq, A_wo)
    b = _B_ref(B_x, B_k_cache, B_v_cache, B_wq, B_wo)
    return torch.concatenate([a, b], axis=-1)
```

```python
import sys, math, struct

NAME = 'concat_heads__mha_block_cached__mha_block_cached__decode'
HEADER = open('cdna_kernels/' + NAME + '.s.ref').read().split('; Override launch')[0]

def f32bits(x):
    return struct.unpack('<I', struct.pack('<f', x))[0]

CSCALE = (128 ** -0.5) * math.log2(math.e)


class Asm:
    def __init__(self):
        self.L = []
        self.q = []

    def a(self, s):
        self.L.append('    ' + s)

    def label(self, s):
        self.L.append(s + ':')

    def c(self, s):
        self.L.append('    ; ' + s)

    def vm(self, tag, s):
        self.a(s)
        self.q.append(tag)
        assert len(self.q) <= 63, 'too many outstanding: %d' % len(self.q)

    def wait_tag(self, tag):
        idx = [i for i, t in enumerate(self.q) if t == tag]
        if not idx:
            return
        n = len(self.q) - 1 - idx[-1]
        self.a('s_waitcnt vmcnt(%d)' % n)
        self.q = self.q[idx[-1] + 1:]


def gen(T=32, D=2, kvpol='nt', wqpol='nt', wopol='nt', wo_per_tile=8, wq_first=48, stamps=False):
    NG = T // 16
    n = 4 * NG
    TILE = T * 256
    STEP = 4 * TILE
    NT = 4096 // T // 4
    g = Asm()
    a = g.a
    vLane, vT0, vT1, vT2, vT3 = 1, 2, 3, 4, 5
    vKoff, vVoff, vWq, vWo, vX = 6, 7, 8, 9, 10
    vNeg, vAlpha = 11, 12
    vM = [13, 14]
    vL = [15, 16]
    vSel = 20
    vAcc = [28, 32]
    vA = [36, 40]
    vS = 44
    vP = vS + max(8, NG * 4)
    vQ = [vP + (NG * 2 + 3) // 4 * 4]
    vQ.append(vQ[0] + 16)
    vXs = vQ[1] + 16
    vKV = vXs + 32
    vK = [vKV + b * 2 * n * 4 for b in range(D)]
    vV = [vKV + b * 2 * n * 4 + n * 4 for b in range(D)]
    assert vKV + D * 2 * n * 4 <= 256
    sX, sK, sV, sWq, sWo, sWs = 32, 36, 40, 44, 48, 52
    sOff, sCnt, sTmp, sH, sB0, sMod, sC, sWqO, sWoO = 56, 57, 58, 60, 61, 62, 63, 64, 65
    sG = 66
    sMt = 72
    sSt = 76
    nst = [0]

    def stamp():
        if stamps:
            a('s_memrealtime s[%d:%d]' % (sSt + 2 * nst[0], sSt + 2 * nst[0] + 1))
            nst[0] += 1

    K1 = 'attn_kernel'
    K2 = 'reduce_kernel'
    g.L.append('.amdgcn_target "amdgcn-amd-amdhsa--gfx950"')
    g.L.append('.text')
    g.L.append('.globl %s' % K1)
    g.L.append('.p2align 8')
    g.L.append('.type %s,@function' % K1)
    g.label(K1)
    a('s_cmp_ge_u32 s2, 256')
    a('s_cbranch_scc1 L_exit')
    stamp()
    a('s_load_dwordx16 s[4:19], s[0:1], 0')
    a('s_load_dwordx8 s[20:27], s[0:1], 64')
    a('s_load_dwordx2 s[28:29], s[0:1], 96')
    a('v_lshrrev_b32 v%d, 6, v0' % vT0)
    a('v_and_b32 v%d, 63, v0' % vLane)
    a('v_readfirstlane_b32 s3, v%d' % vT0)
    a('s_lshr_b32 s%d, s2, 7' % sMod)
    a('s_lshr_b32 s%d, s2, 5' % sH)
    a('s_and_b32 s%d, s%d, 3' % (sH, sH))
    a('s_lshl_b32 s%d, s%d, 3' % (sH, sH))
    a('s_and_b32 s%d, s2, 7' % sTmp)
    a('s_add_u32 s%d, s%d, s%d' % (sH, sH, sTmp))
    a('s_lshr_b32 s%d, s2, 3' % sB0)
    a('s_and_b32 s%d, s%d, 3' % (sB0, sB0))
    a('s_lshl_b32 s%d, s%d, 1' % (sB0, sB0))
    a('s_mov_b32 s%d, 0x%08x' % (sC, f32bits(CSCALE)))
    a('v_and_b32 v%d, 15, v%d' % (vT0, vLane))
    a('v_lshrrev_b32 v%d, 4, v%d' % (vT1, vLane))
    a('v_bfe_u32 v%d, v%d, 3, 1' % (vT2, vLane))
    a('v_lshlrev_b32 v%d, 11, v%d' % (vX, vT2))
    a('v_lshl_add_u32 v%d, v%d, 7, v%d' % (vX, vT1, vX))
    a('s_lshl_b32 s%d, s%d, 11' % (sTmp, sB0))
    a('s_lshl_b32 s%d, s3, 9' % (sTmp + 1))
    a('s_add_u32 s%d, s%d, s%d' % (sTmp, sTmp, sTmp + 1))
    a('v_add_u32 v%d, s%d, v%d' % (vX, sTmp, vX))
    a('v_lshlrev_b32 v%d, 19, v%d' % (vWq, vT1))
    a('v_lshl_add_u32 v%d, v%d, 4, v%d' % (vWq, vT0, vWq))
    a('s_lshl_b32 s%d, s3, 21' % sTmp)
    a('s_lshl_b32 s%d, s%d, 8' % (sTmp + 1, sH))
    a('s_add_u32 s%d, s%d, s%d' % (sTmp, sTmp, sTmp + 1))
    a('v_add_u32 v%d, s%d, v%d' % (vWq, sTmp, vWq))
    a('s_waitcnt lgkmcnt(0)')
    a('s_cmp_eq_u32 s%d, 0' % sMod)
    for srd, pa, pb, size in ((sX, 4, 14, 16384), (sWq, 10, 20, 1 << 23), (sK, 6, 16, 1 << 28), (sV, 8, 18, 1 << 28), (sWo, 12, 22, 1 << 23)):
        a('s_cselect_b32 s%d, s%d, s%d' % (srd, pa, pb))
        a('s_cselect_b32 s%d, s%d, s%d' % (srd + 1, pa + 1, pb + 1))
        a('s_mov_b32 s%d, 0x%x' % (srd + 2, size))
        a('s_mov_b32 s%d, 0x20000' % (srd + 3))
    for i in range(8):
        g.vm('x', 'buffer_load_dwordx4 v[%d:%d], v%d, s[%d:%d], 0 offen offset:%d' % (vXs + 4 * i, vXs + 4 * i + 3, vX, sX, sX + 3, 16 * i))
    a('s_mov_b32 s%d, 0' % sWqO)

    def wq_load(i):
        g.vm('wq%d' % i, 'buffer_load_dwordx4 a[%d:%d], v%d, s[%d:%d], s%d offen %s' % (4 * i, 4 * i + 3, vWq, sWq, sWq + 3, sWqO, wqpol))
        a('s_add_u32 s%d, s%d, 8192' % (sWqO, sWqO))

    def wo_load(i):
        row, cbi = divmod(i, 2)
        g.vm('wo', 'buffer_load_dwordx4 a[%d:%d], v%d, s[%d:%d], s%d offen offset:%d %s' % (4 * i, 4 * i + 3, vWo, sWo, sWo + 3, sWoO, (row & 1) * 2048 + cbi * 256, wopol))
        if (i & 3) == 3:
            a('s_add_u32 s%d, s%d, 4096' % (sWoO, sWoO))

    for i in range(wq_first):
        wq_load(i)
    a('s_mov_b32 s%d, s28' % sWs)
    a('s_mov_b32 s%d, s29' % (sWs + 1))
    a('s_mov_b32 s%d, 0x200000' % (sWs + 2))
    a('s_mov_b32 s%d, 0x20000' % (sWs + 3))
    a('v_and_b32 v%d, 3, v%d' % (vT2, vT0))
    a('v_lshlrev_b32 v%d, 10, v%d' % (vKoff, vT2))
    a('v_lshrrev_b32 v%d, 2, v%d' % (vT2, vT0))
    a('v_lshl_add_u32 v%d, v%d, 8, v%d' % (vKoff, vT2, vKoff))
    a('v_lshl_add_u32 v%d, v%d, 4, v%d' % (vKoff, vT1, vKoff))
    a('v_lshlrev_b32 v%d, 4, v%d' % (vVoff, vLane))
    a('v_lshlrev_b32 v%d, 16, v%d' % (vWo, vT1))
    a('v_lshl_add_u32 v%d, v%d, 4, v%d' % (vWo, vT0, vWo))
    a('s_lshl_b32 s%d, s%d, 18' % (sTmp, sH))
    a('s_lshl_b32 s%d, s3, 9' % (sTmp + 1))
    a('s_add_u32 s%d, s%d, s%d' % (sTmp, sTmp, sTmp + 1))
    a('v_add_u32 v%d, s%d, v%d' % (vWo, sTmp, vWo))
    a('s_mov_b32 s%d, 0' % sWoO)
    a('s_lshl_b32 s%d, s%d, 5' % (sOff, sB0))
    a('s_add_u32 s%d, s%d, s%d' % (sOff, sOff, sH))
    a('s_lshl_b32 s%d, s%d, 20' % (sOff, sOff))
    a('s_mul_i32 s%d, s3, %d' % (sTmp, TILE))
    a('s_add_u32 s%d, s%d, s%d' % (sOff, sOff, sTmp))
    a('v_and_b32 v%d, 1, v%d' % (vT2, vLane))
    a('v_cmp_eq_u32 vcc, 1, v%d' % vT2)
    a('v_bfe_u32 v%d, v%d, 1, 2' % (vT3, vLane))
    for par in range(2):
        lo = 0x0c0c0000 | ((2 * par + 1) << 8) | (2 * par)
        hi = 0x00000c0c | ((2 * par + 1) << 24) | ((2 * par) << 16)
        a('v_mov_b32 v%d, 0x%08x' % (vNeg, lo))
        a('v_mov_b32 v%d, 0x%08x' % (vAlpha, hi))
        a('v_cndmask_b32 v%d, v%d, v%d, vcc' % (vA[0] + par, vNeg, vAlpha))
    a('v_mov_b32 v%d, 0x0c0c0c0c' % vNeg)
    for rr in range(4):
        a('v_cmp_eq_u32 vcc, %d, v%d' % (rr, vT3))
        a('s_nop 1')
        for par in range(2):
            a('v_cndmask_b32 v%d, v%d, v%d, vcc' % (vSel + rr * 2 + par, vNeg, vA[0] + par))
    for s in range(2):
        a('v_mov_b32 v%d, 0xff800000' % vM[s])
        a('v_mov_b32 v%d, 0' % vL[s])
        for r in range(4):
            a('v_mov_b32 v%d, 0' % (vAcc[s] + r))

    def set_groups():
        for G in range(1, NG):
            a('s_add_u32 s%d, s%d, %d' % (sG + G, sOff, 4096 * G))

    def soff(G):
        return sOff if G == 0 else sG + G

    def k_load(t, b, u):
        G, tt = divmod(u, 4)
        r = vK[b] + 4 * u
        g.vm('K%d' % t, 'buffer_load_dwordx4 v[%d:%d], v%d, s[%d:%d], s%d offen offset:%d %s' % (r, r + 3, vKoff, sK, sK + 3, soff(G), 64 * tt, kvpol))

    def v_load(t, b, u):
        G, tt = divmod(u, 4)
        r = vV[b] + 4 * u
        g.vm('V%d' % t, 'buffer_load_dwordx4 v[%d:%d], v%d, s[%d:%d], s%d offen offset:%d %s' % (r, r + 3, vVoff, sV, sV + 3, soff(G), 1024 * tt, kvpol))

    def advance(t_next):
        if t_next == NT:
            a('s_add_u32 s%d, s%d, %d' % (sOff, sOff, (32 << 20) - (NT - 1) * STEP))
        else:
            a('s_add_u32 s%d, s%d, %d' % (sOff, sOff, STEP))
        set_groups()

    def build_A(dst, src, par):
        for rr in range(4):
            a('v_perm_b32 v%d, v%d, v%d, v%d' % (dst + rr, src, src, vSel + rr * 2 + par))

    pend = []
    for i in range(wq_first, 64):
        pend.append(lambda i=i: wq_load(i))
    for t in range(D):
        pend.append(lambda t=t: (advance(t) if t else set_groups()))
        for u in range(n):
            pend.append(lambda t=t, u=u: k_load(t, t, u))
        for u in range(n):
            pend.append(lambda t=t, u=u: v_load(t, t, u))
    g.wait_tag('x')
    stamp()
    vQacc = vS
    build_A(vA[0], vXs, 0)
    for i in range(64):
        if i + 1 < 64:
            build_A(vA[(i + 1) & 1], vXs + ((i + 1) >> 1), (i + 1) & 1)
        else:
            a('s_nop 1')
        g.wait_tag('wq%d' % i)
        a('v_mfma_f32_16x16x32_bf16 v[%d:%d], v[%d:%d], a[%d:%d], %s' % (vQacc, vQacc + 3, vA[i & 1], vA[i & 1] + 3, 4 * i, 4 * i + 3, '0' if i == 0 else 'v[%d:%d]' % (vQacc, vQacc + 3)))
        nq = len(g.q)
        while pend and len(g.q) == nq:
            pend.pop(0)()
    while pend:
        pend.pop(0)()
    stamp()
    a('v_lshrrev_b32 v%d, 5, v%d' % (vT2, vLane))
    a('v_lshlrev_b32 v%d, 9, v%d' % (vT2, vT2))
    a('v_lshl_add_u32 v%d, v%d, 5, v%d' % (vT2, vT0, vT2))
    a('v_bfe_u32 v%d, v%d, 4, 1' % (vT3, vLane))
    a('v_lshl_add_u32 v%d, v%d, 4, v%d' % (vT2, vT3, vT2))
    a('s_lshl_b32 s%d, s3, 10' % sTmp)
    a('v_add_u32 v%d, s%d, v%d' % (vT3, sTmp, vT2))
    a('s_nop 4')
    a('ds_write_b128 v%d, v[%d:%d]' % (vT3, vQacc, vQacc + 3))
    a('v_lshlrev_b32 v%d, 2, v0' % vT3)
    a('s_waitcnt lgkmcnt(0)')
    a('s_barrier')
    for w in range(4):
        a('ds_read_b32 v%d, v%d offset:%d' % (vA[0] + w, vT3, 1024 * w))
    a('v_lshlrev_b32 v%d, 1, v0' % vT3)
    a('s_waitcnt lgkmcnt(0)')
    a('v_add_f32 v%d, v%d, v%d' % (vA[0], vA[0], vA[0] + 1))
    a('v_add_f32 v%d, v%d, v%d' % (vA[0] + 2, vA[0] + 2, vA[0] + 3))
    a('v_add_f32 v%d, v%d, v%d' % (vA[0], vA[0], vA[0] + 2))
    a('v_cvt_pk_bf16_f32 v%d, v%d, v%d' % (vA[0], vA[0], vA[0]))
    a('ds_write_b16 v%d, v%d offset:4096' % (vT3, vA[0]))
    a('v_lshlrev_b32 v%d, 4, v%d' % (vT3, vT1))
    a('s_waitcnt lgkmcnt(0)')
    a('s_barrier')
    for s in range(2):
        for t in range(4):
            a('ds_read_b128 v[%d:%d], v%d offset:%d' % (vQ[s] + 4 * t, vQ[s] + 4 * t + 3, vT3, 4096 + 256 * s + 64 * t))
    a('s_waitcnt lgkmcnt(0)')
    stamp()

    wo_left = list(range(64))

    def tile(t, b, s, prefetch, nwo=0):
        g.wait_tag('K%d' % t)
        for tt in range(4):
            for G in range(NG):
                r = vK[b] + 16 * G + 4 * tt
                d = vS + 4 * G
                a('v_mfma_f32_16x16x32_bf16 v[%d:%d], v[%d:%d], v[%d:%d], %s' % (d, d + 3, r, r + 3, vQ[s] + 4 * tt, vQ[s] + 4 * tt + 3, '0' if tt == 0 else 'v[%d:%d]' % (d, d + 3)))
        if prefetch:
            advance(t + D)
            for u in range(n):
                k_load(t + D, b, u)
            if n < 8:
                a('s_nop %d' % (7 - n))
        else:
            a('s_nop 7')
        vals = [vS + i for i in range(4 * NG)]
        a('v_max3_f32 v%d, v%d, v%d, v%d' % (vT2, vals[0], vals[1], vals[2]))
        rest = vals[3:]
        while len(rest) >= 2:
            a('v_max3_f32 v%d, v%d, v%d, v%d' % (vT2, vT2, rest[0], rest[1]))
            rest = rest[2:]
        if rest:
            a('v_max_f32 v%d, v%d, v%d' % (vT2, vT2, rest[0]))
        a('s_nop 1')
        a('v_max_f32_dpp v%d, v%d, v%d row_bcast:15 row_mask:0xa bank_mask:0xf' % (vT2, vT2, vT2))
        a('s_nop 1')
        a('v_max_f32_dpp v%d, v%d, v%d row_bcast:31 row_mask:0xc bank_mask:0xf' % (vT2, vT2, vT2))
        a('s_nop 0')
        a('v_readlane_b32 s%d, v%d, 63' % (sMt, vT2))
        a('s_nop 1')
        a('v_max_f32 v%d, s%d, v%d' % (vT2, sMt, vM[s]))
        a('v_mul_f32 v%d, s%d, v%d' % (vNeg, sC, vT2))
        a('v_fma_f32 v%d, v%d, s%d, -v%d' % (vAlpha, vM[s], sC, vNeg))
        a('v_mov_b32 v%d, v%d' % (vM[s], vT2))
        a('v_exp_f32 v%d, v%d' % (vAlpha, vAlpha))
        for i in range(4 * NG):
            a('v_fma_f32 v%d, v%d, s%d, -v%d' % (vS + i, vS + i, sC, vNeg))
        for i in range(4 * NG):
            a('v_exp_f32 v%d, v%d' % (vS + i, vS + i))
        for r in range(4):
            a('v_mul_f32 v%d, v%d, v%d' % (vAcc[s] + r, vAlpha, vAcc[s] + r))
        for i in range(2 * NG):
            a('v_cvt_pk_bf16_f32 v%d, v%d, v%d' % (vP + i, vS + 2 * i, vS + 2 * i + 1))
        a('v_fma_f32 v%d, v%d, v%d, v%d' % (vL[s], vL[s], vAlpha, vS))
        for i in range(1, 4 * NG - 1, 2):
            a('v_add_f32 v%d, v%d, v%d' % (vS + i, vS + i, vS + i + 1))
            a('v_add_f32 v%d, v%d, v%d' % (vL[s], vL[s], vS + i))
        a('v_add_f32 v%d, v%d, v%d' % (vL[s], vL[s], vS + 4 * NG - 1))
        build_A(vA[0], vP, 0)
        g.wait_tag('V%d' % t)
        for u in range(n):
            if u + 1 < n:
                build_A(vA[(u + 1) & 1], vP + ((u + 1) >> 1), (u + 1) & 1)
            else:
                a('s_nop 1')
            r = vV[b] + 4 * u
            a('v_mfma_f32_16x16x32_bf16 v[%d:%d], v[%d:%d], v[%d:%d], v[%d:%d]' % (vAcc[s], vAcc[s] + 3, vA[u & 1], vA[u & 1] + 3, r, r + 3, vAcc[s], vAcc[s] + 3))
        if prefetch:
            for u in range(n):
                v_load(t + D, b, u)
        for _ in range(nwo):
            if wo_left:
                wo_load(wo_left.pop(0))

    def steady(t):
        exp = []
        for k in range(D):
            exp += ['K%d' % (t + k)] * n + ['V%d' % (t + k)] * n
        return exp

    def loop(t0, t1, s, name):
        cnt = (t1 - t0) // D
        assert (t1 - t0) % D == 0 and cnt >= 1
        exp = steady(t0)
        assert g.q[-len(exp):] == exp, (g.q, exp)
        g.q = list(exp)
        a('s_mov_b32 s%d, %d' % (sCnt, cnt))
        g.label(name)
        for k in range(D):
            tile(t0 + k, (t0 + k) % D, s, True)
        assert g.q == steady(t0 + D)
        a('s_sub_u32 s%d, s%d, 1' % (sCnt, sCnt))
        a('s_cmp_lg_u32 s%d, 0' % sCnt)
        a('s_cbranch_scc1 %s' % name)
        g.q = steady(t1)

    t = 0
    while wo_left:
        tile(t, t % D, 0, True, wo_per_tile)
        t += 1
    while ('wo' in g.q) or ((NT - D - t) % D):
        tile(t, t % D, 0, True)
        t += 1
    stamp()
    loop(t, NT - D, 0, 'L_seq0')
    for t in range(NT - D, NT):
        tile(t, t % D, 0, True)
    t = NT
    while (2 * NT - D - t) % D:
        tile(t, t % D, 1, True)
        t += 1
    loop(t, 2 * NT - D, 1, 'L_seq1')
    for t in range(2 * NT - D, 2 * NT):
        tile(t, t % D, 1, False)
    stamp()
    for s in range(2):
        a('v_add_f32_dpp v%d, v%d, v%d row_bcast:15 row_mask:0xa bank_mask:0xf' % (vL[s], vL[s], vL[s]))
    a('s_nop 0')
    for s in range(2):
        a('v_add_f32_dpp v%d, v%d, v%d row_bcast:31 row_mask:0xc bank_mask:0xf' % (vL[s], vL[s], vL[s]))
    a('v_lshlrev_b32 v%d, 5, v%d' % (vT2, vT0))
    a('v_lshl_add_u32 v%d, v%d, 4, v%d' % (vT2, vT1, vT2))
    a('s_lshl_b32 s%d, s3, 9' % sTmp)
    a('v_add_u32 v%d, s%d, v%d' % (vT2, sTmp, vT2))
    a('s_lshl_b32 s%d, s3, 3' % sTmp)
    a('v_mov_b32 v%d, s%d' % (vT3, sTmp))
    for s in range(2):
        a('v_mov_b32 v%d, v%d' % (vA[s], vM[s]))
        a('v_mov_b32 v%d, v%d' % (vA[s] + 1, vL[s]))
    a('s_nop 3')
    a('s_mov_b32 exec_hi, 0')
    for s in range(2):
        a('ds_write_b128 v%d, v[%d:%d] offset:%d' % (vT2, vAcc[s], vAcc[s] + 3, 8192 + 2048 * s))
    a('s_mov_b32 exec_lo, 0')
    a('s_mov_b32 exec_hi, 0x80000000')
    for s in range(2):
        a('ds_write_b64 v%d, v[%d:%d] offset:%d' % (vT3, vA[s], vA[s] + 1, 12288 + 32 * s))
    a('s_mov_b64 exec, -1')
    a('v_lshrrev_b32 v%d, 7, v0' % vT2)
    a('v_lshlrev_b32 v%d, 5, v%d' % (vT3, vT2))
    a('v_lshlrev_b32 v%d, 11, v%d' % (vT2, vT2))
    a('v_and_b32 v%d, 127, v0' % vNeg)
    a('v_lshl_add_u32 v%d, v%d, 2, v%d' % (vT2, vNeg, vT2))
    a('s_waitcnt lgkmcnt(0)')
    a('s_barrier')
    R = vS
    a('ds_read_b128 v[%d:%d], v%d offset:12288' % (R, R + 3, vT3))
    a('ds_read_b128 v[%d:%d], v%d offset:12304' % (R + 4, R + 7, vT3))
    for w in range(4):
        a('ds_read_b32 v%d, v%d offset:%d' % (vA[0] + w, vT2, 8192 + 512 * w))
    a('s_waitcnt lgkmcnt(4)')
    a('v_max3_f32 v%d, v%d, v%d, v%d' % (vT2, R, R + 2, R + 4))
    a('v_max_f32 v%d, v%d, v%d' % (vT2, vT2, R + 6))
    a('v_mul_f32 v%d, s%d, v%d' % (vNeg, sC, vT2))
    for w in range(4):
        a('v_fma_f32 v%d, v%d, s%d, -v%d' % (R + 2 * w, R + 2 * w, sC, vNeg))
    for w in range(4):
        a('v_exp_f32 v%d, v%d' % (R + 2 * w, R + 2 * w))
    a('s_nop 0')
    a('v_mul_f32 v%d, v%d, v%d' % (vT2, R, R + 1))
    for w in range(1, 4):
        a('v_fma_f32 v%d, v%d, v%d, v%d' % (vT2, R + 2 * w, R + 2 * w + 1, vT2))
    a('v_rcp_f32 v%d, v%d' % (vT2, vT2))
    a('s_waitcnt lgkmcnt(0)')
    a('v_mul_f32 v%d, v%d, v%d' % (vT3, R, vA[0]))
    for w in range(1, 4):
        a('v_fma_f32 v%d, v%d, v%d, v%d' % (vT3, R + 2 * w, vA[0] + w, vT3))
    a('v_mul_f32 v%d, v%d, v%d' % (vT3, vT3, vT2))
    a('v_cvt_pk_bf16_f32 v%d, v%d, v%d' % (vT3, vT3, vT3))
    a('v_lshlrev_b32 v%d, 1, v0' % vT2)
    a('ds_write_b16 v%d, v%d offset:13312' % (vT2, vT3))
    a('v_bfe_u32 v%d, v%d, 3, 1' % (vT2, vLane))
    a('v_lshlrev_b32 v%d, 8, v%d' % (vT2, vT2))
    a('v_lshl_add_u32 v%d, v%d, 6, v%d' % (vT2, vT1, vT2))
    a('s_waitcnt lgkmcnt(0)')
    a('s_barrier')
    for i in range(4):
        a('ds_read_b128 v[%d:%d], v%d offset:%d' % (vXs + 4 * i, vXs + 4 * i + 3, vT2, 13312 + 16 * i))
    a('s_lshl_b32 s%d, s%d, 3' % (sTmp, sMod))
    a('s_add_u32 s%d, s%d, s%d' % (sTmp, sTmp, sB0))
    a('s_lshl_b32 s%d, s%d, 5' % (sTmp, sTmp))
    a('s_add_u32 s%d, s%d, s%d' % (sTmp, sTmp, sH))
    a('s_lshl_b32 s%d, s%d, 12' % (sTmp, sTmp))
    a('s_lshl_b32 s%d, s3, 10' % (sTmp + 1))
    a('s_add_u32 s%d, s%d, s%d' % (sTmp, sTmp, sTmp + 1))
    a('v_lshrrev_b32 v%d, 5, v%d' % (vT3, vLane))
    a('v_lshlrev_b32 v%d, 17, v%d' % (vT3, vT3))
    a('v_lshl_add_u32 v%d, v%d, 5, v%d' % (vT3, vT0, vT3))
    a('v_bfe_u32 v%d, v%d, 4, 1' % (vNeg, vLane))
    a('v_lshl_add_u32 v%d, v%d, 4, v%d' % (vT3, vNeg, vT3))
    a('v_add_u32 v%d, s%d, v%d' % (vT3, sTmp, vT3))
    a('s_waitcnt vmcnt(0) lgkmcnt(0)')
    g.q = []
    vO = [vS, vS + 4]
    build_A(vA[0], vXs, 0)
    for i in range(32):
        if i + 1 < 32:
            build_A(vA[(i + 1) & 1], vXs + ((i + 1) >> 1), (i + 1) & 1)
        else:
            a('s_nop 1')
        for cbi in range(2):
            r = 4 * (2 * i + cbi)
            a('v_mfma_f32_16x16x32_bf16 v[%d:%d], v[%d:%d], a[%d:%d], %s' % (vO[cbi], vO[cbi] + 3, vA[i & 1], vA[i & 1] + 3, r, r + 3, '0' if i == 0 else 'v[%d:%d]' % (vO[cbi], vO[cbi] + 3)))
    a('s_nop 7')
    for cbi in range(2):
        a('buffer_store_dwordx4 v[%d:%d], v%d, s[%d:%d], 0 offen offset:%d' % (vO[cbi], vO[cbi] + 3, vT3, sWs, sWs + 3, 512 * cbi))
    if stamps:
        a('s_waitcnt vmcnt(0)')
        stamp()
        a('s_waitcnt lgkmcnt(0)')
        for i in range(nst[0]):
            a('v_writelane_b32 v%d, s%d, %d' % (vT2, sSt + 2 * i, i))
        a('s_lshl_b32 s%d, s2, 2' % sTmp)
        a('s_add_u32 s%d, s%d, s3' % (sTmp, sTmp))
        a('s_lshl_b32 s%d, s%d, 8' % (sTmp, sTmp))
        a('s_add_u32 s%d, s%d, 0x200000' % (sTmp, sTmp))
        a('v_lshl_add_u32 v%d, v%d, 2, s%d' % (vT3, vLane, sTmp))
        a('s_mov_b32 s%d, 0x300000' % (sWs + 2))
        a('buffer_store_dword v%d, v%d, s[%d:%d], 0 offen' % (vT2, vT3, sWs, sWs + 3))
    g.label('L_exit')
    a('s_endpgm')

    g.L.append('.globl %s' % K2)
    g.L.append('.p2align 8')
    g.L.append('.type %s,@function' % K2)
    g.label(K2)
    a('s_cmp_ge_u32 s2, 256')
    a('s_cbranch_scc1 L_exit2')
    a('s_load_dwordx2 s[8:9], s[0:1], 96')
    a('s_load_dwordx2 s[12:13], s[0:1], 80')
    a('s_lshr_b32 s3, s2, 4')
    a('s_and_b32 s4, s2, 15')
    a('v_lshrrev_b32 v1, 4, v0')
    a('v_and_b32 v2, 15, v0')
    a('v_lshlrev_b32 v3, 15, v1')
    a('v_lshl_add_u32 v3, v2, 4, v3')
    a('s_lshl_b32 s5, s3, 17')
    a('s_lshl_b32 s6, s4, 8')
    a('s_add_u32 s5, s5, s6')
    a('s_mov_b32 s10, 0x200000')
    a('s_mov_b32 s11, 0x20000')
    a('s_mov_b32 s14, 32768')
    a('s_mov_b32 s15, 0x20000')
    a('s_waitcnt lgkmcnt(0)')
    for k in range(8):
        a('buffer_load_dwordx4 v[%d:%d], v3, s[8:11], s5 offen' % (8 + 4 * k, 11 + 4 * k))
        if k < 7:
            a('s_add_u32 s5, s5, 4096')
    a('s_and_b32 s6, s3, 7')
    a('s_lshl_b32 s6, s6, 12')
    a('s_lshr_b32 s7, s3, 3')
    a('s_lshl_b32 s7, s7, 11')
    a('s_add_u32 s6, s6, s7')
    a('s_lshl_b32 s7, s4, 7')
    a('s_add_u32 s6, s6, s7')
    a('v_lshl_add_u32 v4, v2, 3, s6')
    for k in range(1, 8):
        a('s_waitcnt vmcnt(%d)' % (7 - k))
        for r in range(4):
            a('v_add_f32 v%d, v%d, v%d' % (8 + r, 8 + r, 8 + 4 * k + r))
    for swap in ('v_permlane32_swap_b32', 'v_permlane16_swap_b32'):
        for r in range(4):
            a('v_mov_b32 v%d, v%d' % (12 + r, 8 + r))
        a('s_nop 1')
        for r in range(4):
            a('%s v%d, v%d' % (swap, 8 + r, 12 + r))
        a('s_nop 1')
        for r in range(4):
            a('v_add_f32 v%d, v%d, v%d' % (8 + r, 8 + r, 12 + r))
    a('v_cvt_pk_bf16_f32 v8, v8, v9')
    a('v_cvt_pk_bf16_f32 v9, v10, v11')
    a('s_mov_b32 exec_lo, 0xffff')
    a('s_mov_b32 exec_hi, 0')
    a('buffer_store_dwordx2 v[8:9], v4, s[12:15], 0 offen')
    g.label('L_exit2')
    a('s_endpgm')

    kd = '''.section .rodata,"a"
.p2align 6
.amdhsa_kernel %s
  .amdhsa_next_free_vgpr %d
  .amdhsa_next_free_sgpr %d
  .amdhsa_accum_offset %d
  .amdhsa_group_segment_fixed_size 0
  .amdhsa_kernarg_size 104
  .amdhsa_user_sgpr_count 2
  .amdhsa_user_sgpr_kernarg_segment_ptr 1
  .amdhsa_system_sgpr_workgroup_id_x 1
.end_amdhsa_kernel
'''
    head = HEADER + '; @launch kernel=%s grid=(256,1,1) block=(256,1,1) lds=16384\n; @launch kernel=%s grid=(256,1,1) block=(64,1,1) lds=0\n' % (K1, K2)
    return head + '\n'.join(g.L) + '\n' + kd % (K1, 512, 96, 256) + kd % (K2, 40, 24, 40)


if __name__ == '__main__':
    import json
    kw = json.loads(sys.argv[2]) if len(sys.argv) > 2 else {}
    src = gen(**kw)
    open(sys.argv[1], 'w').write(src)
```

```python
import sys, math, struct

NAME = 'concat_heads__mha_block_cached__mha_block_cached__decode'
HEADER = open('cdna_kernels/' + NAME + '.s.ref').read().split('; Override launch')[0]

def f32bits(x):
    return struct.unpack('<I', struct.pack('<f', x))[0]

CSCALE = (128 ** -0.5) * math.log2(math.e)


class Asm:
    def __init__(self):
        self.L = []
        self.q = []

    def a(self, s):
        self.L.append('    ' + s)

    def label(self, s):
        self.L.append(s + ':')

    def c(self, s):
        self.L.append('    ; ' + s)

    def vm(self, tag, s):
        self.a(s)
        self.q.append(tag)
        assert len(self.q) <= 63, 'too many outstanding: %d' % len(self.q)

    def wait_tag(self, tag):
        idx = [i for i, t in enumerate(self.q) if t == tag]
        if not idx:
            return
        n = len(self.q) - 1 - idx[-1]
        self.a('s_waitcnt vmcnt(%d)' % n)
        self.q = self.q[idx[-1] + 1:]


def gen(T=32, D=2, kvpol='nt', wqpol='nt', wopol='nt', wo_per_tile=8, wq_first=48, stamps=False, dbgtime=False):
    NG = T // 16
    n = 4 * NG
    TILE = T * 256
    STEP = 4 * TILE
    NT = 4096 // T // 4
    g = Asm()
    a = g.a
    vLane, vT0, vT1, vT2, vT3 = 1, 2, 3, 4, 5
    vKoff, vVoff, vWq, vWo, vX = 6, 7, 8, 9, 10
    vNeg, vAlpha = 11, 12
    vM = [13, 14]
    vL = [15, 16]
    vSel = 20
    vAcc = [28, 32]
    vA = [36, 40]
    vS = 44
    vP = vS + max(8, NG * 4)
    vQ = [vP + (NG * 2 + 3) // 4 * 4]
    vQ.append(vQ[0] + 16)
    vXs = vQ[1] + 16
    vKV = vXs + 32
    vK = [vKV + b * 2 * n * 4 for b in range(D)]
    vV = [vKV + b * 2 * n * 4 + n * 4 for b in range(D)]
    assert vKV + D * 2 * n * 4 <= 256
    sX, sK, sV, sWq, sWo, sWs = 32, 36, 40, 44, 48, 52
    sOff, sCnt, sTmp, sH, sB0, sMod, sC, sWqO, sWoO = 56, 57, 58, 60, 61, 62, 63, 64, 65
    sG = 66
    sMt = 72
    sSt = 76
    nst = [0]

    def stamp():
        if stamps:
            a('s_memrealtime s[%d:%d]' % (sSt + 2 * nst[0], sSt + 2 * nst[0] + 1))
            nst[0] += 1

    K1 = 'attn_kernel'
    K2 = 'reduce_kernel'
    g.L.append('.amdgcn_target "amdgcn-amd-amdhsa--gfx950"')
    g.L.append('.text')
    g.L.append('.globl %s' % K1)
    g.L.append('.p2align 8')
    g.L.append('.type %s,@function' % K1)
    g.label(K1)
    a('s_cmp_ge_u32 s2, 256')
    a('s_cbranch_scc1 L_exit')
    stamp()
    if dbgtime:
        a('s_memrealtime s[92:93]')
    a('s_load_dwordx16 s[4:19], s[0:1], 0')
    a('s_load_dwordx8 s[20:27], s[0:1], 64')
    a('s_load_dwordx2 s[28:29], s[0:1], 96')
    a('v_lshrrev_b32 v%d, 6, v0' % vT0)
    a('v_and_b32 v%d, 63, v0' % vLane)
    a('v_readfirstlane_b32 s3, v%d' % vT0)
    a('s_lshr_b32 s%d, s2, 7' % sMod)
    a('s_lshr_b32 s%d, s2, 5' % sH)
    a('s_and_b32 s%d, s%d, 3' % (sH, sH))
    a('s_lshl_b32 s%d, s%d, 3' % (sH, sH))
    a('s_and_b32 s%d, s2, 7' % sTmp)
    a('s_add_u32 s%d, s%d, s%d' % (sH, sH, sTmp))
    a('s_lshr_b32 s%d, s2, 3' % sB0)
    a('s_and_b32 s%d, s%d, 3' % (sB0, sB0))
    a('s_lshl_b32 s%d, s%d, 1' % (sB0, sB0))
    a('s_mov_b32 s%d, 0x%08x' % (sC, f32bits(CSCALE)))
    a('v_and_b32 v%d, 15, v%d' % (vT0, vLane))
    a('v_lshrrev_b32 v%d, 4, v%d' % (vT1, vLane))
    a('v_bfe_u32 v%d, v%d, 3, 1' % (vT2, vLane))
    a('v_lshlrev_b32 v%d, 11, v%d' % (vX, vT2))
    a('v_lshl_add_u32 v%d, v%d, 7, v%d' % (vX, vT1, vX))
    a('s_lshl_b32 s%d, s%d, 11' % (sTmp, sB0))
    a('s_lshl_b32 s%d, s3, 9' % (sTmp + 1))
    a('s_add_u32 s%d, s%d, s%d' % (sTmp, sTmp, sTmp + 1))
    a('v_add_u32 v%d, s%d, v%d' % (vX, sTmp, vX))
    a('v_lshlrev_b32 v%d, 19, v%d' % (vWq, vT1))
    a('v_lshl_add_u32 v%d, v%d, 4, v%d' % (vWq, vT0, vWq))
    a('s_lshl_b32 s%d, s3, 21' % sTmp)
    a('s_lshl_b32 s%d, s%d, 8' % (sTmp + 1, sH))
    a('s_add_u32 s%d, s%d, s%d' % (sTmp, sTmp, sTmp + 1))
    a('v_add_u32 v%d, s%d, v%d' % (vWq, sTmp, vWq))
    a('s_waitcnt lgkmcnt(0)')
    a('s_cmp_eq_u32 s%d, 0' % sMod)
    for srd, pa, pb, size in ((sX, 4, 14, 16384), (sWq, 10, 20, 1 << 23), (sK, 6, 16, 1 << 28), (sV, 8, 18, 1 << 28), (sWo, 12, 22, 1 << 23)):
        a('s_cselect_b32 s%d, s%d, s%d' % (srd, pa, pb))
        a('s_cselect_b32 s%d, s%d, s%d' % (srd + 1, pa + 1, pb + 1))
        a('s_mov_b32 s%d, 0x%x' % (srd + 2, size))
        a('s_mov_b32 s%d, 0x20000' % (srd + 3))
    for i in range(8):
        g.vm('x', 'buffer_load_dwordx4 v[%d:%d], v%d, s[%d:%d], 0 offen offset:%d' % (vXs + 4 * i, vXs + 4 * i + 3, vX, sX, sX + 3, 16 * i))
    a('s_mov_b32 s%d, 0' % sWqO)

    def wq_load(i):
        g.vm('wq%d' % i, 'buffer_load_dwordx4 a[%d:%d], v%d, s[%d:%d], s%d offen %s' % (4 * i, 4 * i + 3, vWq, sWq, sWq + 3, sWqO, wqpol))
        a('s_add_u32 s%d, s%d, 8192' % (sWqO, sWqO))

    def wo_load(i):
        row, cbi = divmod(i, 2)
        g.vm('wo', 'buffer_load_dwordx4 a[%d:%d], v%d, s[%d:%d], s%d offen offset:%d %s' % (4 * i, 4 * i + 3, vWo, sWo, sWo + 3, sWoO, (row & 1) * 2048 + cbi * 256, wopol))
        if (i & 3) == 3:
            a('s_add_u32 s%d, s%d, 4096' % (sWoO, sWoO))

    for i in range(wq_first):
        wq_load(i)
    a('s_mov_b32 s%d, s28' % sWs)
    a('s_mov_b32 s%d, s29' % (sWs + 1))
    a('s_mov_b32 s%d, 0x200000' % (sWs + 2))
    a('s_mov_b32 s%d, 0x20000' % (sWs + 3))
    a('v_and_b32 v%d, 3, v%d' % (vT2, vT0))
    a('v_lshlrev_b32 v%d, 10, v%d' % (vKoff, vT2))
    a('v_lshrrev_b32 v%d, 2, v%d' % (vT2, vT0))
    a('v_lshl_add_u32 v%d, v%d, 8, v%d' % (vKoff, vT2, vKoff))
    a('v_lshl_add_u32 v%d, v%d, 4, v%d' % (vKoff, vT1, vKoff))
    a('v_lshlrev_b32 v%d, 4, v%d' % (vVoff, vLane))
    a('v_lshlrev_b32 v%d, 16, v%d' % (vWo, vT1))
    a('v_lshl_add_u32 v%d, v%d, 4, v%d' % (vWo, vT0, vWo))
    a('s_lshl_b32 s%d, s%d, 18' % (sTmp, sH))
    a('s_lshl_b32 s%d, s3, 9' % (sTmp + 1))
    a('s_add_u32 s%d, s%d, s%d' % (sTmp, sTmp, sTmp + 1))
    a('v_add_u32 v%d, s%d, v%d' % (vWo, sTmp, vWo))
    a('s_mov_b32 s%d, 0' % sWoO)
    a('s_lshl_b32 s%d, s%d, 5' % (sOff, sB0))
    a('s_add_u32 s%d, s%d, s%d' % (sOff, sOff, sH))
    a('s_lshl_b32 s%d, s%d, 20' % (sOff, sOff))
    a('s_mul_i32 s%d, s3, %d' % (sTmp, TILE))
    a('s_add_u32 s%d, s%d, s%d' % (sOff, sOff, sTmp))
    a('v_and_b32 v%d, 1, v%d' % (vT2, vLane))
    a('v_cmp_eq_u32 vcc, 1, v%d' % vT2)
    a('v_bfe_u32 v%d, v%d, 1, 2' % (vT3, vLane))
    for par in range(2):
        lo = 0x0c0c0000 | ((2 * par + 1) << 8) | (2 * par)
        hi = 0x00000c0c | ((2 * par + 1) << 24) | ((2 * par) << 16)
        a('v_mov_b32 v%d, 0x%08x' % (vNeg, lo))
        a('v_mov_b32 v%d, 0x%08x' % (vAlpha, hi))
        a('v_cndmask_b32 v%d, v%d, v%d, vcc' % (vA[0] + par, vNeg, vAlpha))
    a('v_mov_b32 v%d, 0x0c0c0c0c' % vNeg)
    for rr in range(4):
        a('v_cmp_eq_u32 vcc, %d, v%d' % (rr, vT3))
        a('s_nop 1')
        for par in range(2):
            a('v_cndmask_b32 v%d, v%d, v%d, vcc' % (vSel + rr * 2 + par, vNeg, vA[0] + par))
    for s in range(2):
        a('v_mov_b32 v%d, 0xff800000' % vM[s])
        a('v_mov_b32 v%d, 0' % vL[s])
        for r in range(4):
            a('v_mov_b32 v%d, 0' % (vAcc[s] + r))

    def set_groups():
        for G in range(1, NG):
            a('s_add_u32 s%d, s%d, %d' % (sG + G, sOff, 4096 * G))

    def soff(G):
        return sOff if G == 0 else sG + G

    def k_load(t, b, u):
        G, tt = divmod(u, 4)
        r = vK[b] + 4 * u
        g.vm('K%d' % t, 'buffer_load_dwordx4 v[%d:%d], v%d, s[%d:%d], s%d offen offset:%d %s' % (r, r + 3, vKoff, sK, sK + 3, soff(G), 64 * tt, kvpol))

    def v_load(t, b, u):
        G, tt = divmod(u, 4)
        r = vV[b] + 4 * u
        g.vm('V%d' % t, 'buffer_load_dwordx4 v[%d:%d], v%d, s[%d:%d], s%d offen offset:%d %s' % (r, r + 3, vVoff, sV, sV + 3, soff(G), 1024 * tt, kvpol))

    def advance(t_next):
        if t_next == NT:
            a('s_add_u32 s%d, s%d, %d' % (sOff, sOff, (32 << 20) - (NT - 1) * STEP))
        else:
            a('s_add_u32 s%d, s%d, %d' % (sOff, sOff, STEP))
        set_groups()

    def build_A(dst, src, par):
        for rr in range(4):
            a('v_perm_b32 v%d, v%d, v%d, v%d' % (dst + rr, src, src, vSel + rr * 2 + par))

    pend = []
    for i in range(wq_first, 64):
        pend.append(lambda i=i: wq_load(i))
    for t in range(D):
        pend.append(lambda t=t: (advance(t) if t else set_groups()))
        for u in range(n):
            pend.append(lambda t=t, u=u: k_load(t, t, u))
        for u in range(n):
            pend.append(lambda t=t, u=u: v_load(t, t, u))
    g.wait_tag('x')
    stamp()
    vQacc = vS
    build_A(vA[0], vXs, 0)
    for i in range(64):
        if i + 1 < 64:
            build_A(vA[(i + 1) & 1], vXs + ((i + 1) >> 1), (i + 1) & 1)
        else:
            a('s_nop 1')
        g.wait_tag('wq%d' % i)
        a('v_mfma_f32_16x16x32_bf16 v[%d:%d], v[%d:%d], a[%d:%d], %s' % (vQacc, vQacc + 3, vA[i & 1], vA[i & 1] + 3, 4 * i, 4 * i + 3, '0' if i == 0 else 'v[%d:%d]' % (vQacc, vQacc + 3)))
        nq = len(g.q)
        while pend and len(g.q) == nq:
            pend.pop(0)()
    while pend:
        pend.pop(0)()
    stamp()
    a('v_lshrrev_b32 v%d, 5, v%d' % (vT2, vLane))
    a('v_lshlrev_b32 v%d, 9, v%d' % (vT2, vT2))
    a('v_lshl_add_u32 v%d, v%d, 5, v%d' % (vT2, vT0, vT2))
    a('v_bfe_u32 v%d, v%d, 4, 1' % (vT3, vLane))
    a('v_lshl_add_u32 v%d, v%d, 4, v%d' % (vT2, vT3, vT2))
    a('s_lshl_b32 s%d, s3, 10' % sTmp)
    a('v_add_u32 v%d, s%d, v%d' % (vT3, sTmp, vT2))
    a('s_nop 4')
    a('ds_write_b128 v%d, v[%d:%d]' % (vT3, vQacc, vQacc + 3))
    a('v_lshlrev_b32 v%d, 2, v0' % vT3)
    a('s_waitcnt lgkmcnt(0)')
    a('s_barrier')
    for w in range(4):
        a('ds_read_b32 v%d, v%d offset:%d' % (vA[0] + w, vT3, 1024 * w))
    a('v_lshlrev_b32 v%d, 1, v0' % vT3)
    a('s_waitcnt lgkmcnt(0)')
    a('v_add_f32 v%d, v%d, v%d' % (vA[0], vA[0], vA[0] + 1))
    a('v_add_f32 v%d, v%d, v%d' % (vA[0] + 2, vA[0] + 2, vA[0] + 3))
    a('v_add_f32 v%d, v%d, v%d' % (vA[0], vA[0], vA[0] + 2))
    a('v_cvt_pk_bf16_f32 v%d, v%d, v%d' % (vA[0], vA[0], vA[0]))
    a('ds_write_b16 v%d, v%d offset:4096' % (vT3, vA[0]))
    a('v_lshlrev_b32 v%d, 4, v%d' % (vT3, vT1))
    a('s_waitcnt lgkmcnt(0)')
    a('s_barrier')
    for s in range(2):
        for t in range(4):
            a('ds_read_b128 v[%d:%d], v%d offset:%d' % (vQ[s] + 4 * t, vQ[s] + 4 * t + 3, vT3, 4096 + 256 * s + 64 * t))
    a('s_waitcnt lgkmcnt(0)')
    stamp()

    wo_left = list(range(64))

    def tile(t, b, s, prefetch, nwo=0):
        g.wait_tag('K%d' % t)
        for tt in range(4):
            for G in range(NG):
                r = vK[b] + 16 * G + 4 * tt
                d = vS + 4 * G
                a('v_mfma_f32_16x16x32_bf16 v[%d:%d], v[%d:%d], v[%d:%d], %s' % (d, d + 3, r, r + 3, vQ[s] + 4 * tt, vQ[s] + 4 * tt + 3, '0' if tt == 0 else 'v[%d:%d]' % (d, d + 3)))
        if prefetch:
            advance(t + D)
            for u in range(n):
                k_load(t + D, b, u)
            if n < 8:
                a('s_nop %d' % (7 - n))
        else:
            a('s_nop 7')
        vals = [vS + i for i in range(4 * NG)]
        a('v_max3_f32 v%d, v%d, v%d, v%d' % (vT2, vals[0], vals[1], vals[2]))
        rest = vals[3:]
        while len(rest) >= 2:
            a('v_max3_f32 v%d, v%d, v%d, v%d' % (vT2, vT2, rest[0], rest[1]))
            rest = rest[2:]
        if rest:
            a('v_max_f32 v%d, v%d, v%d' % (vT2, vT2, rest[0]))
        a('s_nop 1')
        a('v_max_f32_dpp v%d, v%d, v%d row_bcast:15 row_mask:0xa bank_mask:0xf' % (vT2, vT2, vT2))
        a('s_nop 1')
        a('v_max_f32_dpp v%d, v%d, v%d row_bcast:31 row_mask:0xc bank_mask:0xf' % (vT2, vT2, vT2))
        a('s_nop 0')
        a('v_readlane_b32 s%d, v%d, 63' % (sMt, vT2))
        a('s_nop 1')
        a('v_max_f32 v%d, s%d, v%d' % (vT2, sMt, vM[s]))
        a('v_mul_f32 v%d, s%d, v%d' % (vNeg, sC, vT2))
        a('v_fma_f32 v%d, v%d, s%d, -v%d' % (vAlpha, vM[s], sC, vNeg))
        a('v_mov_b32 v%d, v%d' % (vM[s], vT2))
        a('v_exp_f32 v%d, v%d' % (vAlpha, vAlpha))
        for i in range(4 * NG):
            a('v_fma_f32 v%d, v%d, s%d, -v%d' % (vS + i, vS + i, sC, vNeg))
        for i in range(4 * NG):
            a('v_exp_f32 v%d, v%d' % (vS + i, vS + i))
        for r in range(4):
            a('v_mul_f32 v%d, v%d, v%d' % (vAcc[s] + r, vAlpha, vAcc[s] + r))
        for i in range(2 * NG):
            a('v_cvt_pk_bf16_f32 v%d, v%d, v%d' % (vP + i, vS + 2 * i, vS + 2 * i + 1))
        a('v_fma_f32 v%d, v%d, v%d, v%d' % (vL[s], vL[s], vAlpha, vS))
        for i in range(1, 4 * NG - 1, 2):
            a('v_add_f32 v%d, v%d, v%d' % (vS + i, vS + i, vS + i + 1))
            a('v_add_f32 v%d, v%d, v%d' % (vL[s], vL[s], vS + i))
        a('v_add_f32 v%d, v%d, v%d' % (vL[s], vL[s], vS + 4 * NG - 1))
        build_A(vA[0], vP, 0)
        g.wait_tag('V%d' % t)
        for u in range(n):
            if u + 1 < n:
                build_A(vA[(u + 1) & 1], vP + ((u + 1) >> 1), (u + 1) & 1)
            else:
                a('s_nop 1')
            r = vV[b] + 4 * u
            a('v_mfma_f32_16x16x32_bf16 v[%d:%d], v[%d:%d], v[%d:%d], v[%d:%d]' % (vAcc[s], vAcc[s] + 3, vA[u & 1], vA[u & 1] + 3, r, r + 3, vAcc[s], vAcc[s] + 3))
        if prefetch:
            for u in range(n):
                v_load(t + D, b, u)
        for _ in range(nwo):
            if wo_left:
                wo_load(wo_left.pop(0))

    def steady(t):
        exp = []
        for k in range(D):
            exp += ['K%d' % (t + k)] * n + ['V%d' % (t + k)] * n
        return exp

    def loop(t0, t1, s, name):
        cnt = (t1 - t0) // D
        assert (t1 - t0) % D == 0 and cnt >= 1
        exp = steady(t0)
        assert g.q[-len(exp):] == exp, (g.q, exp)
        g.q = list(exp)
        a('s_mov_b32 s%d, %d' % (sCnt, cnt))
        g.label(name)
        for k in range(D):
            tile(t0 + k, (t0 + k) % D, s, True)
        assert g.q == steady(t0 + D)
        a('s_sub_u32 s%d, s%d, 1' % (sCnt, sCnt))
        a('s_cmp_lg_u32 s%d, 0' % sCnt)
        a('s_cbranch_scc1 %s' % name)
        g.q = steady(t1)

    t = 0
    while wo_left:
        tile(t, t % D, 0, True, wo_per_tile)
        t += 1
    while ('wo' in g.q) or ((NT - D - t) % D):
        tile(t, t % D, 0, True)
        t += 1
    stamp()
    loop(t, NT - D, 0, 'L_seq0')
    for t in range(NT - D, NT):
        tile(t, t % D, 0, True)
    t = NT
    while (2 * NT - D - t) % D:
        tile(t, t % D, 1, True)
        t += 1
    loop(t, 2 * NT - D, 1, 'L_seq1')
    for t in range(2 * NT - D, 2 * NT):
        tile(t, t % D, 1, False)
    stamp()
    for s in range(2):
        a('v_add_f32_dpp v%d, v%d, v%d row_bcast:15 row_mask:0xa bank_mask:0xf' % (vL[s], vL[s], vL[s]))
    a('s_nop 0')
    for s in range(2):
        a('v_add_f32_dpp v%d, v%d, v%d row_bcast:31 row_mask:0xc bank_mask:0xf' % (vL[s], vL[s], vL[s]))
    a('v_lshlrev_b32 v%d, 5, v%d' % (vT2, vT0))
    a('v_lshl_add_u32 v%d, v%d, 4, v%d' % (vT2, vT1, vT2))
    a('s_lshl_b32 s%d, s3, 9' % sTmp)
    a('v_add_u32 v%d, s%d, v%d' % (vT2, sTmp, vT2))
    a('s_lshl_b32 s%d, s3, 3' % sTmp)
    a('v_mov_b32 v%d, s%d' % (vT3, sTmp))
    for s in range(2):
        a('v_mov_b32 v%d, v%d' % (vA[s], vM[s]))
        a('v_mov_b32 v%d, v%d' % (vA[s] + 1, vL[s]))
    a('s_nop 3')
    a('s_mov_b32 exec_hi, 0')
    for s in range(2):
        a('ds_write_b128 v%d, v[%d:%d] offset:%d' % (vT2, vAcc[s], vAcc[s] + 3, 8192 + 2048 * s))
    a('s_mov_b32 exec_lo, 0')
    a('s_mov_b32 exec_hi, 0x80000000')
    for s in range(2):
        a('ds_write_b64 v%d, v[%d:%d] offset:%d' % (vT3, vA[s], vA[s] + 1, 12288 + 32 * s))
    a('s_mov_b64 exec, -1')
    a('v_lshrrev_b32 v%d, 7, v0' % vT2)
    a('v_lshlrev_b32 v%d, 5, v%d' % (vT3, vT2))
    a('v_lshlrev_b32 v%d, 11, v%d' % (vT2, vT2))
    a('v_and_b32 v%d, 127, v0' % vNeg)
    a('v_lshl_add_u32 v%d, v%d, 2, v%d' % (vT2, vNeg, vT2))
    a('s_waitcnt lgkmcnt(0)')
    a('s_barrier')
    R = vS
    a('ds_read_b128 v[%d:%d], v%d offset:12288' % (R, R + 3, vT3))
    a('ds_read_b128 v[%d:%d], v%d offset:12304' % (R + 4, R + 7, vT3))
    for w in range(4):
        a('ds_read_b32 v%d, v%d offset:%d' % (vA[0] + w, vT2, 8192 + 512 * w))
    a('s_waitcnt lgkmcnt(4)')
    a('v_max3_f32 v%d, v%d, v%d, v%d' % (vT2, R, R + 2, R + 4))
    a('v_max_f32 v%d, v%d, v%d' % (vT2, vT2, R + 6))
    a('v_mul_f32 v%d, s%d, v%d' % (vNeg, sC, vT2))
    for w in range(4):
        a('v_fma_f32 v%d, v%d, s%d, -v%d' % (R + 2 * w, R + 2 * w, sC, vNeg))
    for w in range(4):
        a('v_exp_f32 v%d, v%d' % (R + 2 * w, R + 2 * w))
    a('s_nop 0')
    a('v_mul_f32 v%d, v%d, v%d' % (vT2, R, R + 1))
    for w in range(1, 4):
        a('v_fma_f32 v%d, v%d, v%d, v%d' % (vT2, R + 2 * w, R + 2 * w + 1, vT2))
    a('v_rcp_f32 v%d, v%d' % (vT2, vT2))
    a('s_waitcnt lgkmcnt(0)')
    a('v_mul_f32 v%d, v%d, v%d' % (vT3, R, vA[0]))
    for w in range(1, 4):
        a('v_fma_f32 v%d, v%d, v%d, v%d' % (vT3, R + 2 * w, vA[0] + w, vT3))
    a('v_mul_f32 v%d, v%d, v%d' % (vT3, vT3, vT2))
    a('v_cvt_pk_bf16_f32 v%d, v%d, v%d' % (vT3, vT3, vT3))
    a('v_lshlrev_b32 v%d, 1, v0' % vT2)
    a('ds_write_b16 v%d, v%d offset:13312' % (vT2, vT3))
    a('v_bfe_u32 v%d, v%d, 3, 1' % (vT2, vLane))
    a('v_lshlrev_b32 v%d, 8, v%d' % (vT2, vT2))
    a('v_lshl_add_u32 v%d, v%d, 6, v%d' % (vT2, vT1, vT2))
    a('s_waitcnt lgkmcnt(0)')
    a('s_barrier')
    for i in range(4):
        a('ds_read_b128 v[%d:%d], v%d offset:%d' % (vXs + 4 * i, vXs + 4 * i + 3, vT2, 13312 + 16 * i))
    a('s_lshl_b32 s%d, s%d, 3' % (sTmp, sMod))
    a('s_add_u32 s%d, s%d, s%d' % (sTmp, sTmp, sB0))
    a('s_lshl_b32 s%d, s%d, 5' % (sTmp, sTmp))
    a('s_add_u32 s%d, s%d, s%d' % (sTmp, sTmp, sH))
    a('s_lshl_b32 s%d, s%d, 12' % (sTmp, sTmp))
    a('s_lshl_b32 s%d, s3, 10' % (sTmp + 1))
    a('s_add_u32 s%d, s%d, s%d' % (sTmp, sTmp, sTmp + 1))
    a('v_lshrrev_b32 v%d, 5, v%d' % (vT3, vLane))
    a('v_lshlrev_b32 v%d, 17, v%d' % (vT3, vT3))
    a('v_lshl_add_u32 v%d, v%d, 5, v%d' % (vT3, vT0, vT3))
    a('v_bfe_u32 v%d, v%d, 4, 1' % (vNeg, vLane))
    a('v_lshl_add_u32 v%d, v%d, 4, v%d' % (vT3, vNeg, vT3))
    a('v_add_u32 v%d, s%d, v%d' % (vT3, sTmp, vT3))
    a('s_waitcnt vmcnt(0) lgkmcnt(0)')
    g.q = []
    vO = [vS, vS + 4]
    build_A(vA[0], vXs, 0)
    for i in range(32):
        if i + 1 < 32:
            build_A(vA[(i + 1) & 1], vXs + ((i + 1) >> 1), (i + 1) & 1)
        else:
            a('s_nop 1')
        for cbi in range(2):
            r = 4 * (2 * i + cbi)
            a('v_mfma_f32_16x16x32_bf16 v[%d:%d], v[%d:%d], a[%d:%d], %s' % (vO[cbi], vO[cbi] + 3, vA[i & 1], vA[i & 1] + 3, r, r + 3, '0' if i == 0 else 'v[%d:%d]' % (vO[cbi], vO[cbi] + 3)))
    a('s_nop 7')
    for cbi in range(2):
        a('buffer_store_dwordx4 v[%d:%d], v%d, s[%d:%d], 0 offen offset:%d' % (vO[cbi], vO[cbi] + 3, vT3, sWs, sWs + 3, 512 * cbi))
    if stamps:
        a('s_waitcnt vmcnt(0)')
        stamp()
        a('s_waitcnt lgkmcnt(0)')
        for i in range(nst[0]):
            a('v_writelane_b32 v%d, s%d, %d' % (vT2, sSt + 2 * i, i))
        a('s_lshl_b32 s%d, s2, 2' % sTmp)
        a('s_add_u32 s%d, s%d, s3' % (sTmp, sTmp))
        a('s_lshl_b32 s%d, s%d, 8' % (sTmp, sTmp))
        a('s_add_u32 s%d, s%d, 0x200000' % (sTmp, sTmp))
        a('v_lshl_add_u32 v%d, v%d, 2, s%d' % (vT3, vLane, sTmp))
        a('s_mov_b32 s%d, 0x300000' % (sWs + 2))
        a('buffer_store_dword v%d, v%d, s[%d:%d], 0 offen' % (vT2, vT3, sWs, sWs + 3))
    if dbgtime:
        a('s_waitcnt vmcnt(0)')
        a('s_memrealtime s[94:95]')
        a('s_mov_b32 s%d, s26' % sWs)
        a('s_mov_b32 s%d, s27' % (sWs + 1))
        a('s_mov_b32 s%d, 256' % (sWs + 2))
        a('s_waitcnt lgkmcnt(0)')
        a('s_not_b32 s92, s92')
        a('v_mov_b32 v2, s94')
        a('v_mov_b32 v3, s92')
        a('v_mov_b32 v4, 0')
        a('s_mov_b64 exec, 1')
        a('buffer_atomic_umax v2, v4, s[%d:%d], 0 offen sc1' % (sWs, sWs + 3))
        a('buffer_atomic_umax v3, v4, s[%d:%d], 0 offen offset:4 sc1' % (sWs, sWs + 3))
    g.label('L_exit')
    a('s_endpgm')

    g.L.append('.globl %s' % K2)
    g.L.append('.p2align 8')
    g.L.append('.type %s,@function' % K2)
    g.label(K2)
    a('s_cmp_ge_u32 s2, 256')
    a('s_cbranch_scc1 L_exit2')
    a('s_load_dwordx2 s[8:9], s[0:1], 96')
    a('s_load_dwordx2 s[12:13], s[0:1], 80')
    a('s_lshr_b32 s3, s2, 4')
    a('s_and_b32 s4, s2, 15')
    a('v_lshrrev_b32 v1, 4, v0')
    a('v_and_b32 v2, 15, v0')
    a('v_lshlrev_b32 v3, 15, v1')
    a('v_lshl_add_u32 v3, v2, 4, v3')
    a('s_lshl_b32 s5, s3, 17')
    a('s_lshl_b32 s6, s4, 8')
    a('s_add_u32 s5, s5, s6')
    a('s_mov_b32 s10, 0x200000')
    a('s_mov_b32 s11, 0x20000')
    a('s_mov_b32 s14, 32768')
    a('s_mov_b32 s15, 0x20000')
    a('s_waitcnt lgkmcnt(0)')
    for k in range(8):
        a('buffer_load_dwordx4 v[%d:%d], v3, s[8:11], s5 offen' % (8 + 4 * k, 11 + 4 * k))
        if k < 7:
            a('s_add_u32 s5, s5, 4096')
    a('s_and_b32 s6, s3, 7')
    a('s_lshl_b32 s6, s6, 12')
    a('s_lshr_b32 s7, s3, 3')
    a('s_lshl_b32 s7, s7, 11')
    a('s_add_u32 s6, s6, s7')
    a('s_lshl_b32 s7, s4, 7')
    a('s_add_u32 s6, s6, s7')
    a('v_lshl_add_u32 v4, v2, 3, s6')
    for k in range(1, 8):
        a('s_waitcnt vmcnt(%d)' % (7 - k))
        for r in range(4):
            a('v_add_f32 v%d, v%d, v%d' % (8 + r, 8 + r, 8 + 4 * k + r))
    for swap in ('v_permlane32_swap_b32', 'v_permlane16_swap_b32'):
        for r in range(4):
            a('v_mov_b32 v%d, v%d' % (12 + r, 8 + r))
        a('s_nop 1')
        for r in range(4):
            a('%s v%d, v%d' % (swap, 8 + r, 12 + r))
        a('s_nop 1')
        for r in range(4):
            a('v_add_f32 v%d, v%d, v%d' % (8 + r, 8 + r, 12 + r))
    a('v_cvt_pk_bf16_f32 v8, v8, v9')
    a('v_cvt_pk_bf16_f32 v9, v10, v11')
    a('s_mov_b32 exec_lo, 0xffff')
    a('s_mov_b32 exec_hi, 0')
    a('buffer_store_dwordx2 v[8:9], v4, s[12:15], 0 offen')
    g.label('L_exit2')
    a('s_endpgm')

    kd = '''.section .rodata,"a"
.p2align 6
.amdhsa_kernel %s
  .amdhsa_next_free_vgpr %d
  .amdhsa_next_free_sgpr %d
  .amdhsa_accum_offset %d
  .amdhsa_group_segment_fixed_size 0
  .amdhsa_kernarg_size 104
  .amdhsa_user_sgpr_count 2
  .amdhsa_user_sgpr_kernarg_segment_ptr 1
  .amdhsa_system_sgpr_workgroup_id_x 1
.end_amdhsa_kernel
'''
    head = HEADER + '; @launch kernel=%s grid=(256,1,1) block=(256,1,1) lds=16384\n; @launch kernel=%s grid=(256,1,1) block=(64,1,1) lds=0\n' % (K1, K2)
    if stamps:
        head += '; nst=%d\n' % nst[0]
    return head + '\n'.join(g.L) + '\n' + kd % (K1, 512, 96, 256) + kd % (K2, 40, 24, 40)


if __name__ == '__main__':
    import json
    kw = json.loads(sys.argv[2]) if len(sys.argv) > 2 else {}
    src = gen(**kw)
    open(sys.argv[1], 'w').write(src)
```

```python
import sys, math, struct

NAME = 'concat_heads__mha_block_cached__mha_block_cached__decode'
HEADER = open('cdna_kernels/' + NAME + '.s.ref').read().split('; Override launch')[0]


def f32bits(x):
    return struct.unpack('<I', struct.pack('<f', x))[0]


CSCALE = (128 ** -0.5) * math.log2(math.e)
WS_H3 = 0
WS_H1 = 2 << 20
WS_H2 = 4 << 20
WS_EPOCH = 5 << 20
WS_END = 6 << 20
WS_STAMP = 8 << 20
L_Q = 0
L_ACC = 512
L_ML = 4608
L_O = 4672
L_STG = 9216
L_W = 17664
L_END = L_W + 65536


class Asm:
    def __init__(self):
        self.L = []
        self.q = []

    def a(self, s):
        self.L.append('    ' + s)

    def label(self, s):
        self.L.append(s + ':')

    def vm(self, tag, s):
        self.a(s)
        self.q.append(tag)
        assert len(self.q) <= 63, 'too many outstanding: %d' % len(self.q)

    def wait_tag(self, tag):
        idx = [i for i, t in enumerate(self.q) if t == tag]
        if not idx:
            return
        n = len(self.q) - 1 - idx[-1]
        self.a('s_waitcnt vmcnt(%d)' % n)
        self.q = self.q[idx[-1] + 1:]

    def limit(self, n):
        if len(self.q) > n:
            self.a('s_waitcnt vmcnt(%d)' % n)
            self.q = self.q[len(self.q) - n:] if n else []


def gen(kvpol='nt', wpol='nt', early=8, win=12, W=5, Wx=0, D=8, stamps=False, sleep=2, sleep3=8, tmo=0x400000,
        fuse=True, wowin=0):
    g = Asm()
    a = g.a
    wpat = [W + (1 if (i + 1) * Wx // 32 > i * Wx // 32 else 0) for i in range(32)]
    assert max(wpat) < D <= 32
    sX, sWQ, sK, sV, sWO = (32, 36), (40, 44), (48, 56), (52, 60), (64, 68)
    sWS, sOut = 72, 32
    sTag, sH, sJ, sOff, sCnt, sT0, sT1, sC = 76, 77, 78, 79, 80, 81, 82, 83
    sB1, sB0, sN8 = 86, 88, 90
    sMt, sBase, sL, sLdsW, sWOff, sH1, sT8 = 92, 93, 94, 95, 96, 97, 84
    vLane, vT0, vT1, vT2, vT3 = 1, 2, 3, 4, 5
    vHi, vNat = 6, 7
    vMask = 8
    vAcc = 12
    vA = (16, 20)
    vS, vPa, vCc = 24, 28, 32
    vNeg, vTmp, vTr, vW = 36, 37, 38, 39
    vZ = 40
    vQn = 72
    vXf = (76, 92)
    vTr1, vW1, vH1 = 108, 109, 110
    vWf = (40, 224)
    vQD = (24, 112)
    vRing = 128
    DPPF = 'row_mask:0xf bank_mask:0x%x'
    nst = [0]
    names = []

    def stamp(name):
        if stamps:
            names.append(name)
            a('s_memrealtime s[%d:%d]' % (4 + 2 * nst[0], 5 + 2 * nst[0]))
            nst[0] += 1
            assert nst[0] <= 13

    def write_stamps(n):
        a('s_waitcnt vmcnt(0) lgkmcnt(0)')
        a('s_mov_b64 exec, -1')
        a('s_getreg_b32 s99, hwreg(HW_REG_XCC_ID)')
        a('v_mov_b32 v%d, s99' % vT2)
        a('v_writelane_b32 v%d, s98, 0' % vT2)
        for i in range(n):
            a('v_writelane_b32 v%d, s%d, %d' % (vT2, 4 + 2 * i, i + 1))
        a('s_mul_i32 s%d, s2, 5' % sT0)
        a('s_add_u32 s%d, s%d, s3' % (sT0, sT0))
        a('s_lshl_b32 s%d, s%d, 8' % (sT0, sT0))
        a('s_add_u32 s%d, s%d, 0x%x' % (sT0, sT0, WS_STAMP))
        a('v_lshl_add_u32 v%d, v%d, 2, s%d' % (vT3, vLane, sT0))
        a('buffer_store_dword v%d, v%d, s[%d:%d], 0 offen' % (vT2, vT3, sWS, sWS + 3))

    def srd(d, p, size):
        a('s_mov_b32 s%d, s%d' % (d, p))
        a('s_mov_b32 s%d, s%d' % (d + 1, p + 1))
        a('s_mov_b32 s%d, 0x%x' % (d + 2, size))
        a('s_mov_b32 s%d, 0x20000' % (d + 3))

    def make_tag():
        a('s_waitcnt lgkmcnt(0)')
        a('s_mul_i32 s%d, s%d, 0x19660d' % (sTag, sTag))
        a('s_add_u32 s%d, s%d, 0x3c6ef35f' % (sTag, sTag))

    def weight_voffsets(shift):
        a('v_lshlrev_b32 v%d, 1, v%d' % (vW, vT1))
        a('v_xor_b32 v%d, v%d, v%d' % (vW, vW, vT0))
        a('v_lshlrev_b32 v%d, 4, v%d' % (vW, vW))
        a('v_lshl_add_u32 v%d, v%d, %d, v%d' % (vW, vT1, shift, vW))
        a('v_xor_b32 v%d, 128, v%d' % (vW1, vW))

    K1, K2 = (NAME + '_kernel', None) if fuse else ('attn_kernel', 'reduce_kernel')
    g.L += ['.amdgcn_target "amdgcn-amd-amdhsa--gfx950"', '.text', '.globl %s' % K1, '.p2align 8', '.type %s,@function' % K1]
    g.label(K1)
    a('s_cmp_ge_u32 s2, 256')
    a('s_cbranch_scc1 L_exit')
    if stamps:
        a('s_memrealtime s[98:99]')
    a('s_load_dwordx16 s[4:19], s[0:1], 0')
    a('s_load_dwordx8 s[20:27], s[0:1], 64')
    a('s_load_dwordx2 s[28:29], s[0:1], 96')
    a('v_lshrrev_b32 v%d, 6, v0' % vT0)
    a('v_and_b32 v%d, 63, v0' % vLane)
    a('v_readfirstlane_b32 s3, v%d' % vT0)
    a('s_lshr_b32 s%d, s2, 6' % sH)
    a('s_lshl_b32 s%d, s%d, 3' % (sH, sH))
    a('s_and_b32 s%d, s2, 7' % sT0)
    a('s_add_u32 s%d, s%d, s%d' % (sH, sH, sT0))
    a('s_bfe_u32 s%d, s2, 0x30003' % sJ)
    if fuse:
        a('s_mov_b32 s%d, 0x%x' % (sH1, WS_EPOCH))
    else:
        a('s_lshl_b32 s%d, s%d, 8' % (sH1, sH))
        a('s_add_u32 s%d, s%d, 0x%x' % (sH1, sH1, WS_EPOCH))
    a('v_and_b32 v%d, 15, v%d' % (vT0, vLane))
    a('v_lshrrev_b32 v%d, 4, v%d' % (vT1, vLane))
    a('v_lshlrev_b32 v%d, 4, v%d' % (vNat, vLane))
    a('s_cmp_eq_u32 s3, 4')
    a('s_waitcnt lgkmcnt(0)')
    a('s_load_dword s%d, s[28:29], s%d' % (sTag, sH1))
    srd(sWS, 28, (WS_STAMP + (1 << 20)) if stamps else WS_END)
    a('s_cbranch_scc1 L_comm')

    srd(sWQ[0], 10, 1 << 23)
    srd(sX[0], 4, 16384)
    weight_voffsets(13)
    a('s_lshl_b32 s%d, s%d, 20' % (sT0, sJ))
    a('s_lshl_b32 s%d, s%d, 8' % (sT1, sH))
    a('s_add_u32 s%d, s%d, s%d' % (sT0, sT0, sT1))
    a('s_lshl_b32 s%d, s3, 18' % sT1)
    a('s_add_u32 s%d, s%d, s%d' % (sWOff, sT0, sT1))
    a('s_lshl_b32 s%d, s3, 13' % sLdsW)
    vXa = vAcc
    a('v_and_b32 v%d, 7, v%d' % (vXa, vLane))
    a('v_lshlrev_b32 v%d, 11, v%d' % (vXa, vXa))
    a('v_lshl_add_u32 v%d, v%d, 4, v%d' % (vXa, vT1, vXa))
    a('s_lshl_b32 s%d, s%d, 8' % (sT1, sJ))
    srd(sX[1], 14, 16384)
    for mod in range(2):
        for kb in range(4):
            r = vXf[mod] + 4 * kb
            g.vm('w', 'buffer_load_dwordx4 v[%d:%d], v%d, s[%d:%d], s%d offen offset:%d' % (r, r + 3, vXa, sX[mod], sX[mod] + 3, sT1, 64 * kb))
    for mod in range(2):
        if mod:
            srd(sWQ[1], 20, 1 << 23)
        for i in range(8):
            a('s_add_u32 m0, s%d, %d' % (sLdsW, L_W + mod * 32768 + i * 1024))
            a('s_add_u32 s%d, s%d, %d' % (sT0, sWOff, i * 4 * 8192))
            g.vm('w', 'buffer_load_dwordx4 v%d, s[%d:%d], s%d offen %s lds' % (vW1 if i & 2 else vW, sWQ[mod], sWQ[mod] + 3, sT0, wpol))
    srd(sK[0], 6, 1 << 28)
    a('s_lshl_b32 s%d, s%d, 5' % (sBase, sJ))
    a('s_add_u32 s%d, s%d, s%d' % (sBase, sBase, sH))
    a('s_lshl_b32 s%d, s%d, 20' % (sBase, sBase))
    a('s_lshl_b32 s%d, s3, 12' % sT0)
    a('s_add_u32 s%d, s%d, s%d' % (sBase, sBase, sT0))
    a('s_mov_b32 s%d, s%d' % (sOff, sBase))

    def ring_load(srd_, j):
        r = vRing + 4 * (j & 31)
        g.vm('R%d' % (j & 31), 'buffer_load_dwordx4 v[%d:%d], v%d, s[%d:%d], s%d offen offset:%d %s' % (r, r + 3, vNat, srd_, srd_ + 3, sOff, 1024 * (j & 3), kvpol))
        if j & 3 == 3:
            a('s_add_u32 s%d, s%d, 16384' % (sOff, sOff))

    assert early <= 24
    for j in range(early):
        ring_load(sK[0], j)
    srd(sV[0], 8, 1 << 28)
    srd(sK[1], 16, 1 << 28)
    srd(sV[1], 18, 1 << 28)
    a('v_lshrrev_b32 v%d, 2, v%d' % (vTmp, vT0))
    a('v_and_b32 v%d, 1, v%d' % (vTr, vT1))
    a('v_lshl_add_u32 v%d, v%d, 2, v%d' % (vTr, vTr, vTmp))
    a('s_lshl_b32 s%d, s3, 1' % sT0)
    a('v_xor_b32 v%d, s%d, v%d' % (vTr, sT0, vTr))
    a('v_lshlrev_b32 v%d, 5, v%d' % (vTr, vTr))
    a('v_lshl_add_u32 v%d, v%d, 11, v%d' % (vTr, vT1, vTr))
    a('v_lshl_add_u32 v%d, v%d, 8, v%d' % (vTr, vTmp, vTr))
    a('v_and_b32 v%d, 3, v%d' % (vT3, vLane))
    a('v_lshl_add_u32 v%d, v%d, 3, v%d' % (vTr, vT3, vTr))
    a('v_xor_b32 v%d, 32, v%d' % (vTr1, vTr))
    a('v_add_u32 v%d, %d, v%d' % (vTr, L_W, vTr))
    a('v_add_u32 v%d, %d, v%d' % (vTr1, L_W, vTr1))
    a('s_mov_b32 s%d, 0x%08x' % (sC, f32bits(CSCALE)))
    for reg, val in ((sB1, 0xcccccccc), (sB0, 0xaaaaaaaa), (sN8, 0xff00ff00)):
        a('s_mov_b32 s%d, 0x%08x' % (reg, val))
        a('s_mov_b32 s%d, 0x%08x' % (reg + 1, val))
    a('v_mov_b32 v%d, 0xffff' % vNeg)
    a('v_mov_b32 v%d, 0xffff0000' % vTmp)
    a('v_cndmask_b32 v%d, v%d, v%d, s[%d:%d]' % (vNeg, vNeg, vTmp, sB0, sB0 + 1))
    a('v_bfe_u32 v%d, v%d, 1, 2' % (vTmp, vLane))
    for rr in range(4):
        a('v_cmp_eq_u32 vcc, %d, v%d' % (rr, vTmp))
        a('s_nop 1')
        a('v_cndmask_b32 v%d, 0, v%d, vcc' % (vMask + rr, vNeg))
    a('v_and_b32 v%d, 7, v%d' % (vTmp, vLane))
    a('v_mul_u32_u24 v%d, 1040, v%d' % (vH1, vTmp))
    a('v_bfe_u32 v%d, v%d, 3, 1' % (vTmp, vLane))
    a('v_lshl_add_u32 v%d, v%d, 6, v%d' % (vH1, vTmp, vH1))
    a('v_lshl_add_u32 v%d, v%d, 4, v%d' % (vH1, vT1, vH1))
    a('s_lshl_b32 s%d, s3, 7' % sT0)
    a('v_add_u32 v%d, s%d, v%d' % (vH1, sT0, vH1))

    def tr_reads(dst, mod):
        for cb in range(2):
            for kb in range(4):
                for hh in range(2):
                    r = dst + (cb * 4 + kb) * 4 + 2 * hh
                    a('ds_read_b64_tr_b16 v[%d:%d], v%d offset:%d' % (r, r + 1, vTr1 if cb else vTr, mod * 32768 + kb * 8192 + hh * 1024))

    def proj_mfma(d, wf, xf):
        for kb in range(4):
            for cb in range(2):
                w = wf + (cb * 4 + kb) * 4
                dd = d + 4 * cb
                a('v_mfma_f32_16x16x32_bf16 v[%d:%d], v[%d:%d], v[%d:%d], %s' % (dd, dd + 3, w, w + 3, xf + 4 * kb, xf + 4 * kb + 3, '0' if kb == 0 else 'v[%d:%d]' % (dd, dd + 3)))

    def select_tag(dst, d, tagged):
        for r in range(4):
            a('v_cndmask_b32 v%d, v%d, v%d, s[%d:%d]' % (dst + r, d + r, d + 4 + r, sN8, sN8 + 1))
        if tagged:
            for r in range(4):
                a('v_bfi_b32 v%d, v%d, v%d, v%d' % (dst + r, vTmp, vNeg, dst + r))

    a('v_mov_b32 v%d, 0xff' % vTmp)
    g.wait_tag('w')
    a('s_barrier')
    stamp('B0')
    for mod in range(2):
        tr_reads(vWf[mod], mod)
    for mod in range(2):
        a('s_waitcnt lgkmcnt(%d)' % (15 if mod == 0 else 0))
        proj_mfma(vQD[mod], vWf[mod], vXf[mod])
    make_tag()
    a('v_mov_b32 v%d, s%d' % (vNeg, sTag))
    for mod in range(2):
        a('s_nop 0')
        select_tag(vA[mod], vQD[mod], True)
        a('ds_write_b128 v%d, v[%d:%d] offset:%d' % (vH1, vA[mod], vA[mod] + 3, L_STG + mod * 512))
    a('s_waitcnt lgkmcnt(0)')
    a('s_barrier')
    stamp('stg')
    for j in range(early, 32):
        g.limit(win - 1)
        ring_load(sK[0], j)
    stamp('ring')
    a('s_barrier')
    stamp('B1')

    def pos(tau, r):
        return 8 * (r & 1) + 4 * (r >> 1) + 2 * (tau & 1) + (tau >> 1)

    def rotate():
        for i in range(14):
            a('v_mov_b32 v%d, v%d' % (vZ + i, vZ + i + 2))

    def k_group(refill):
        rotate()
        p, c = vPa, vCc
        for i in range(32):
            k, r = divmod(i, 4)
            g.wait_tag('R%d' % i)
            for e in range(4):
                a('v_dot2_f32_bf16 v%d, v%d, v%d, %s' % (p + r, vRing + 4 * i + e, vQn + e, '0' if e == 0 else 'v%d' % (p + r)))
            refill(i)
            if r == 3:
                a('v_add_f32_dpp v%d, v%d, v%d row_mirror %s' % (p, p, p, DPPF % 3))
                a('v_add_f32_dpp v%d, v%d, v%d row_mirror %s' % (p, p + 1, p + 1, DPPF % 12))
                a('v_add_f32_dpp v%d, v%d, v%d row_mirror %s' % (p + 2, p + 2, p + 2, DPPF % 3))
                a('v_add_f32_dpp v%d, v%d, v%d row_mirror %s' % (p + 2, p + 3, p + 3, DPPF % 12))
                a('s_nop 0')
                a('v_add_f32_dpp v%d, v%d, v%d row_half_mirror %s' % (c + (k & 3), p, p, DPPF % 5))
                a('v_add_f32_dpp v%d, v%d, v%d row_half_mirror %s' % (c + (k & 3), p + 2, p + 2, DPPF % 10))
            if i & 15 == 15:
                for t in range(4):
                    a('v_add_f32_dpp v%d, v%d, v%d quad_perm:[2,3,0,1] %s' % (c + t, c + t, c + t, DPPF % 15))
                a('v_cndmask_b32 v%d, v%d, v%d, s[%d:%d]' % (c, c, c + 1, sB1, sB1 + 1))
                a('v_cndmask_b32 v%d, v%d, v%d, s[%d:%d]' % (c + 2, c + 2, c + 3, sB1, sB1 + 1))
                a('s_nop 0')
                a('v_add_f32_dpp v%d, v%d, v%d quad_perm:[1,0,3,2] %s' % (c, c, c, DPPF % 15))
                a('v_add_f32_dpp v%d, v%d, v%d quad_perm:[1,0,3,2] %s' % (c + 2, c + 2, c + 2, DPPF % 15))
                a('v_cndmask_b32 v%d, v%d, v%d, s[%d:%d]' % (vZ + 14 + (i >> 4), c, c + 2, sB0, sB0 + 1))

    def v_group(refill):
        def build(i):
            for rr in range(4):
                a('v_and_b32_dpp v%d, v%d, v%d row_newbcast:%d %s' % (vA[i & 1] + rr, vZ + (i >> 4), vMask + rr, pos((i >> 2) & 3, i & 3), DPPF % 15))
        build(0)
        for i in range(32):
            if i < 31:
                build(i + 1)
            else:
                a('s_nop 1')
            g.wait_tag('R%d' % i)
            b = vRing + 4 * i
            a('v_mfma_f32_16x16x32_bf16 v[%d:%d], v[%d:%d], v[%d:%d], v[%d:%d]' % (vAcc, vAcc + 3, vA[i & 1], vA[i & 1] + 3, b, b + 3, vAcc, vAcc + 3))
            refill(i)
        rotate()

    def paced(srd_, i, j):
        g.limit(wpat[i] - 1)
        ring_load(srd_, j)

    def phase(name, body, srd_, srd_next, trips):
        g.limit(wpat[31])
        steady = ['R%d' % j for j in range(D - wpat[31], D)]
        assert g.q == steady[len(steady) - len(g.q):], (g.q, steady)
        g.q = list(steady)
        a('s_mov_b32 s%d, %d' % (sCnt, trips))
        g.label(name)
        body(lambda i: paced(srd_, i, i + D))
        assert g.q == steady
        a('s_sub_u32 s%d, s%d, 1' % (sCnt, sCnt))
        a('s_cmp_lg_u32 s%d, 0' % sCnt)
        a('s_cbranch_scc1 %s' % name)

        def last(i):
            if i + D < 32:
                paced(srd_, i, i + D)
            elif srd_next is not None:
                if i + D == 32:
                    a('s_mov_b32 s%d, s%d' % (sOff, sBase))
                paced(srd_next, i, i + D)
            elif i + D == 32:
                a('s_barrier')
        body(last)

    def wave_reduce(op, v):
        for ctl in ('row_mirror', 'row_half_mirror', 'quad_perm:[2,3,0,1]', 'quad_perm:[1,0,3,2]'):
            a('s_nop 1')
            a('%s_dpp v%d, v%d, v%d %s %s' % (op, v, v, v, ctl, DPPF % 15))
        a('s_nop 1')
        a('%s_dpp v%d, v%d, v%d row_bcast:15 row_mask:0xa bank_mask:0xf' % (op, v, v, v))
        a('s_nop 1')
        a('%s_dpp v%d, v%d, v%d row_bcast:31 row_mask:0xc bank_mask:0xf' % (op, v, v, v))
        a('s_nop 0')

    def softmax():
        a('v_max3_f32 v%d, v%d, v%d, v%d' % (vTmp, vZ, vZ + 1, vZ + 2))
        for i in range(3, 15, 2):
            a('v_max3_f32 v%d, v%d, v%d, v%d' % (vTmp, vTmp, vZ + i, vZ + i + 1))
        a('v_max_f32 v%d, v%d, v%d' % (vTmp, vTmp, vZ + 15))
        wave_reduce('v_max_f32', vTmp)
        a('v_readlane_b32 s%d, v%d, 63' % (sMt, vTmp))
        a('v_mov_b32 v%d, s%d' % (vNeg, sC))
        a('s_nop 0')
        a('v_mul_f32 v%d, s%d, v%d' % (vNeg, sMt, vNeg))
        for i in range(16):
            a('v_fma_f32 v%d, v%d, s%d, -v%d' % (vZ + i, vZ + i, sC, vNeg))
        for i in range(16):
            a('v_exp_f32 v%d, v%d' % (vZ + i, vZ + i))
        for r in range(4):
            a('v_mov_b32 v%d, 0' % (vAcc + r))
        a('v_add_f32 v%d, v%d, v%d' % (vS, vZ, vZ + 1))
        for i in range(2, 16):
            a('v_add_f32 v%d, v%d, v%d' % (vS, vS, vZ + i))
        for i in range(16):
            a('v_cvt_pk_bf16_f32 v%d, v%d, v%d' % (vZ + i, vZ + i, vZ + i))

    def save_state(mod):
        wave_reduce('v_add_f32', vS)
        a('v_readlane_b32 s%d, v%d, 63' % (sL, vS))
        a('v_lshlrev_b32 v%d, 5, v%d' % (vT2, vT0))
        a('v_lshl_add_u32 v%d, v%d, 4, v%d' % (vT2, vT1, vT2))
        a('s_lshl_b32 s%d, s3, 9' % sT0)
        a('v_add_u32 v%d, s%d, v%d' % (vT2, sT0, vT2))
        a('s_lshl_b32 s%d, s3, 3' % sT0)
        a('v_mov_b32 v%d, s%d' % (vT3, sT0))
        a('v_mov_b32 v%d, s%d' % (vPa, sMt))
        a('v_mov_b32 v%d, s%d' % (vPa + 1, sL))

    def write_state(mod):
        a('s_mov_b32 exec_hi, 0')
        a('ds_write_b128 v%d, v[%d:%d] offset:%d' % (vT2, vAcc, vAcc + 3, L_ACC + 2048 * mod))
        a('s_mov_b32 exec_lo, 1')
        a('ds_write_b64 v%d, v[%d:%d] offset:%d' % (vT3, vPa, vPa + 1, L_ML + 32 * mod))
        a('s_mov_b64 exec, -1')

    for mod in range(2):
        a('v_lshlrev_b32 v%d, 4, v%d' % (vNeg, vT0))
        a('ds_read_b128 v[%d:%d], v%d offset:%d' % (vQn, vQn + 3, vNeg, L_Q + 256 * mod))
        a('s_waitcnt lgkmcnt(0)')
        if mod == 0:
            nxt = [32]

            def shrink(i):
                while nxt[0] < 32 + (i + 1) * D // 32:
                    paced(sK[0], i, nxt[0])
                    nxt[0] += 1
            k_group(shrink)
        phase('L_k%d' % mod, k_group, sK[mod], sV[mod], 6 if mod == 0 else 7)
        stamp('K%d' % mod)
        softmax()
        save_state(mod)
        phase('L_v%d' % mod, v_group, sV[mod], sK[1] if mod == 0 else None, 7)
        stamp('V%d' % mod)
        write_state(mod)
    a('v_lshrrev_b32 v%d, 7, v0' % vT2)
    a('v_lshlrev_b32 v%d, 5, v%d' % (vT3, vT2))
    a('v_lshlrev_b32 v%d, 11, v%d' % (vT2, vT2))
    a('v_and_b32 v%d, 127, v0' % vNeg)
    a('v_lshl_add_u32 v%d, v%d, 2, v%d' % (vT2, vNeg, vT2))
    a('s_lshl_b32 s%d, s%d, 3' % (sT0, sH))
    a('s_add_u32 s%d, s%d, s%d' % (sT0, sT0, sJ))
    a('s_lshl_b32 s%d, s%d, 10' % (sT0, sT0))
    a('s_add_u32 s%d, s%d, 0x%x' % (sCnt, sT0, WS_H2))
    a('s_waitcnt lgkmcnt(0)')
    a('s_barrier')
    R = vS
    a('ds_read_b128 v[%d:%d], v%d offset:%d' % (R, R + 3, vT3, L_ML))
    a('ds_read_b128 v[%d:%d], v%d offset:%d' % (R + 4, R + 7, vT3, L_ML + 16))
    for w in range(4):
        a('ds_read_b32 v%d, v%d offset:%d' % (vA[0] + w, vT2, L_ACC + 512 * w))
    a('s_waitcnt lgkmcnt(4)')
    a('v_max3_f32 v%d, v%d, v%d, v%d' % (vT2, R, R + 2, R + 4))
    a('v_max_f32 v%d, v%d, v%d' % (vT2, vT2, R + 6))
    a('v_mul_f32 v%d, s%d, v%d' % (vNeg, sC, vT2))
    for w in range(4):
        a('v_fma_f32 v%d, v%d, s%d, -v%d' % (R + 2 * w, R + 2 * w, sC, vNeg))
    for w in range(4):
        a('v_exp_f32 v%d, v%d' % (R + 2 * w, R + 2 * w))
    a('s_nop 0')
    a('v_mul_f32 v%d, v%d, v%d' % (vT2, R, R + 1))
    for w in range(1, 4):
        a('v_fma_f32 v%d, v%d, v%d, v%d' % (vT2, R + 2 * w, R + 2 * w + 1, vT2))
    a('v_rcp_f32 v%d, v%d' % (vT2, vT2))
    a('s_waitcnt lgkmcnt(0)')
    a('v_mul_f32 v%d, v%d, v%d' % (vT3, R, vA[0]))
    for w in range(1, 4):
        a('v_fma_f32 v%d, v%d, v%d, v%d' % (vT3, R + 2 * w, vA[0] + w, vT3))
    a('v_mul_f32 v%d, v%d, v%d' % (vT3, vT3, vT2))
    a('v_mov_b32 v%d, s%d' % (vA[1] + 1, sTag))
    a('v_lshlrev_b32 v%d, 2, v0' % vNeg)
    a('v_mov_b32_dpp v%d, v%d quad_perm:[1,0,3,2] %s' % (vT2, vT3, DPPF % 15))
    a('v_cvt_pk_bf16_f32 v%d, v%d, v%d' % (vA[1], vT3, vT2))
    a('s_mov_b32 exec_lo, 0x55555555')
    a('s_mov_b32 exec_hi, 0x55555555')
    a('buffer_store_dwordx2 v[%d:%d], v%d, s[%d:%d], s%d offen sc1' % (vA[1], vA[1] + 1, vNeg, sWS, sWS + 3, sCnt))
    a('s_mov_b64 exec, -1')
    stamp('pubo')
    vWO, vOf, vD = vRing, vRing + 64, vRing + 96
    a('v_and_b32 v%d, 7, v%d' % (vT2, vLane))
    a('v_mul_u32_u24 v%d, 272, v%d' % (vT3, vT2))
    a('v_lshl_add_u32 v%d, v%d, 4, v%d' % (vT3, vT1, vT3))
    a('v_bfe_u32 v%d, v%d, 3, 1' % (vNeg, vLane))
    if fuse:
        a('v_lshlrev_b32 v%d, 14, v%d' % (vT2, vT2))
        a('s_lshl_b32 s%d, s%d, 18' % (sT0, sJ))
        a('s_lshl_b32 s%d, s%d, 8' % (sT1, sH))
        a('s_add_u32 s%d, s%d, s%d' % (sT0, sT0, sT1))
        a('s_lshr_b32 s%d, s3, 1' % sT1)
        a('s_lshl_b32 s%d, s%d, 13' % (sT1, sT1))
        a('s_add_u32 s%d, s%d, s%d' % (sT0, sT0, sT1))
        a('s_and_b32 s%d, s3, 1' % sT1)
        a('s_lshl_b32 s%d, s%d, 7' % (sT1, sT1))
        a('s_add_u32 s%d, s%d, s%d' % (sT0, sT0, sT1))
        a('s_add_u32 s%d, s%d, 0x20000' % (sT1, sT0))
    else:
        a('v_lshlrev_b32 v%d, 17, v%d' % (vT2, vT2))
        a('s_lshl_b32 s%d, s%d, 12' % (sT0, sH))
        a('s_lshl_b32 s%d, s%d, 9' % (sT1, sJ))
        a('s_add_u32 s%d, s%d, s%d' % (sT0, sT0, sT1))
        a('s_lshl_b32 s%d, s3, 7' % sT1)
        a('s_add_u32 s%d, s%d, s%d' % (sT0, sT0, sT1))
        a('s_add_u32 s%d, s%d, 0x100000' % (sT1, sT0))
    a('v_lshl_add_u32 v%d, v%d, 6, v%d' % (vT2, vNeg, vT2))
    a('v_lshl_add_u32 v%d, v%d, 4, v%d' % (vT2, vT1, vT2))
    a('v_mov_b32 v%d, 0xff' % vTmp)
    a('v_mov_b32 v%d, s%d' % (vNeg, sTag))
    a('s_barrier')
    stamp('B4')
    for mod in range(2):
        for kb in range(4):
            r = vOf + 16 * mod + 4 * kb
            a('ds_read_b128 v[%d:%d], v%d offset:%d' % (r, r + 3, vT3, L_O + mod * 8 * 272 + kb * 64))
        tr_reads(vWO + 32 * mod, mod)
    for mod in range(2):
        a('s_waitcnt lgkmcnt(%d)' % (15 if mod == 0 else 0))
        proj_mfma(vD + 8 * mod, vWO + 32 * mod, vOf + 16 * mod)
    for mod in range(2):
        a('s_nop %d' % (0 if mod == 0 or fuse else 3))
        select_tag(vD + 8 * mod, vD + 8 * mod, fuse)
        a('buffer_store_dwordx4 v[%d:%d], v%d, s[%d:%d], s%d offen %s' % (vD + 8 * mod, vD + 8 * mod + 3, vT2, sWS, sWS + 3, (sT0, sT1)[mod], 'sc1' if fuse else ''))
    if stamps:
        a('s_waitcnt vmcnt(0)')
        stamp('end')
        write_stamps(nst[0])
    nst_stream = nst[0]
    a('s_endpgm')

    g.label('L_comm')
    nst[0] = 0
    names.append('|')
    vG = 16
    vBad = 80
    a('s_setprio 3')
    srd(sWO[0], 12, 1 << 23)
    srd(sWO[1], 22, 1 << 23)
    if fuse:
        srd(sOut, 24, 32768)
    a('s_mov_b32 s%d, s%d' % (sBase, sH1))
    a('v_add_u32 v%d, 4096, v%d' % (vHi, vNat))
    a('s_lshl_b32 s%d, s%d, 16' % (sT0, sH))
    a('s_add_u32 s%d, s%d, 0x%x' % (sT0, sT0, WS_H1))
    a('s_lshl_b32 s%d, s%d, 13' % (sT1, sJ))
    a('s_add_u32 s%d, s%d, s%d' % (sOff, sT0, sT1))
    a('s_lshl_b32 s%d, s%d, 10' % (sT1, sJ))
    a('s_add_u32 s%d, s%d, s%d' % (sH1, sT0, sT1))
    a('v_lshlrev_b32 v%d, 3, v%d' % (vT3, vLane))
    npoll = [0]

    def poll(name, base, bytetag, slp):
        a('s_mov_b32 s%d, 0x%x' % (sCnt, tmo))
        g.label(name)
        for p in range(8):
            a('buffer_load_dwordx4 v[%d:%d], v%d, s[%d:%d], s%d offen offset:%d sc1' % (base + 4 * p, base + 4 * p + 3, vHi if p & 4 else vNat, sWS, sWS + 3, sOff, 1024 * (p & 3)))
        a('v_mov_b32 v%d, 0' % vBad)
        for p in range(8):
            a('s_waitcnt vmcnt(%d)' % (7 - p))
            es = (0, 1, 2, 3) if bytetag else (1, 3)
            for e in es:
                a('v_xor_b32 v%d, s%d, v%d' % (base + 4 * p + e, sT8 if bytetag else sTag, base + 4 * p + e))
            for i in range(0, len(es), 2):
                a('v_or3_b32 v%d, v%d, v%d, v%d' % (vBad, vBad, base + 4 * p + es[i], base + 4 * p + es[i + 1]))
        if bytetag:
            a('v_and_b32 v%d, 0xff, v%d' % (vBad, vBad))
        a('v_cmp_ne_u32 vcc, 0, v%d' % vBad)
        a('s_cbranch_vccz %s_ok' % name)
        a('s_sleep %d' % slp)
        a('s_sub_u32 s%d, s%d, 1' % (sCnt, sCnt))
        a('s_cmp_lg_u32 s%d, 0' % sCnt)
        a('s_cbranch_scc1 %s' % name)
        g.label(name + '_ok')
        if stamps:
            a('s_sub_u32 s%d, 0x%x, s%d' % (20 + 2 * npoll[0], tmo, sCnt))
            npoll[0] += 1

    def sum8(b):
        for e in range(4):
            for p in range(0, 8, 2):
                a('v_add_f32 v%d, v%d, v%d' % (b + 4 * p + e, b + 4 * p + e, b + 4 * p + 4 + e))
            a('v_add_f32 v%d, v%d, v%d' % (b + e, b + e, b + 8 + e))
            a('v_add_f32 v%d, v%d, v%d' % (b + 16 + e, b + 16 + e, b + 24 + e))
            a('v_add_f32 v%d, v%d, v%d' % (b + e, b + e, b + 16 + e))

    a('s_barrier')
    make_tag()
    a('s_and_b32 s%d, s%d, 0xff' % (sT8, sTag))
    a('s_barrier')
    for p in range(8):
        a('ds_read_b128 v[%d:%d], v%d offset:%d' % (vG + 4 * p, vG + 4 * p + 3, vNat, L_STG + 1040 * p))
    for p in range(8):
        a('s_waitcnt lgkmcnt(%d)' % (7 - p))
        a('buffer_store_dwordx4 v[%d:%d], v%d, s[%d:%d], s%d offen sc1' % (vG + 4 * p, vG + 4 * p + 3, vNat, sWS, sWS + 3, sH1))
        a('s_add_u32 s%d, s%d, 8192' % (sH1, sH1))
    a('s_waitcnt vmcnt(0)')
    stamp('st')
    poll('L_pq', vG, True, sleep)
    sum8(vG)
    a('v_cvt_pk_bf16_f32 v%d, v%d, v%d' % (vG, vG, vG + 1))
    a('v_cvt_pk_bf16_f32 v%d, v%d, v%d' % (vG + 1, vG + 2, vG + 3))
    a('ds_write_b64 v%d, v[%d:%d] offset:%d' % (vT3, vG, vG + 1, L_Q))
    a('s_waitcnt lgkmcnt(0)')
    stamp('q')
    a('s_barrier')
    weight_voffsets(11)
    a('s_lshl_b32 s%d, s%d, 18' % (sT0, sH))
    a('s_lshl_b32 s%d, s%d, 8' % (sT1, sJ))
    a('s_add_u32 s%d, s%d, s%d' % (sWOff, sT0, sT1))
    a('s_lshl_b32 s%d, s%d, 13' % (sT0, sH))
    a('s_add_u32 s%d, s%d, 0x%x' % (sOff, sT0, WS_H2))
    a('v_lshrrev_b32 v%d, 5, v%d' % (vT2, vLane))
    a('v_mul_u32_u24 v%d, %d, v%d' % (vT2, 8 * 272, vT2))
    a('v_and_b32 v%d, 31, v%d' % (vT3, vLane))
    a('v_lshl_add_u32 v%d, v%d, 3, v%d' % (vT2, vT3, vT2))
    a('v_add_u32 v%d, %d, v%d' % (vT2, L_O, vT2))
    a('v_add_u32 v%d, %d, v%d' % (vT3, 4 * 272, vT2))
    a('s_mov_b32 s%d, %d' % (sLdsW, L_W))
    a('s_barrier')
    for mod in range(2):
        a('s_mov_b32 s%d, s%d' % (sT0, sWOff))
        a('s_mov_b32 s%d, 8' % sCnt)
        g.label('L_wo%d' % mod)
        for i in range(4):
            if wowin:
                a('s_waitcnt vmcnt(%d)' % (wowin - 1))
            a('s_mov_b32 m0, s%d' % sLdsW)
            a('s_add_u32 s%d, s%d, 1024' % (sLdsW, sLdsW))
            a('buffer_load_dwordx4 v%d, s[%d:%d], s%d offen %s lds' % (vW1 if i & 2 else vW, sWO[mod], sWO[mod] + 3, sT0, wpol))
            a('s_add_u32 s%d, s%d, 8192' % (sT0, sT0))
        a('s_sub_u32 s%d, s%d, 1' % (sCnt, sCnt))
        a('s_cmp_lg_u32 s%d, 0' % sCnt)
        a('s_cbranch_scc1 L_wo%d' % mod)
        if mod == 0:
            a('s_barrier')
    stamp('wo')
    poll('L_po', vG, False, sleep)
    for p in range(8):
        a('ds_write2_b32 v%d, v%d, v%d offset0:%d offset1:%d' % (vT2 if p < 4 else vT3, vG + 4 * p, vG + 4 * p + 2, 68 * (p & 3), 68 * (p & 3) + 1))
    a('s_waitcnt lgkmcnt(0)')
    stamp('o')
    a('s_barrier')
    if fuse:
        a('s_lshl_b32 s%d, s%d, 5' % (sT0, sJ))
        a('s_add_u32 s%d, s%d, s%d' % (sT0, sT0, sH))
        a('s_lshl_b32 s%d, s%d, 13' % (sOff, sT0))
        a('s_bfe_u32 s%d, s%d, 0x30001' % (sT0, sH))
        a('s_lshl_b32 s%d, s%d, 12' % (sT0, sT0))
        a('s_lshr_b32 s%d, s%d, 4' % (sT1, sH))
        a('s_lshl_b32 s%d, s%d, 11' % (sT1, sT1))
        a('s_add_u32 s%d, s%d, s%d' % (sT0, sT0, sT1))
        a('s_lshl_b32 s%d, s%d, 8' % (sT1, sJ))
        a('s_add_u32 s%d, s%d, s%d' % (sT0, sT0, sT1))
        a('s_and_b32 s%d, s%d, 1' % (sT1, sH))
        a('s_lshl_b32 s%d, s%d, 7' % (sT1, sT1))
        a('s_add_u32 s%d, s%d, s%d' % (sWOff, sT0, sT1))
        a('v_lshlrev_b32 v%d, 3, v%d' % (vT2, vT0))
        poll('L_pp', vG, True, sleep3)
        sum8(vG)
        for swap in ('v_permlane32_swap_b32', 'v_permlane16_swap_b32'):
            for r in range(4):
                a('v_mov_b32 v%d, v%d' % (vG + 4 + r, vG + r))
            a('s_nop 1')
            for r in range(4):
                a('%s v%d, v%d' % (swap, vG + r, vG + 4 + r))
            a('s_nop 1')
            for r in range(4):
                a('v_add_f32 v%d, v%d, v%d' % (vG + r, vG + r, vG + 4 + r))
        a('v_cvt_pk_bf16_f32 v%d, v%d, v%d' % (vG, vG, vG + 1))
        a('v_cvt_pk_bf16_f32 v%d, v%d, v%d' % (vG + 1, vG + 2, vG + 3))
        a('s_mov_b32 exec_lo, 0xffff')
        a('s_mov_b32 exec_hi, 0')
        a('buffer_store_dwordx2 v[%d:%d], v%d, s[%d:%d], s%d offen' % (vG, vG + 1, vT2, sOut, sOut + 3, sWOff))
    a('s_cmp_lg_u32 %s, 0' % ('s2' if fuse else 's%d' % sJ))
    a('s_cbranch_scc1 L_comm_end')
    a('v_mov_b32 v%d, s%d' % (vT2, sTag))
    a('v_mov_b32 v%d, 0' % vT3)
    a('s_mov_b64 exec, 1')
    a('buffer_store_dword v%d, v%d, s[%d:%d], s%d offen' % (vT2, vT3, sWS, sWS + 3, sBase))
    g.label('L_comm_end')
    if stamps:
        a('s_waitcnt vmcnt(0)')
        stamp('fin')
        write_stamps(11)
    g.label('L_exit')
    a('s_endpgm')

    kd = '''.section .rodata,"a"
.p2align 6
.amdhsa_kernel %s
  .amdhsa_next_free_vgpr %d
  .amdhsa_next_free_sgpr %d
  .amdhsa_accum_offset %d
  .amdhsa_group_segment_fixed_size 0
  .amdhsa_kernarg_size 104
  .amdhsa_user_sgpr_count 2
  .amdhsa_user_sgpr_kernarg_segment_ptr 1
  .amdhsa_system_sgpr_workgroup_id_x 1
.end_amdhsa_kernel
'''
    tail = kd % (K1, 256, 100, 256)
    if fuse:
        head = HEADER + '; @launch grid=(256,1,1) block=(320,1,1) lds=%d\n' % L_END
    else:
        head = HEADER + '; @launch kernel=%s grid=(256,1,1) block=(320,1,1) lds=%d\n; @launch kernel=%s grid=(256,1,1) block=(64,1,1) lds=0\n' % (K1, L_END, K2)
        tail += kd % (K2, 40, 24, 40)
        g.L += ['.globl %s' % K2, '.p2align 8', '.type %s,@function' % K2]
        g.label(K2)
        for s in '''s_cmp_ge_u32 s2, 256
s_cbranch_scc1 L_exit2
s_load_dwordx2 s[8:9], s[0:1], 96
s_load_dwordx2 s[12:13], s[0:1], 80
s_lshr_b32 s3, s2, 4
s_and_b32 s4, s2, 15
v_lshrrev_b32 v1, 4, v0
v_and_b32 v2, 15, v0
v_lshlrev_b32 v3, 15, v1
v_lshl_add_u32 v3, v2, 4, v3
s_lshl_b32 s5, s3, 17
s_lshl_b32 s6, s4, 8
s_add_u32 s5, s5, s6
s_mov_b32 s10, 0x200000
s_mov_b32 s11, 0x20000
s_mov_b32 s14, 32768
s_mov_b32 s15, 0x20000
s_waitcnt lgkmcnt(0)'''.split('\n'):
            a(s)
        for k in range(8):
            a('buffer_load_dwordx4 v[%d:%d], v3, s[8:11], s5 offen' % (8 + 4 * k, 11 + 4 * k))
            if k < 7:
                a('s_add_u32 s5, s5, 4096')
        for s in '''s_and_b32 s6, s3, 7
s_lshl_b32 s6, s6, 12
s_lshr_b32 s7, s3, 3
s_lshl_b32 s7, s7, 11
s_add_u32 s6, s6, s7
s_lshl_b32 s7, s4, 7
s_add_u32 s6, s6, s7
v_lshl_add_u32 v4, v2, 3, s6'''.split('\n'):
            a(s)
        for k in range(1, 8):
            a('s_waitcnt vmcnt(%d)' % (7 - k))
            for r in range(4):
                a('v_add_f32 v%d, v%d, v%d' % (8 + r, 8 + r, 8 + 4 * k + r))
        for swap in ('v_permlane32_swap_b32', 'v_permlane16_swap_b32'):
            for r in range(4):
                a('v_mov_b32 v%d, v%d' % (12 + r, 8 + r))
            a('s_nop 1')
            for r in range(4):
                a('%s v%d, v%d' % (swap, 8 + r, 12 + r))
            a('s_nop 1')
            for r in range(4):
                a('v_add_f32 v%d, v%d, v%d' % (8 + r, 8 + r, 12 + r))
        a('v_cvt_pk_bf16_f32 v8, v8, v9')
        a('v_cvt_pk_bf16_f32 v9, v10, v11')
        a('s_mov_b32 exec_lo, 0xffff')
        a('s_mov_b32 exec_hi, 0')
        a('buffer_store_dwordx2 v[8:9], v4, s[12:15], 0 offen')
        g.label('L_exit2')
        a('s_endpgm')
    if stamps:
        head += '; nst3=%d names: start %s\n' % (nst_stream + 1, ' '.join(names))
    return head + '\n'.join(g.L) + '\n' + tail


if __name__ == '__main__':
    import json
    kw = json.loads(sys.argv[2]) if len(sys.argv) > 2 else {}
    src = gen(**kw)
    open(sys.argv[1], 'w').write(src)
```

```python
import sys, math, struct

NAME = 'concat_heads__mha_block_cached__mha_block_cached__decode'
HEADER = open('cdna_kernels/' + NAME + '.s.ref').read().split('; Override launch')[0]


def f32bits(x):
    return struct.unpack('<I', struct.pack('<f', x))[0]


CSCALE = (128 ** -0.5) * math.log2(math.e)
WS_H3 = 0
WS_H1 = 2 << 20
WS_H2 = 4 << 20
WS_EPOCH = 5 << 20
WS_CTL = (5 << 20) + 65536
WS_END = 6 << 20
WS_STAMP = 8 << 20
L_Q = 0
L_ACC = 512
L_ML = 4608
L_O = 4672
L_CTL = 9152
L_STG = 9216
L_W = 17664
L_END = L_W + 65536


class Asm:
    def __init__(self):
        self.L = []
        self.q = []

    def a(self, s):
        self.L.append('    ' + s)

    def label(self, s):
        self.L.append(s + ':')

    def vm(self, tag, s):
        self.a(s)
        self.q.append(tag)
        assert len(self.q) <= 63, 'too many outstanding: %d' % len(self.q)

    def wait_tag(self, tag):
        idx = [i for i, t in enumerate(self.q) if t == tag]
        if not idx:
            return
        n = len(self.q) - 1 - idx[-1]
        self.a('s_waitcnt vmcnt(%d)' % n)
        self.q = self.q[idx[-1] + 1:]

    def limit(self, n):
        if len(self.q) > n:
            self.a('s_waitcnt vmcnt(%d)' % n)
            self.q = self.q[len(self.q) - n:] if n else []


def gen(kvpol='nt', wpol='nt', early=8, win=12, W=5, Wx=0, D=8, stamps=False, sleep=2, sleep3=8, tmo=0x400000,
        fuse=True, wowin=0, Wend=0, nend=1, end0=0,
        ctl=False, period=2, umax=8, ubias=0, csz=8, csleep=4, uflex=16, first=None, keep=0, T=8, b2at=None, ldsync=False, par=None,
        boost=0, Wb=9, thr=16, msleep=16, pre_tr=False):
    g = Asm()
    a = g.a
    wpat = [W + (1 if (i + 1) * Wx // 32 > i * Wx // 32 else 0) for i in range(32)]
    if boost:
        assert ldsync and not ctl and not Wend and Wb < D
    if par:
        uflex = max(abs(par[0]), abs(par[1]))
    assert max(wpat) + (1 if ctl or par else 0) < D <= 32
    sX, sWQ, sK, sV, sWO = (32, 36), (40, 44), (48, 56), (52, 60), (64, 68)
    sWS, sOut = 72, 32
    sTag, sH, sJ, sOff, sCnt, sT0, sT1, sC = 76, 77, 78, 79, 80, 81, 82, 83
    sB1, sB0, sN8 = 86, 88, 90
    sMt, sBase, sL, sLdsW, sWOff, sH1, sT8, sU = 92, 93, 94, 95, 96, 97, 84, 85
    sDbg = 36
    vCtl, vOne, vU = 111, 120, 121
    vLane, vT0, vT1, vT2, vT3 = 1, 2, 3, 4, 5
    vHi, vNat = 6, 7
    vMask = 8
    vAcc = 12
    vA = (16, 20)
    vS, vPa, vCc = 24, 28, 32
    vNeg, vTmp, vTr, vW = 36, 37, 38, 39
    vZ = 40
    vQn = 72
    vXf = (76, 92)
    vTr1, vW1, vH1 = 108, 109, 110
    vWf = (40, 224)
    vQD = (24, 112)
    vRing = 128
    DPPF = 'row_mask:0xf bank_mask:0x%x'
    nst = [0]
    names = []

    def stamp(name):
        if stamps:
            names.append(name)
            a('s_memrealtime s[%d:%d]' % (4 + 2 * nst[0], 5 + 2 * nst[0]))
            nst[0] += 1
            assert nst[0] <= 13

    def write_stamps(n):
        a('s_waitcnt vmcnt(0) lgkmcnt(0)')
        a('s_mov_b64 exec, -1')
        a('s_getreg_b32 s99, hwreg(HW_REG_XCC_ID)')
        a('v_mov_b32 v%d, s99' % vT2)
        a('v_writelane_b32 v%d, s98, 0' % vT2)
        for i in range(n):
            a('v_writelane_b32 v%d, s%d, %d' % (vT2, 4 + 2 * i, i + 1))
        a('s_mul_i32 s%d, s2, 5' % sT0)
        a('s_add_u32 s%d, s%d, s3' % (sT0, sT0))
        a('s_lshl_b32 s%d, s%d, 8' % (sT0, sT0))
        a('s_add_u32 s%d, s%d, 0x%x' % (sT0, sT0, WS_STAMP))
        a('v_lshl_add_u32 v%d, v%d, 2, s%d' % (vT3, vLane, sT0))
        a('buffer_store_dword v%d, v%d, s[%d:%d], 0 offen' % (vT2, vT3, sWS, sWS + 3))

    def srd(d, p, size):
        a('s_mov_b32 s%d, s%d' % (d, p))
        a('s_mov_b32 s%d, s%d' % (d + 1, p + 1))
        a('s_mov_b32 s%d, 0x%x' % (d + 2, size))
        a('s_mov_b32 s%d, 0x20000' % (d + 3))

    def make_tag():
        a('s_waitcnt lgkmcnt(0)')
        a('s_mul_i32 s%d, s%d, 0x19660d' % (sTag, sTag))
        a('s_add_u32 s%d, s%d, 0x3c6ef35f' % (sTag, sTag))

    def weight_voffsets(shift):
        a('v_lshlrev_b32 v%d, 1, v%d' % (vW, vT1))
        a('v_xor_b32 v%d, v%d, v%d' % (vW, vW, vT0))
        a('v_lshlrev_b32 v%d, 4, v%d' % (vW, vW))
        a('v_lshl_add_u32 v%d, v%d, %d, v%d' % (vW, vT1, shift, vW))
        a('v_xor_b32 v%d, 128, v%d' % (vW1, vW))

    K1, K2 = (NAME + '_kernel', None) if fuse else ('attn_kernel', 'reduce_kernel')
    g.L += ['.amdgcn_target "amdgcn-amd-amdhsa--gfx950"', '.text', '.globl %s' % K1, '.p2align 8', '.type %s,@function' % K1]
    g.label(K1)
    a('s_cmp_ge_u32 s2, 256')
    a('s_cbranch_scc1 L_exit')
    if stamps:
        a('s_memrealtime s[98:99]')
    a('s_load_dwordx16 s[4:19], s[0:1], 0')
    a('s_load_dwordx8 s[20:27], s[0:1], 64')
    a('s_load_dwordx2 s[28:29], s[0:1], 96')
    a('v_lshrrev_b32 v%d, 6, v0' % vT0)
    a('v_and_b32 v%d, 63, v0' % vLane)
    a('v_readfirstlane_b32 s3, v%d' % vT0)
    a('s_lshr_b32 s%d, s2, 6' % sH)
    a('s_lshl_b32 s%d, s%d, 3' % (sH, sH))
    a('s_and_b32 s%d, s2, 7' % sT0)
    a('s_add_u32 s%d, s%d, s%d' % (sH, sH, sT0))
    a('s_bfe_u32 s%d, s2, 0x30003' % sJ)
    if fuse:
        a('s_mov_b32 s%d, 0x%x' % (sH1, WS_EPOCH))
    else:
        a('s_lshl_b32 s%d, s%d, 8' % (sH1, sH))
        a('s_add_u32 s%d, s%d, 0x%x' % (sH1, sH1, WS_EPOCH))
    a('v_and_b32 v%d, 15, v%d' % (vT0, vLane))
    a('v_lshrrev_b32 v%d, 4, v%d' % (vT1, vLane))
    a('v_lshlrev_b32 v%d, 4, v%d' % (vNat, vLane))
    a('s_cmp_eq_u32 s3, 4')
    a('s_waitcnt lgkmcnt(0)')
    a('s_load_dword s%d, s[28:29], s%d' % (sTag, sH1))
    srd(sWS, 28, (WS_STAMP + (1 << 20)) if stamps else WS_END)
    a('s_cbranch_scc1 L_comm')

    srd(sWQ[0], 10, 1 << 23)
    srd(sX[0], 4, 16384)
    weight_voffsets(13)
    a('s_lshl_b32 s%d, s%d, 20' % (sT0, sJ))
    a('s_lshl_b32 s%d, s%d, 8' % (sT1, sH))
    a('s_add_u32 s%d, s%d, s%d' % (sT0, sT0, sT1))
    a('s_lshl_b32 s%d, s3, 18' % sT1)
    a('s_add_u32 s%d, s%d, s%d' % (sWOff, sT0, sT1))
    a('s_lshl_b32 s%d, s3, 13' % sLdsW)
    vXa = vAcc
    a('v_and_b32 v%d, 7, v%d' % (vXa, vLane))
    a('v_lshlrev_b32 v%d, 11, v%d' % (vXa, vXa))
    a('v_lshl_add_u32 v%d, v%d, 4, v%d' % (vXa, vT1, vXa))
    a('s_lshl_b32 s%d, s%d, 8' % (sT1, sJ))
    srd(sX[1], 14, 16384)
    for mod in range(2):
        for kb in range(4):
            r = vXf[mod] + 4 * kb
            g.vm('w', 'buffer_load_dwordx4 v[%d:%d], v%d, s[%d:%d], s%d offen offset:%d' % (r, r + 3, vXa, sX[mod], sX[mod] + 3, sT1, 64 * kb))
    for mod in range(2):
        if mod:
            srd(sWQ[1], 20, 1 << 23)
        for i in range(8):
            a('s_add_u32 m0, s%d, %d' % (sLdsW, L_W + mod * 32768 + i * 1024))
            a('s_add_u32 s%d, s%d, %d' % (sT0, sWOff, i * 4 * 8192))
            g.vm('w', 'buffer_load_dwordx4 v%d, s[%d:%d], s%d offen %s lds' % (vW1 if i & 2 else vW, sWQ[mod], sWQ[mod] + 3, sT0, wpol))
    srd(sK[0], 6, 1 << 28)
    a('s_lshl_b32 s%d, s%d, 5' % (sBase, sJ))
    a('s_add_u32 s%d, s%d, s%d' % (sBase, sBase, sH))
    a('s_lshl_b32 s%d, s%d, 20' % (sBase, sBase))
    a('s_mul_i32 s%d, s3, %d' % (sT0, T * 1024))
    a('s_add_u32 s%d, s%d, s%d' % (sBase, sBase, sT0))
    a('s_mov_b32 s%d, s%d' % (sOff, sBase))

    def ring_load(srd_, j):
        r = vRing + 4 * (j & 31)
        g.vm('R%d' % (j & 31), 'buffer_load_dwordx4 v[%d:%d], v%d, s[%d:%d], s%d offen offset:%d %s' % (r, r + 3, vNat, srd_, srd_ + 3, sOff, 1024 * (j & 3), kvpol))
        if j & 3 == 3:
            a('s_add_u32 s%d, s%d, %d' % (sOff, sOff, 4096 if (j + 1) % T else 3 * T * 1024 + 4096))

    assert early <= 24
    for j in range(early):
        ring_load(sK[0], j)
    srd(sV[0], 8, 1 << 28)
    srd(sK[1], 16, 1 << 28)
    srd(sV[1], 18, 1 << 28)
    a('v_lshrrev_b32 v%d, 2, v%d' % (vTmp, vT0))
    a('v_and_b32 v%d, 1, v%d' % (vTr, vT1))
    a('v_lshl_add_u32 v%d, v%d, 2, v%d' % (vTr, vTr, vTmp))
    a('s_lshl_b32 s%d, s3, 1' % sT0)
    a('v_xor_b32 v%d, s%d, v%d' % (vTr, sT0, vTr))
    a('v_lshlrev_b32 v%d, 5, v%d' % (vTr, vTr))
    a('v_lshl_add_u32 v%d, v%d, 11, v%d' % (vTr, vT1, vTr))
    a('v_lshl_add_u32 v%d, v%d, 8, v%d' % (vTr, vTmp, vTr))
    a('v_and_b32 v%d, 3, v%d' % (vT3, vLane))
    a('v_lshl_add_u32 v%d, v%d, 3, v%d' % (vTr, vT3, vTr))
    a('v_xor_b32 v%d, 32, v%d' % (vTr1, vTr))
    a('v_add_u32 v%d, %d, v%d' % (vTr, L_W, vTr))
    a('v_add_u32 v%d, %d, v%d' % (vTr1, L_W, vTr1))
    a('s_mov_b32 s%d, 0x%08x' % (sC, f32bits(CSCALE)))
    for reg, val in ((sB1, 0xcccccccc), (sB0, 0xaaaaaaaa), (sN8, 0xff00ff00)):
        a('s_mov_b32 s%d, 0x%08x' % (reg, val))
        a('s_mov_b32 s%d, 0x%08x' % (reg + 1, val))
    a('v_mov_b32 v%d, 0xffff' % vNeg)
    a('v_mov_b32 v%d, 0xffff0000' % vTmp)
    a('v_cndmask_b32 v%d, v%d, v%d, s[%d:%d]' % (vNeg, vNeg, vTmp, sB0, sB0 + 1))
    a('v_bfe_u32 v%d, v%d, 1, 2' % (vTmp, vLane))
    for rr in range(4):
        a('v_cmp_eq_u32 vcc, %d, v%d' % (rr, vTmp))
        a('s_nop 1')
        a('v_cndmask_b32 v%d, 0, v%d, vcc' % (vMask + rr, vNeg))
    a('v_and_b32 v%d, 7, v%d' % (vTmp, vLane))
    a('v_mul_u32_u24 v%d, 1040, v%d' % (vH1, vTmp))
    a('v_bfe_u32 v%d, v%d, 3, 1' % (vTmp, vLane))
    a('v_lshl_add_u32 v%d, v%d, 6, v%d' % (vH1, vTmp, vH1))
    a('v_lshl_add_u32 v%d, v%d, 4, v%d' % (vH1, vT1, vH1))
    a('s_lshl_b32 s%d, s3, 7' % sT0)
    a('v_add_u32 v%d, s%d, v%d' % (vH1, sT0, vH1))

    def tr_reads(dst, mod):
        for cb in range(2):
            for kb in range(4):
                for hh in range(2):
                    r = dst + (cb * 4 + kb) * 4 + 2 * hh
                    a('ds_read_b64_tr_b16 v[%d:%d], v%d offset:%d' % (r, r + 1, vTr1 if cb else vTr, mod * 32768 + kb * 8192 + hh * 1024))

    def proj_mfma(d, wf, xf):
        for kb in range(4):
            for cb in range(2):
                w = wf + (cb * 4 + kb) * 4
                dd = d + 4 * cb
                a('v_mfma_f32_16x16x32_bf16 v[%d:%d], v[%d:%d], v[%d:%d], %s' % (dd, dd + 3, w, w + 3, xf + 4 * kb, xf + 4 * kb + 3, '0' if kb == 0 else 'v[%d:%d]' % (dd, dd + 3)))

    def select_tag(dst, d, tagged):
        for r in range(4):
            a('v_cndmask_b32 v%d, v%d, v%d, s[%d:%d]' % (dst + r, d + r, d + 4 + r, sN8, sN8 + 1))
        if tagged:
            for r in range(4):
                a('v_bfi_b32 v%d, v%d, v%d, v%d' % (dst + r, vTmp, vNeg, dst + r))

    a('v_mov_b32 v%d, 0xff' % vTmp)
    if ctl or ldsync:
        a('v_mov_b32 v%d, 0' % vCtl)
        a('v_mov_b32 v%d, 1' % vOne)
        a('s_mov_b32 s%d, %d' % (sU, ubias))
    if par:
        a('s_getreg_b32 s%d, hwreg(HW_REG_XCC_ID)' % sU)
        a('s_bitcmp1_b32 s%d, 0' % sU)
        a('s_cselect_b32 s%d, %d, %d' % (sU, par[1], par[0]))
    g.wait_tag('w')
    a('s_barrier')
    stamp('B0')
    for mod in range(2):
        tr_reads(vWf[mod], mod)
    for mod in range(2):
        a('s_waitcnt lgkmcnt(%d)' % (15 if mod == 0 else 0))
        proj_mfma(vQD[mod], vWf[mod], vXf[mod])
    make_tag()
    a('v_mov_b32 v%d, s%d' % (vNeg, sTag))
    for mod in range(2):
        a('s_nop 0')
        select_tag(vA[mod], vQD[mod], True)
        a('ds_write_b128 v%d, v[%d:%d] offset:%d' % (vH1, vA[mod], vA[mod] + 3, L_STG + mod * 512))
    a('s_waitcnt lgkmcnt(0)')
    a('s_barrier')
    stamp('stg')
    for j in range(early, 32):
        g.limit(win - 1)
        ring_load(sK[0], j)
    stamp('ring')
    a('s_barrier')
    stamp('B1')

    def pos(tau, r):
        return 8 * (r & 1) + 4 * (r >> 1) + 2 * (tau & 1) + (tau >> 1)

    def rotate():
        for i in range(14):
            a('v_mov_b32 v%d, v%d' % (vZ + i, vZ + i + 2))

    def k_group(refill):
        rotate()
        p, c = vPa, vCc
        for i in range(32):
            k, r = divmod(i, 4)
            g.wait_tag('R%d' % i)
            for e in range(4):
                a('v_dot2_f32_bf16 v%d, v%d, v%d, %s' % (p + r, vRing + 4 * i + e, vQn + e, '0' if e == 0 else 'v%d' % (p + r)))
            refill(i)
            if r == 3:
                a('v_add_f32_dpp v%d, v%d, v%d row_mirror %s' % (p, p, p, DPPF % 3))
                a('v_add_f32_dpp v%d, v%d, v%d row_mirror %s' % (p, p + 1, p + 1, DPPF % 12))
                a('v_add_f32_dpp v%d, v%d, v%d row_mirror %s' % (p + 2, p + 2, p + 2, DPPF % 3))
                a('v_add_f32_dpp v%d, v%d, v%d row_mirror %s' % (p + 2, p + 3, p + 3, DPPF % 12))
                a('s_nop 0')
                a('v_add_f32_dpp v%d, v%d, v%d row_half_mirror %s' % (c + (k & 3), p, p, DPPF % 5))
                a('v_add_f32_dpp v%d, v%d, v%d row_half_mirror %s' % (c + (k & 3), p + 2, p + 2, DPPF % 10))
            if i & 15 == 15:
                for t in range(4):
                    a('v_add_f32_dpp v%d, v%d, v%d quad_perm:[2,3,0,1] %s' % (c + t, c + t, c + t, DPPF % 15))
                a('v_cndmask_b32 v%d, v%d, v%d, s[%d:%d]' % (c, c, c + 1, sB1, sB1 + 1))
                a('v_cndmask_b32 v%d, v%d, v%d, s[%d:%d]' % (c + 2, c + 2, c + 3, sB1, sB1 + 1))
                a('s_nop 0')
                a('v_add_f32_dpp v%d, v%d, v%d quad_perm:[1,0,3,2] %s' % (c, c, c, DPPF % 15))
                a('v_add_f32_dpp v%d, v%d, v%d quad_perm:[1,0,3,2] %s' % (c + 2, c + 2, c + 2, DPPF % 15))
                a('v_cndmask_b32 v%d, v%d, v%d, s[%d:%d]' % (vZ + 14 + (i >> 4), c, c + 2, sB0, sB0 + 1))

    def v_group(refill):
        def build(i):
            for rr in range(4):
                a('v_and_b32_dpp v%d, v%d, v%d row_newbcast:%d %s' % (vA[i & 1] + rr, vZ + (i >> 4), vMask + rr, pos((i >> 2) & 3, i & 3), DPPF % 15))
        build(0)
        for i in range(32):
            if i < 31:
                build(i + 1)
            else:
                a('s_nop 1')
            g.wait_tag('R%d' % i)
            b = vRing + 4 * i
            a('v_mfma_f32_16x16x32_bf16 v[%d:%d], v[%d:%d], v[%d:%d], v[%d:%d]' % (vAcc, vAcc + 3, vA[i & 1], vA[i & 1] + 3, b, b + 3, vAcc, vAcc + 3))
            refill(i)
        rotate()

    wcur = [None]

    uid = [0]
    inboost = [False]

    def signal(word):
        a('s_mov_b64 exec, 1')
        a('ds_add_u32 v%d, v%d offset:%d' % (vCtl, vOne, L_CTL + 4 * word))
        a('s_mov_b64 exec, -1')

    def boost_rf(refill):
        def rf(i):
            if i % 8 == 1:
                a('ds_read_b32 v%d, v%d offset:%d' % (vU, vCtl, L_CTL + 4))
            if i % 8 == 4:
                a('s_waitcnt lgkmcnt(0)')
                a('v_cmp_ne_u32 vcc, 0, v%d' % vU)
            refill(i)
        return rf

    def paced(srd_, i, j):
        w = wcur[0](i) if wcur[0] else wpat[i]
        if inboost[0]:
            uid[0] += 1
            g.limit(Wb - 1)
            a('s_cbranch_vccnz L_u%d' % uid[0])
            a('s_waitcnt vmcnt(%d)' % (w - 1))
            g.label('L_u%d' % uid[0])
        elif (ctl or par) and not wcur[0] and i % 2 == 0 and len(g.q) >= w - 1:
            r = int('{:04b}'.format(i >> 1)[::-1], 2)
            uid[0] += 1
            g.limit(w)
            if r < uflex:
                a('s_cmp_gt_i32 s%d, %d' % (sU, r))
                a('s_cbranch_scc1 L_u%d' % uid[0])
            a('s_waitcnt vmcnt(%d)' % (w - 1))
            if r < uflex:
                a('s_cmp_ge_i32 s%d, %d' % (sU, -r))
                a('s_cbranch_scc1 L_u%d' % uid[0])
                a('s_waitcnt vmcnt(%d)' % (w - 2))
                g.label('L_u%d' % uid[0])
            else:
                g.q = g.q[len(g.q) - (w - 1):]
        else:
            g.limit(w - 1)
        ring_load(srd_, j)

    def group(body, refill):
        def rf(i):
            refill(i)
            if ctl and i == 24:
                a('ds_read_b32 v%d, v%d offset:%d' % (vU, vCtl, L_CTL + 4))
        body(rf)
        if ctl:
            a('s_mov_b64 exec, 1')
            a('ds_add_u32 v%d, v%d offset:%d' % (vCtl, vOne, L_CTL))
            a('s_mov_b64 exec, -1')
            a('s_waitcnt lgkmcnt(1)')
            a('v_readfirstlane_b32 s%d, v%d' % (sU, vU))

    def phase(name, body, srd_, srd_next, trips):
        g.limit(wpat[31])
        steady = ['R%d' % j for j in range(D - wpat[31], D)]
        assert g.q == steady[len(steady) - len(g.q):], (g.q, steady)
        g.q = list(steady)
        a('s_mov_b32 s%d, %d' % (sCnt, trips))
        g.label(name)
        group(body, lambda i: paced(srd_, i, i + D))
        assert g.q == steady
        a('s_sub_u32 s%d, s%d, 1' % (sCnt, sCnt))
        a('s_cmp_lg_u32 s%d, 0' % sCnt)
        a('s_cbranch_scc1 %s' % name)
        if srd_next is None and Wend:
            assert Wend < D
            wcur[0] = lambda i: Wend if i >= end0 else wpat[i]
            for _ in range(nend - 1):
                group(body, lambda i: paced(srd_, i, i + D))
                wcur[0] = lambda i: Wend

        if srd_next is None and boost:
            signal(0)
            a('s_mov_b64 vcc, 0')
            inboost[0] = True
            if boost > 1:
                steady2 = ['R%d' % j for j in range(D - Wb, D)]
                g.q = list(steady2)
                a('s_mov_b32 s%d, %d' % (sCnt, boost - 1))
                g.label(name + 'b')
                body(boost_rf(lambda i: paced(srd_, i, i + D)))
                assert g.q == steady2
                a('s_sub_u32 s%d, s%d, 1' % (sCnt, sCnt))
                a('s_cmp_lg_u32 s%d, 0' % sCnt)
                a('s_cbranch_scc1 %sb' % name)

        def last(i):
            if i + D < 32:
                paced(srd_, i, i + D)
            elif srd_next is not None:
                if i + D == 32:
                    a('s_mov_b32 s%d, s%d' % (sOff, sBase))
                paced(srd_next, i, i + D)
            if srd_next is None and i == (32 - D if b2at is None else b2at):
                if boost:
                    signal(3)
                else:
                    a('s_barrier')
        if srd_next is None and stamps == 'lg':
            stamp('LG')
        if srd_next is None:
            body(boost_rf(last) if boost else last)
        else:
            group(body, last)

    def wave_reduce(op, v):
        for ctl in ('row_mirror', 'row_half_mirror', 'quad_perm:[2,3,0,1]', 'quad_perm:[1,0,3,2]'):
            a('s_nop 1')
            a('%s_dpp v%d, v%d, v%d %s %s' % (op, v, v, v, ctl, DPPF % 15))
        a('s_nop 1')
        a('%s_dpp v%d, v%d, v%d row_bcast:15 row_mask:0xa bank_mask:0xf' % (op, v, v, v))
        a('s_nop 1')
        a('%s_dpp v%d, v%d, v%d row_bcast:31 row_mask:0xc bank_mask:0xf' % (op, v, v, v))
        a('s_nop 0')

    def softmax():
        a('v_max3_f32 v%d, v%d, v%d, v%d' % (vTmp, vZ, vZ + 1, vZ + 2))
        for i in range(3, 15, 2):
            a('v_max3_f32 v%d, v%d, v%d, v%d' % (vTmp, vTmp, vZ + i, vZ + i + 1))
        a('v_max_f32 v%d, v%d, v%d' % (vTmp, vTmp, vZ + 15))
        wave_reduce('v_max_f32', vTmp)
        a('v_readlane_b32 s%d, v%d, 63' % (sMt, vTmp))
        a('v_mov_b32 v%d, s%d' % (vNeg, sC))
        a('s_nop 0')
        a('v_mul_f32 v%d, s%d, v%d' % (vNeg, sMt, vNeg))
        for i in range(16):
            a('v_fma_f32 v%d, v%d, s%d, -v%d' % (vZ + i, vZ + i, sC, vNeg))
        for i in range(16):
            a('v_exp_f32 v%d, v%d' % (vZ + i, vZ + i))
        for r in range(4):
            a('v_mov_b32 v%d, 0' % (vAcc + r))
        a('v_add_f32 v%d, v%d, v%d' % (vS, vZ, vZ + 1))
        for i in range(2, 16):
            a('v_add_f32 v%d, v%d, v%d' % (vS, vS, vZ + i))
        for i in range(16):
            a('v_cvt_pk_bf16_f32 v%d, v%d, v%d' % (vZ + i, vZ + i, vZ + i))

    def save_state(mod):
        wave_reduce('v_add_f32', vS)
        a('v_readlane_b32 s%d, v%d, 63' % (sL, vS))
        a('v_lshlrev_b32 v%d, 5, v%d' % (vT2, vT0))
        a('v_lshl_add_u32 v%d, v%d, 4, v%d' % (vT2, vT1, vT2))
        a('s_lshl_b32 s%d, s3, 9' % sT0)
        a('v_add_u32 v%d, s%d, v%d' % (vT2, sT0, vT2))
        a('s_lshl_b32 s%d, s3, 3' % sT0)
        a('v_mov_b32 v%d, s%d' % (vT3, sT0))
        a('v_mov_b32 v%d, s%d' % (vPa, sMt))
        a('v_mov_b32 v%d, s%d' % (vPa + 1, sL))

    def write_state(mod):
        a('s_mov_b32 exec_hi, 0')
        a('ds_write_b128 v%d, v[%d:%d] offset:%d' % (vT2, vAcc, vAcc + 3, L_ACC + 2048 * mod))
        a('s_mov_b32 exec_lo, 1')
        a('ds_write_b64 v%d, v[%d:%d] offset:%d' % (vT3, vPa, vPa + 1, L_ML + 32 * mod))
        a('s_mov_b64 exec, -1')

    for mod in range(2):
        a('v_lshlrev_b32 v%d, 4, v%d' % (vNeg, vT0))
        a('ds_read_b128 v[%d:%d], v%d offset:%d' % (vQn, vQn + 3, vNeg, L_Q + 256 * mod))
        a('s_waitcnt lgkmcnt(0)')
        if mod == 0:
            nxt = [32]

            def shrink(i):
                while nxt[0] < 32 + (i + 1) * D // 32:
                    paced(sK[0], i, nxt[0])
                    nxt[0] += 1
            group(k_group, shrink)
        phase('L_k%d' % mod, k_group, sK[mod], sV[mod], 6 if mod == 0 else 7)
        stamp('K%d' % mod)
        softmax()
        save_state(mod)
        phase('L_v%d' % mod, v_group, sV[mod], sK[1] if mod == 0 else None, 8 - (nend if Wend else boost) if (mod == 1 and (Wend or boost)) else 7)
        stamp('V%d' % mod)
        write_state(mod)
    a('v_lshrrev_b32 v%d, 7, v0' % vT2)
    a('v_lshlrev_b32 v%d, 5, v%d' % (vT3, vT2))
    a('v_lshlrev_b32 v%d, 11, v%d' % (vT2, vT2))
    a('v_and_b32 v%d, 127, v0' % vNeg)
    a('v_lshl_add_u32 v%d, v%d, 2, v%d' % (vT2, vNeg, vT2))
    a('s_lshl_b32 s%d, s%d, 3' % (sT0, sH))
    a('s_add_u32 s%d, s%d, s%d' % (sT0, sT0, sJ))
    a('s_lshl_b32 s%d, s%d, 10' % (sT0, sT0))
    a('s_add_u32 s%d, s%d, 0x%x' % (sCnt, sT0, WS_H2))
    a('s_waitcnt lgkmcnt(0)')
    if ldsync:
        a('s_mov_b64 exec, 1')
        a('ds_add_u32 v%d, v%d offset:%d' % (vCtl, vOne, L_CTL + 8))
        a('s_mov_b64 exec, -1')
        g.label('L_meet')
        a('ds_read_b32 v%d, v%d offset:%d' % (vU, vCtl, L_CTL + 8))
        a('s_waitcnt lgkmcnt(0)')
        a('v_cmp_gt_u32 vcc, 4, v%d' % vU)
        a('s_cbranch_vccnz L_meet')
    else:
        a('s_barrier')
    R = vS
    a('ds_read_b128 v[%d:%d], v%d offset:%d' % (R, R + 3, vT3, L_ML))
    a('ds_read_b128 v[%d:%d], v%d offset:%d' % (R + 4, R + 7, vT3, L_ML + 16))
    for w in range(4):
        a('ds_read_b32 v%d, v%d offset:%d' % (vA[0] + w, vT2, L_ACC + 512 * w))
    a('s_waitcnt lgkmcnt(4)')
    a('v_max3_f32 v%d, v%d, v%d, v%d' % (vT2, R, R + 2, R + 4))
    a('v_max_f32 v%d, v%d, v%d' % (vT2, vT2, R + 6))
    a('v_mul_f32 v%d, s%d, v%d' % (vNeg, sC, vT2))
    for w in range(4):
        a('v_fma_f32 v%d, v%d, s%d, -v%d' % (R + 2 * w, R + 2 * w, sC, vNeg))
    for w in range(4):
        a('v_exp_f32 v%d, v%d' % (R + 2 * w, R + 2 * w))
    a('s_nop 0')
    a('v_mul_f32 v%d, v%d, v%d' % (vT2, R, R + 1))
    for w in range(1, 4):
        a('v_fma_f32 v%d, v%d, v%d, v%d' % (vT2, R + 2 * w, R + 2 * w + 1, vT2))
    a('v_rcp_f32 v%d, v%d' % (vT2, vT2))
    a('s_waitcnt lgkmcnt(0)')
    a('v_mul_f32 v%d, v%d, v%d' % (vT3, R, vA[0]))
    for w in range(1, 4):
        a('v_fma_f32 v%d, v%d, v%d, v%d' % (vT3, R + 2 * w, vA[0] + w, vT3))
    a('v_mul_f32 v%d, v%d, v%d' % (vT3, vT3, vT2))
    a('v_mov_b32 v%d, s%d' % (vA[1] + 1, sTag))
    a('v_lshlrev_b32 v%d, 2, v0' % vNeg)
    a('v_mov_b32_dpp v%d, v%d quad_perm:[1,0,3,2] %s' % (vT2, vT3, DPPF % 15))
    a('v_cvt_pk_bf16_f32 v%d, v%d, v%d' % (vA[1], vT3, vT2))
    a('s_mov_b32 exec_lo, 0x55555555')
    a('s_mov_b32 exec_hi, 0x55555555')
    a('buffer_store_dwordx2 v[%d:%d], v%d, s[%d:%d], s%d offen sc1' % (vA[1], vA[1] + 1, vNeg, sWS, sWS + 3, sCnt))
    a('s_mov_b64 exec, -1')
    stamp('pubo')
    vWO, vOf, vD = vRing, vRing + 64, vRing + 96
    a('v_and_b32 v%d, 7, v%d' % (vT2, vLane))
    a('v_mul_u32_u24 v%d, 272, v%d' % (vT3, vT2))
    a('v_lshl_add_u32 v%d, v%d, 4, v%d' % (vT3, vT1, vT3))
    a('v_bfe_u32 v%d, v%d, 3, 1' % (vNeg, vLane))
    if fuse:
        a('v_lshlrev_b32 v%d, 14, v%d' % (vT2, vT2))
        a('s_lshl_b32 s%d, s%d, 18' % (sT0, sJ))
        a('s_lshl_b32 s%d, s%d, 8' % (sT1, sH))
        a('s_add_u32 s%d, s%d, s%d' % (sT0, sT0, sT1))
        a('s_lshr_b32 s%d, s3, 1' % sT1)
        a('s_lshl_b32 s%d, s%d, 13' % (sT1, sT1))
        a('s_add_u32 s%d, s%d, s%d' % (sT0, sT0, sT1))
        a('s_and_b32 s%d, s3, 1' % sT1)
        a('s_lshl_b32 s%d, s%d, 7' % (sT1, sT1))
        a('s_add_u32 s%d, s%d, s%d' % (sT0, sT0, sT1))
        a('s_add_u32 s%d, s%d, 0x20000' % (sT1, sT0))
    else:
        a('v_lshlrev_b32 v%d, 17, v%d' % (vT2, vT2))
        a('s_lshl_b32 s%d, s%d, 12' % (sT0, sH))
        a('s_lshl_b32 s%d, s%d, 9' % (sT1, sJ))
        a('s_add_u32 s%d, s%d, s%d' % (sT0, sT0, sT1))
        a('s_lshl_b32 s%d, s3, 7' % sT1)
        a('s_add_u32 s%d, s%d, s%d' % (sT0, sT0, sT1))
        a('s_add_u32 s%d, s%d, 0x100000' % (sT1, sT0))
    a('v_lshl_add_u32 v%d, v%d, 6, v%d' % (vT2, vNeg, vT2))
    a('v_lshl_add_u32 v%d, v%d, 4, v%d' % (vT2, vT1, vT2))
    a('v_mov_b32 v%d, 0xff' % vTmp)
    a('v_mov_b32 v%d, s%d' % (vNeg, sTag))
    if pre_tr:
        a('s_barrier')
        for mod in range(2):
            tr_reads(vWO + 32 * mod, mod)
    a('s_barrier')
    stamp('B4')
    for mod in range(2):
        for kb in range(4):
            r = vOf + 16 * mod + 4 * kb
            a('ds_read_b128 v[%d:%d], v%d offset:%d' % (r, r + 3, vT3, L_O + mod * 8 * 272 + kb * 64))
        if not pre_tr:
            tr_reads(vWO + 32 * mod, mod)
    for mod in range(2):
        a('s_waitcnt lgkmcnt(%d)' % ((4 if pre_tr else 15) if mod == 0 else 0))
        proj_mfma(vD + 8 * mod, vWO + 32 * mod, vOf + 16 * mod)
    for mod in range(2):
        a('s_nop %d' % (0 if mod == 0 or fuse else 3))
        select_tag(vD + 8 * mod, vD + 8 * mod, fuse)
        a('buffer_store_dwordx4 v[%d:%d], v%d, s[%d:%d], s%d offen %s' % (vD + 8 * mod, vD + 8 * mod + 3, vT2, sWS, sWS + 3, (sT0, sT1)[mod], 'sc1' if fuse else ''))
    if stamps:
        a('s_waitcnt vmcnt(0)')
        stamp('end')
        write_stamps(nst[0])
    nst_stream = nst[0]
    a('s_endpgm')

    g.label('L_comm')
    nst[0] = 0
    names.append('|')
    vG = 16
    vBad = 80
    a('s_setprio 3')
    srd(sWO[0], 12, 1 << 23)
    srd(sWO[1], 22, 1 << 23)
    if fuse:
        srd(sOut, 24, 32768)
    a('s_mov_b32 s%d, s%d' % (sBase, sH1))
    a('v_add_u32 v%d, 4096, v%d' % (vHi, vNat))
    a('s_lshl_b32 s%d, s%d, 16' % (sT0, sH))
    a('s_add_u32 s%d, s%d, 0x%x' % (sT0, sT0, WS_H1))
    a('s_lshl_b32 s%d, s%d, 13' % (sT1, sJ))
    a('s_add_u32 s%d, s%d, s%d' % (sOff, sT0, sT1))
    a('s_lshl_b32 s%d, s%d, 10' % (sT1, sJ))
    a('s_add_u32 s%d, s%d, s%d' % (sH1, sT0, sT1))
    a('v_lshlrev_b32 v%d, 3, v%d' % (vT3, vLane))
    npoll = [0]

    def poll(name, base, bytetag, slp):
        a('s_mov_b32 s%d, 0x%x' % (sCnt, tmo))
        g.label(name)
        for p in range(8):
            a('buffer_load_dwordx4 v[%d:%d], v%d, s[%d:%d], s%d offen offset:%d sc1' % (base + 4 * p, base + 4 * p + 3, vHi if p & 4 else vNat, sWS, sWS + 3, sOff, 1024 * (p & 3)))
        a('v_mov_b32 v%d, 0' % vBad)
        for p in range(8):
            a('s_waitcnt vmcnt(%d)' % (7 - p))
            es = (0, 1, 2, 3) if bytetag else (1, 3)
            for e in es:
                a('v_xor_b32 v%d, s%d, v%d' % (base + 4 * p + e, sT8 if bytetag else sTag, base + 4 * p + e))
            for i in range(0, len(es), 2):
                a('v_or3_b32 v%d, v%d, v%d, v%d' % (vBad, vBad, base + 4 * p + es[i], base + 4 * p + es[i + 1]))
        if bytetag:
            a('v_and_b32 v%d, 0xff, v%d' % (vBad, vBad))
        a('v_cmp_ne_u32 vcc, 0, v%d' % vBad)
        a('s_cbranch_vccz %s_ok' % name)
        a('s_sleep %d' % slp)
        a('s_sub_u32 s%d, s%d, 1' % (sCnt, sCnt))
        a('s_cmp_lg_u32 s%d, 0' % sCnt)
        a('s_cbranch_scc1 %s' % name)
        g.label(name + '_ok')
        if stamps:
            a('s_sub_u32 s%d, 0x%x, s%d' % (20 + 2 * npoll[0], tmo, sCnt))
            npoll[0] += 1

    def sum8(b):
        for e in range(4):
            for p in range(0, 8, 2):
                a('v_add_f32 v%d, v%d, v%d' % (b + 4 * p + e, b + 4 * p + e, b + 4 * p + 4 + e))
            a('v_add_f32 v%d, v%d, v%d' % (b + e, b + e, b + 8 + e))
            a('v_add_f32 v%d, v%d, v%d' % (b + 16 + e, b + 16 + e, b + 24 + e))
            a('v_add_f32 v%d, v%d, v%d' % (b + e, b + e, b + 16 + e))

    if ctl:
        a('s_lshr_b32 s%d, s2, %d' % (sDbg, csz.bit_length() - 1))
        a('s_mul_i32 s%d, s%d, 4352' % (sDbg, sDbg))
        a('s_add_u32 s%d, s%d, 0x%x' % (sDbg, sDbg, WS_CTL))
        a('s_load_dword s%d, s[28:29], s%d' % (sDbg + 1, sDbg))
        a('v_mov_b32 v%d, 0' % vCtl)
        a('v_mov_b32 v%d, 0' % vG)
        a('v_mov_b32 v%d, %d' % (vG + 1, ubias))
        a('ds_write_b64 v%d, v[%d:%d] offset:%d' % (vCtl, vG, vG + 1, L_CTL))
    if ldsync:
        a('v_mov_b32 v%d, 0' % vCtl)
        for r in range(4):
            a('v_mov_b32 v%d, 0' % (vG + r))
        a('ds_write_b128 v%d, v[%d:%d] offset:%d' % (vCtl, vG, vG + 3, L_CTL))
    a('s_barrier')
    make_tag()
    a('s_and_b32 s%d, s%d, 0xff' % (sT8, sTag))
    a('s_barrier')
    for p in range(8):
        a('ds_read_b128 v[%d:%d], v%d offset:%d' % (vG + 4 * p, vG + 4 * p + 3, vNat, L_STG + 1040 * p))
    for p in range(8):
        a('s_waitcnt lgkmcnt(%d)' % (7 - p))
        a('buffer_store_dwordx4 v[%d:%d], v%d, s[%d:%d], s%d offen sc1' % (vG + 4 * p, vG + 4 * p + 3, vNat, sWS, sWS + 3, sH1))
        a('s_add_u32 s%d, s%d, 8192' % (sH1, sH1))
    a('s_waitcnt vmcnt(0)')
    stamp('st')
    poll('L_pq', vG, True, sleep)
    sum8(vG)
    a('v_cvt_pk_bf16_f32 v%d, v%d, v%d' % (vG, vG, vG + 1))
    a('v_cvt_pk_bf16_f32 v%d, v%d, v%d' % (vG + 1, vG + 2, vG + 3))
    a('ds_write_b64 v%d, v[%d:%d] offset:%d' % (vT3, vG, vG + 1, L_Q))
    a('s_waitcnt lgkmcnt(0)')
    stamp('q')
    a('s_barrier')
    weight_voffsets(11)
    a('s_lshl_b32 s%d, s%d, 18' % (sT0, sH))
    a('s_lshl_b32 s%d, s%d, 8' % (sT1, sJ))
    a('s_add_u32 s%d, s%d, s%d' % (sWOff, sT0, sT1))
    a('s_lshl_b32 s%d, s%d, 13' % (sT0, sH))
    a('s_add_u32 s%d, s%d, 0x%x' % (sOff, sT0, WS_H2))
    a('v_lshrrev_b32 v%d, 5, v%d' % (vT2, vLane))
    a('v_mul_u32_u24 v%d, %d, v%d' % (vT2, 8 * 272, vT2))
    a('v_and_b32 v%d, 31, v%d' % (vT3, vLane))
    a('v_lshl_add_u32 v%d, v%d, 3, v%d' % (vT2, vT3, vT2))
    a('v_add_u32 v%d, %d, v%d' % (vT2, L_O, vT2))
    a('v_add_u32 v%d, %d, v%d' % (vT3, 4 * 272, vT2))
    a('s_mov_b32 s%d, %d' % (sLdsW, L_W))
    if ctl:
        f0 = first if first is not None else period
        last = (31 - (nend if Wend else 1) - f0) // period + 1
        a('s_mov_b64 exec, 1')
        a('s_mov_b32 s%d, %d' % (sT0, 4 * f0 - 1))
        a('s_mov_b32 s%d, 0' % sT1)
        a('s_mov_b32 s%d, %d' % (sL, last))
        g.label('L_ctl')
        a('s_sleep %d' % csleep)
        a('ds_read_b32 v%d, v%d offset:%d' % (vG, vCtl, L_CTL))
        a('s_waitcnt lgkmcnt(0)')
        a('v_readfirstlane_b32 s%d, v%d' % (sMt, vG))
        a('s_mov_b32 s%d, 1' % sU)
        a('s_nop 2')
        a('s_cmp_lt_u32 s%d, s%d' % (sMt, sT0))
        a('s_cbranch_scc1 L_ctl')
        a('s_atomic_add s%d, s[%d:%d], s%d glc' % (sU, sWS, sWS + 1, sDbg))
        a('s_add_u32 s%d, s%d, %d' % (sT0, sT0, 4 * period))
        a('s_waitcnt lgkmcnt(0)')
        a('s_sub_u32 s%d, s%d, s%d' % (sU, sU, sDbg + 1))
        a('s_add_u32 s%d, s%d, %d' % (sDbg + 1, sDbg + 1, csz))
        a('s_lshl_b32 s%d, s%d, 1' % (sU, sU))
        a('s_sub_i32 s%d, s%d, %d' % (sU, sU, csz - 1))
        a('s_max_i32 s%d, s%d, %d' % (sU, sU, -2 * csz))
        a('s_min_i32 s%d, s%d, %d' % (sU, sU, 2 * csz))
        a('s_mul_i32 s%d, s%d, %d' % (sU, sU, round(umax * 256 / (csz - 1))))
        if keep:
            a('s_add_i32 s%d, s%d, s%d' % (sU, sU, sT1))
            a('s_mul_i32 s%d, s%d, %d' % (sT1, sU, keep))
            a('s_ashr_i32 s%d, s%d, 4' % (sT1, sT1))
        a('s_add_i32 s%d, s%d, %d' % (sU, sU, 128 + 256 * ubias))
        a('s_ashr_i32 s%d, s%d, 8' % (sU, sU))
        a('v_mov_b32 v%d, s%d' % (vG, sU))
        a('ds_write_b32 v%d, v%d offset:%d' % (vCtl, vG, L_CTL + 4))
        a('s_sub_u32 s%d, s%d, 1' % (sL, sL))
        a('s_cmp_lg_u32 s%d, 0' % sL)
        a('s_cbranch_scc1 L_ctl')
        a('s_mov_b64 exec, -1')
    if boost:
        a('v_lshlrev_b32 v%d, 12, v%d' % (vBad, vLane))
        a('s_mov_b32 s%d, 0x%x' % (sT0, WS_H2))
        a('s_mov_b32 s%d, 0' % sU)
        g.label('L_w0')
        a('s_sleep 32')
        a('ds_read_b32 v%d, v%d offset:%d' % (vG, vCtl, L_CTL))
        a('s_waitcnt lgkmcnt(0)')
        a('v_cmp_eq_u32 vcc, 0, v%d' % vG)
        a('s_cbranch_vccnz L_w0')
        g.label('L_mon')
        a('buffer_load_dword v%d, v%d, s[%d:%d], s%d offen offset:4 sc1' % (vG + 1, vBad, sWS, sWS + 3, sT0))
        a('s_waitcnt vmcnt(0)')
        a('v_cmp_eq_u32 vcc, s%d, v%d' % (sTag, vG + 1))
        a('ds_read_b32 v%d, v%d offset:%d' % (vG, vCtl, L_CTL + 12))
        a('s_bcnt1_i32_b64 s%d, vcc' % sMt)
        a('s_cmp_ge_u32 s%d, %d' % (sMt, thr))
        a('s_cbranch_scc1 L_open')
        a('s_waitcnt lgkmcnt(0)')
        a('v_cmp_le_u32 vcc, 2, v%d' % vG)
        a('s_cbranch_vccnz L_over')
        a('s_sleep %d' % msleep)
        a('s_branch L_mon')
        g.label('L_open')
        a('s_mov_b32 s%d, 1' % sU)
        a('v_mov_b32 v%d, 1' % (vG + 1))
        a('ds_write_b32 v%d, v%d offset:%d' % (vCtl, vG + 1, L_CTL + 4))
        g.label('L_w1')
        a('ds_read_b32 v%d, v%d offset:%d' % (vG, vCtl, L_CTL + 12))
        a('s_waitcnt lgkmcnt(0)')
        a('v_cmp_le_u32 vcc, 2, v%d' % vG)
        a('s_cbranch_vccnz L_over')
        a('s_sleep 2')
        a('s_branch L_w1')
        g.label('L_over')
        if stamps:
            a('s_mov_b32 s18, s%d' % sU)
        a('s_cmp_lg_u32 s%d, 0' % sU)
        a('s_cselect_b64 vcc, -1, 0')
    else:
        a('s_barrier')
    for mod in range(2):
        a('s_mov_b32 s%d, s%d' % (sT0, sWOff))
        a('s_mov_b32 s%d, 8' % sCnt)
        g.label('L_wo%d' % mod)
        for i in range(4):
            if wowin:
                if boost:
                    a('s_cbranch_vccnz L_wo%d_%d' % (mod, i))
                a('s_waitcnt vmcnt(%d)' % (wowin - 1))
                g.label('L_wo%d_%d' % (mod, i))
            a('s_mov_b32 m0, s%d' % sLdsW)
            a('s_add_u32 s%d, s%d, 1024' % (sLdsW, sLdsW))
            a('buffer_load_dwordx4 v%d, s[%d:%d], s%d offen %s lds' % (vW1 if i & 2 else vW, sWO[mod], sWO[mod] + 3, sT0, wpol))
            a('s_add_u32 s%d, s%d, 8192' % (sT0, sT0))
        a('s_sub_u32 s%d, s%d, 1' % (sCnt, sCnt))
        a('s_cmp_lg_u32 s%d, 0' % sCnt)
        a('s_cbranch_scc1 L_wo%d' % mod)
        if mod == 0 and not ldsync:
            a('s_barrier')
    if pre_tr:
        a('s_waitcnt vmcnt(0)')
        a('s_barrier')
    stamp('wo')
    poll('L_po', vG, False, sleep)
    for p in range(8):
        a('ds_write2_b32 v%d, v%d, v%d offset0:%d offset1:%d' % (vT2 if p < 4 else vT3, vG + 4 * p, vG + 4 * p + 2, 68 * (p & 3), 68 * (p & 3) + 1))
    a('s_waitcnt lgkmcnt(0)')
    stamp('o')
    a('s_barrier')
    if fuse:
        a('s_lshl_b32 s%d, s%d, 5' % (sT0, sJ))
        a('s_add_u32 s%d, s%d, s%d' % (sT0, sT0, sH))
        a('s_lshl_b32 s%d, s%d, 13' % (sOff, sT0))
        a('s_bfe_u32 s%d, s%d, 0x30001' % (sT0, sH))
        a('s_lshl_b32 s%d, s%d, 12' % (sT0, sT0))
        a('s_lshr_b32 s%d, s%d, 4' % (sT1, sH))
        a('s_lshl_b32 s%d, s%d, 11' % (sT1, sT1))
        a('s_add_u32 s%d, s%d, s%d' % (sT0, sT0, sT1))
        a('s_lshl_b32 s%d, s%d, 8' % (sT1, sJ))
        a('s_add_u32 s%d, s%d, s%d' % (sT0, sT0, sT1))
        a('s_and_b32 s%d, s%d, 1' % (sT1, sH))
        a('s_lshl_b32 s%d, s%d, 7' % (sT1, sT1))
        a('s_add_u32 s%d, s%d, s%d' % (sWOff, sT0, sT1))
        a('v_lshlrev_b32 v%d, 3, v%d' % (vT2, vT0))
        poll('L_pp', vG, True, sleep3)
        sum8(vG)
        for swap in ('v_permlane32_swap_b32', 'v_permlane16_swap_b32'):
            for r in range(4):
                a('v_mov_b32 v%d, v%d' % (vG + 4 + r, vG + r))
            a('s_nop 1')
            for r in range(4):
                a('%s v%d, v%d' % (swap, vG + r, vG + 4 + r))
            a('s_nop 1')
            for r in range(4):
                a('v_add_f32 v%d, v%d, v%d' % (vG + r, vG + r, vG + 4 + r))
        a('v_cvt_pk_bf16_f32 v%d, v%d, v%d' % (vG, vG, vG + 1))
        a('v_cvt_pk_bf16_f32 v%d, v%d, v%d' % (vG + 1, vG + 2, vG + 3))
        a('s_mov_b32 exec_lo, 0xffff')
        a('s_mov_b32 exec_hi, 0')
        a('buffer_store_dwordx2 v[%d:%d], v%d, s[%d:%d], s%d offen' % (vG, vG + 1, vT2, sOut, sOut + 3, sWOff))
    a('s_cmp_lg_u32 %s, 0' % ('s2' if fuse else 's%d' % sJ))
    a('s_cbranch_scc1 L_comm_end')
    a('v_mov_b32 v%d, s%d' % (vT2, sTag))
    a('v_mov_b32 v%d, 0' % vT3)
    a('s_mov_b64 exec, 1')
    a('buffer_store_dword v%d, v%d, s[%d:%d], s%d offen' % (vT2, vT3, sWS, sWS + 3, sBase))
    g.label('L_comm_end')
    if stamps:
        a('s_waitcnt vmcnt(0)')
        stamp('fin')
        write_stamps(11)
    g.label('L_exit')
    a('s_endpgm')

    kd = '''.section .rodata,"a"
.p2align 6
.amdhsa_kernel %s
  .amdhsa_next_free_vgpr %d
  .amdhsa_next_free_sgpr %d
  .amdhsa_accum_offset %d
  .amdhsa_group_segment_fixed_size 0
  .amdhsa_kernarg_size 104
  .amdhsa_user_sgpr_count 2
  .amdhsa_user_sgpr_kernarg_segment_ptr 1
  .amdhsa_system_sgpr_workgroup_id_x 1
.end_amdhsa_kernel
'''
    tail = kd % (K1, 256, 100, 256)
    if fuse:
        head = HEADER + '; @launch grid=(256,1,1) block=(320,1,1) lds=%d\n' % L_END
    else:
        head = HEADER + '; @launch kernel=%s grid=(256,1,1) block=(320,1,1) lds=%d\n; @launch kernel=%s grid=(256,1,1) block=(64,1,1) lds=0\n' % (K1, L_END, K2)
        tail += kd % (K2, 40, 24, 40)
        g.L += ['.globl %s' % K2, '.p2align 8', '.type %s,@function' % K2]
        g.label(K2)
        for s in '''s_cmp_ge_u32 s2, 256
s_cbranch_scc1 L_exit2
s_load_dwordx2 s[8:9], s[0:1], 96
s_load_dwordx2 s[12:13], s[0:1], 80
s_lshr_b32 s3, s2, 4
s_and_b32 s4, s2, 15
v_lshrrev_b32 v1, 4, v0
v_and_b32 v2, 15, v0
v_lshlrev_b32 v3, 15, v1
v_lshl_add_u32 v3, v2, 4, v3
s_lshl_b32 s5, s3, 17
s_lshl_b32 s6, s4, 8
s_add_u32 s5, s5, s6
s_mov_b32 s10, 0x200000
s_mov_b32 s11, 0x20000
s_mov_b32 s14, 32768
s_mov_b32 s15, 0x20000
s_waitcnt lgkmcnt(0)'''.split('\n'):
            a(s)
        for k in range(8):
            a('buffer_load_dwordx4 v[%d:%d], v3, s[8:11], s5 offen' % (8 + 4 * k, 11 + 4 * k))
            if k < 7:
                a('s_add_u32 s5, s5, 4096')
        for s in '''s_and_b32 s6, s3, 7
s_lshl_b32 s6, s6, 12
s_lshr_b32 s7, s3, 3
s_lshl_b32 s7, s7, 11
s_add_u32 s6, s6, s7
s_lshl_b32 s7, s4, 7
s_add_u32 s6, s6, s7
v_lshl_add_u32 v4, v2, 3, s6'''.split('\n'):
            a(s)
        for k in range(1, 8):
            a('s_waitcnt vmcnt(%d)' % (7 - k))
            for r in range(4):
                a('v_add_f32 v%d, v%d, v%d' % (8 + r, 8 + r, 8 + 4 * k + r))
        for swap in ('v_permlane32_swap_b32', 'v_permlane16_swap_b32'):
            for r in range(4):
                a('v_mov_b32 v%d, v%d' % (12 + r, 8 + r))
            a('s_nop 1')
            for r in range(4):
                a('%s v%d, v%d' % (swap, 8 + r, 12 + r))
            a('s_nop 1')
            for r in range(4):
                a('v_add_f32 v%d, v%d, v%d' % (8 + r, 8 + r, 12 + r))
        a('v_cvt_pk_bf16_f32 v8, v8, v9')
        a('v_cvt_pk_bf16_f32 v9, v10, v11')
        a('s_mov_b32 exec_lo, 0xffff')
        a('s_mov_b32 exec_hi, 0')
        a('buffer_store_dwordx2 v[8:9], v4, s[12:15], 0 offen')
        g.label('L_exit2')
        a('s_endpgm')
    if stamps:
        head += '; nst3=%d names: start %s\n' % (nst_stream + 1, ' '.join(names))
    return head + '\n'.join(g.L) + '\n' + tail


if __name__ == '__main__':
    import json
    kw = json.loads(sys.argv[2]) if len(sys.argv) > 2 else {}
    src = gen(**kw)
    open(sys.argv[1], 'w').write(src)
```

```python
import sys, math, struct

NAME = 'concat_heads__mha_block_cached__mha_block_cached__decode'
HEADER = open('cdna_kernels/' + NAME + '.s.ref').read().split('; Override launch')[0]


def f32bits(x):
    return struct.unpack('<I', struct.pack('<f', x))[0]


CSCALE = (128 ** -0.5) * math.log2(math.e)
WS_H3 = 0
WS_H1 = 2 << 20
WS_H2 = 4 << 20
WS_EPOCH = 5 << 20
WS_CTL = (5 << 20) + 65536
WS_END = 6 << 20
WS_STAMP = 8 << 20
L_Q = 0
L_ACC = 512
L_ML = 4608
L_O = 4672
L_CTL = 9152
L_STG = 9216
L_W = 17664
L_END = L_W + 65536


class Asm:
    def __init__(self):
        self.L = []
        self.q = []

    def a(self, s):
        self.L.append('    ' + s)

    def label(self, s):
        self.L.append(s + ':')

    def vm(self, tag, s):
        self.a(s)
        self.q.append(tag)
        assert len(self.q) <= 63, 'too many outstanding: %d' % len(self.q)

    def wait_tag(self, tag):
        idx = [i for i, t in enumerate(self.q) if t == tag]
        if not idx:
            return
        n = len(self.q) - 1 - idx[-1]
        self.a('s_waitcnt vmcnt(%d)' % n)
        self.q = self.q[idx[-1] + 1:]

    def limit(self, n):
        if len(self.q) > n:
            self.a('s_waitcnt vmcnt(%d)' % n)
            self.q = self.q[len(self.q) - n:] if n else []


def gen(kvpol='nt', wpol='nt', early=8, win=12, W=5, Wx=0, D=8, stamps=False, sleep=2, sleep3=8, tmo=0x400000,
        fuse=True, wowin=0, Wend=0, nend=1, end0=0,
        ctl=False, period=2, umax=8, ubias=0, csz=8, csleep=4, uflex=16, first=None, keep=0, T=8, b2at=None, ldsync=False, par=None,
        boost=0, Wb=9, thr=16, msleep=16, pre_tr=False,
        watch=False, sa=10, sb=18, umin=-8, f0=16, spoll=True, nopost=False, pm1=False, pm3=True, fill=0, denorm=True, x0=0, local=False, lpar=0, lpol='sc1', ltrig=0):
    g = Asm()
    a = g.a
    wpat = [W + (1 if (i + 1) * Wx // 32 > i * Wx // 32 else 0) for i in range(32)]
    if watch:
        ctl = True
    if boost:
        assert ldsync and not ctl and not Wend and Wb < D
    if par:
        uflex = max(abs(par[0]), abs(par[1]))
    assert max(wpat) + (1 if ctl or par else 0) < D <= 32
    sX, sWQ, sK, sV, sWO = (32, 36), (40, 44), (48, 56), (52, 60), (64, 68)
    sWS, sOut = 72, 32
    sTag, sH, sJ, sOff, sCnt, sT0, sT1, sC = 76, 77, 78, 79, 80, 81, 82, 83
    sB1, sB0, sN8 = 86, 88, 90
    sMt, sBase, sL, sLdsW, sWOff, sH1, sT8, sU = 92, 93, 94, 95, 96, 97, 84, 85
    sDbg = 36
    vCtl, vOne, vU = 111, 120, 121
    vLane, vT0, vT1, vT2, vT3 = 1, 2, 3, 4, 5
    vHi, vNat = 6, 7
    vMask = 8
    vAcc = 12
    vA = (16, 20)
    vS, vPa, vCc = 24, 28, 32
    vNeg, vTmp, vTr, vW = 36, 37, 38, 39
    vZ = 40
    vQn = 72
    vXf = (76, 92)
    vTr1, vW1, vH1 = 108, 109, 110
    vWf = (40, 224)
    vQD = (24, 112)
    vRing = 128
    DPPF = 'row_mask:0xf bank_mask:0x%x'
    nst = [0]
    names = []

    def stamp(name):
        if stamps:
            names.append(name)
            a('s_memrealtime s[%d:%d]' % (4 + 2 * nst[0], 5 + 2 * nst[0]))
            nst[0] += 1
            assert nst[0] <= 13

    def write_stamps(n):
        a('s_waitcnt vmcnt(0) lgkmcnt(0)')
        a('s_mov_b64 exec, -1')
        a('s_getreg_b32 s99, hwreg(HW_REG_XCC_ID)')
        a('v_mov_b32 v%d, s99' % vT2)
        a('v_writelane_b32 v%d, s98, 0' % vT2)
        for i in range(n):
            a('v_writelane_b32 v%d, s%d, %d' % (vT2, 4 + 2 * i, i + 1))
        a('s_mul_i32 s%d, s2, 5' % sT0)
        a('s_add_u32 s%d, s%d, s3' % (sT0, sT0))
        a('s_lshl_b32 s%d, s%d, 8' % (sT0, sT0))
        a('s_add_u32 s%d, s%d, 0x%x' % (sT0, sT0, WS_STAMP))
        a('v_lshl_add_u32 v%d, v%d, 2, s%d' % (vT3, vLane, sT0))
        a('buffer_store_dword v%d, v%d, s[%d:%d], 0 offen' % (vT2, vT3, sWS, sWS + 3))

    def srd(d, p, size):
        a('s_mov_b32 s%d, s%d' % (d, p))
        a('s_mov_b32 s%d, s%d' % (d + 1, p + 1))
        a('s_mov_b32 s%d, 0x%x' % (d + 2, size))
        a('s_mov_b32 s%d, 0x20000' % (d + 3))

    def make_tag():
        a('s_waitcnt lgkmcnt(0)')
        a('s_mul_i32 s%d, s%d, 0x19660d' % (sTag, sTag))
        a('s_add_u32 s%d, s%d, 0x3c6ef35f' % (sTag, sTag))

    def weight_voffsets(shift):
        a('v_lshlrev_b32 v%d, 1, v%d' % (vW, vT1))
        a('v_xor_b32 v%d, v%d, v%d' % (vW, vW, vT0))
        a('v_lshlrev_b32 v%d, 4, v%d' % (vW, vW))
        a('v_lshl_add_u32 v%d, v%d, %d, v%d' % (vW, vT1, shift, vW))
        a('v_xor_b32 v%d, 128, v%d' % (vW1, vW))

    K1, K2 = (NAME + '_kernel', None) if fuse else ('attn_kernel', 'reduce_kernel')
    g.L += ['.amdgcn_target "amdgcn-amd-amdhsa--gfx950"', '.text', '.globl %s' % K1, '.p2align 8', '.type %s,@function' % K1]
    g.label(K1)
    a('s_cmp_ge_u32 s2, 256')
    a('s_cbranch_scc1 L_exit')
    if stamps:
        a('s_memrealtime s[98:99]')
    a('s_load_dwordx16 s[4:19], s[0:1], 0')
    a('s_load_dwordx8 s[20:27], s[0:1], 64')
    a('s_load_dwordx2 s[28:29], s[0:1], 96')
    a('v_lshrrev_b32 v%d, 6, v0' % vT0)
    a('v_and_b32 v%d, 63, v0' % vLane)
    a('v_readfirstlane_b32 s3, v%d' % vT0)
    a('s_lshr_b32 s%d, s2, 6' % sH)
    a('s_lshl_b32 s%d, s%d, 3' % (sH, sH))
    a('s_and_b32 s%d, s2, 7' % sT0)
    a('s_add_u32 s%d, s%d, s%d' % (sH, sH, sT0))
    a('s_bfe_u32 s%d, s2, 0x30003' % sJ)
    if fuse:
        a('s_mov_b32 s%d, 0x%x' % (sH1, WS_EPOCH))
    else:
        a('s_lshl_b32 s%d, s%d, 8' % (sH1, sH))
        a('s_add_u32 s%d, s%d, 0x%x' % (sH1, sH1, WS_EPOCH))
    a('v_and_b32 v%d, 15, v%d' % (vT0, vLane))
    a('v_lshrrev_b32 v%d, 4, v%d' % (vT1, vLane))
    a('v_lshlrev_b32 v%d, 4, v%d' % (vNat, vLane))
    a('s_cmp_eq_u32 s3, 4')
    a('s_waitcnt lgkmcnt(0)')
    a('s_load_dword s%d, s[28:29], s%d' % (sTag, sH1))
    srd(sWS, 28, (WS_STAMP + (1 << 20)) if stamps else WS_END)
    a('s_cbranch_scc1 L_comm')

    srd(sWQ[0], 10, 1 << 23)
    srd(sX[0], 4, 16384)
    weight_voffsets(13)
    a('s_lshl_b32 s%d, s%d, 20' % (sT0, sJ))
    a('s_lshl_b32 s%d, s%d, 8' % (sT1, sH))
    a('s_add_u32 s%d, s%d, s%d' % (sT0, sT0, sT1))
    a('s_lshl_b32 s%d, s3, 18' % sT1)
    a('s_add_u32 s%d, s%d, s%d' % (sWOff, sT0, sT1))
    a('s_lshl_b32 s%d, s3, 13' % sLdsW)
    vXa = vAcc
    a('v_and_b32 v%d, 7, v%d' % (vXa, vLane))
    a('v_lshlrev_b32 v%d, 11, v%d' % (vXa, vXa))
    a('v_lshl_add_u32 v%d, v%d, 4, v%d' % (vXa, vT1, vXa))
    a('s_lshl_b32 s%d, s%d, 8' % (sT1, sJ))
    srd(sX[1], 14, 16384)
    for mod in range(2):
        for kb in range(4):
            r = vXf[mod] + 4 * kb
            g.vm('w', 'buffer_load_dwordx4 v[%d:%d], v%d, s[%d:%d], s%d offen offset:%d' % (r, r + 3, vXa, sX[mod], sX[mod] + 3, sT1, 64 * kb))
    for mod in range(2):
        if mod:
            srd(sWQ[1], 20, 1 << 23)
        for i in range(8):
            a('s_add_u32 m0, s%d, %d' % (sLdsW, L_W + mod * 32768 + i * 1024))
            a('s_add_u32 s%d, s%d, %d' % (sT0, sWOff, i * 4 * 8192))
            g.vm('w', 'buffer_load_dwordx4 v%d, s[%d:%d], s%d offen %s lds' % (vW1 if i & 2 else vW, sWQ[mod], sWQ[mod] + 3, sT0, wpol))
    srd(sK[0], 6, 1 << 28)
    a('s_lshl_b32 s%d, s%d, 5' % (sBase, sJ))
    a('s_add_u32 s%d, s%d, s%d' % (sBase, sBase, sH))
    a('s_lshl_b32 s%d, s%d, 20' % (sBase, sBase))
    a('s_mul_i32 s%d, s3, %d' % (sT0, T * 1024))
    a('s_add_u32 s%d, s%d, s%d' % (sBase, sBase, sT0))
    a('s_mov_b32 s%d, s%d' % (sOff, sBase))

    def ring_load(srd_, j):
        r = vRing + 4 * (j & 31)
        g.vm('R%d' % (j & 31), 'buffer_load_dwordx4 v[%d:%d], v%d, s[%d:%d], s%d offen offset:%d %s' % (r, r + 3, vNat, srd_, srd_ + 3, sOff, 1024 * (j & 3), kvpol))
        if j & 3 == 3:
            a('s_add_u32 s%d, s%d, %d' % (sOff, sOff, 4096 if (j + 1) % T else 3 * T * 1024 + 4096))

    assert early <= 24
    for j in range(early):
        ring_load(sK[0], j)
    srd(sV[0], 8, 1 << 28)
    srd(sK[1], 16, 1 << 28)
    srd(sV[1], 18, 1 << 28)
    a('v_lshrrev_b32 v%d, 2, v%d' % (vTmp, vT0))
    a('v_and_b32 v%d, 1, v%d' % (vTr, vT1))
    a('v_lshl_add_u32 v%d, v%d, 2, v%d' % (vTr, vTr, vTmp))
    a('s_lshl_b32 s%d, s3, 1' % sT0)
    a('v_xor_b32 v%d, s%d, v%d' % (vTr, sT0, vTr))
    a('v_lshlrev_b32 v%d, 5, v%d' % (vTr, vTr))
    a('v_lshl_add_u32 v%d, v%d, 11, v%d' % (vTr, vT1, vTr))
    a('v_lshl_add_u32 v%d, v%d, 8, v%d' % (vTr, vTmp, vTr))
    a('v_and_b32 v%d, 3, v%d' % (vT3, vLane))
    a('v_lshl_add_u32 v%d, v%d, 3, v%d' % (vTr, vT3, vTr))
    a('v_xor_b32 v%d, 32, v%d' % (vTr1, vTr))
    a('v_add_u32 v%d, %d, v%d' % (vTr, L_W, vTr))
    a('v_add_u32 v%d, %d, v%d' % (vTr1, L_W, vTr1))
    a('s_mov_b32 s%d, 0x%08x' % (sC, f32bits(CSCALE)))
    for reg, val in ((sB1, 0xcccccccc), (sB0, 0xaaaaaaaa), (sN8, 0xff00ff00)):
        a('s_mov_b32 s%d, 0x%08x' % (reg, val))
        a('s_mov_b32 s%d, 0x%08x' % (reg + 1, val))
    a('v_mov_b32 v%d, 0xffff' % vNeg)
    a('v_mov_b32 v%d, 0xffff0000' % vTmp)
    a('v_cndmask_b32 v%d, v%d, v%d, s[%d:%d]' % (vNeg, vNeg, vTmp, sB0, sB0 + 1))
    a('v_bfe_u32 v%d, v%d, 1, 2' % (vTmp, vLane))
    for rr in range(4):
        a('v_cmp_eq_u32 vcc, %d, v%d' % (rr, vTmp))
        a('s_nop 1')
        a('v_cndmask_b32 v%d, 0, v%d, vcc' % (vMask + rr, vNeg))
    a('v_and_b32 v%d, 7, v%d' % (vTmp, vLane))
    a('v_mul_u32_u24 v%d, 1040, v%d' % (vH1, vTmp))
    a('v_bfe_u32 v%d, v%d, 3, 1' % (vTmp, vLane))
    a('v_lshl_add_u32 v%d, v%d, 6, v%d' % (vH1, vTmp, vH1))
    a('v_lshl_add_u32 v%d, v%d, 4, v%d' % (vH1, vT1, vH1))
    a('s_lshl_b32 s%d, s3, 7' % sT0)
    a('v_add_u32 v%d, s%d, v%d' % (vH1, sT0, vH1))

    def tr_reads(dst, mod):
        for cb in range(2):
            for kb in range(4):
                for hh in range(2):
                    r = dst + (cb * 4 + kb) * 4 + 2 * hh
                    a('ds_read_b64_tr_b16 v[%d:%d], v%d offset:%d' % (r, r + 1, vTr1 if cb else vTr, mod * 32768 + kb * 8192 + hh * 1024))

    def proj_mfma(d, wf, xf):
        for kb in range(4):
            for cb in range(2):
                w = wf + (cb * 4 + kb) * 4
                dd = d + 4 * cb
                a('v_mfma_f32_16x16x32_bf16 v[%d:%d], v[%d:%d], v[%d:%d], %s' % (dd, dd + 3, w, w + 3, xf + 4 * kb, xf + 4 * kb + 3, '0' if kb == 0 else 'v[%d:%d]' % (dd, dd + 3)))

    def select_tag(dst, d, tagged):
        for r in range(4):
            a('v_cndmask_b32 v%d, v%d, v%d, s[%d:%d]' % (dst + r, d + r, d + 4 + r, sN8, sN8 + 1))
        if tagged:
            for r in range(4):
                a('v_bfi_b32 v%d, v%d, v%d, v%d' % (dst + r, vTmp, vNeg, dst + r))

    a('v_mov_b32 v%d, 0xff' % vTmp)
    if ctl or ldsync:
        a('v_mov_b32 v%d, 0' % vCtl)
        a('v_mov_b32 v%d, 1' % vOne)
        a('s_mov_b32 s%d, %d' % (sU, ubias))
    if par:
        a('s_getreg_b32 s%d, hwreg(HW_REG_XCC_ID)' % sU)
        a('s_bitcmp1_b32 s%d, 0' % sU)
        a('s_cselect_b32 s%d, %d, %d' % (sU, par[1], par[0]))
    if x0:
        assert early % 4 == 0 and x0 <= 4 and early + x0 <= 24
        a('s_cmp_lg_u32 s3, 0')
        a('s_cbranch_scc1 L_x0a')
        q0 = list(g.q)
        for j in range(early, early + x0):
            ring_load(sK[0], j)
        g.wait_tag('w')
        a('s_branch L_x0b')
        g.label('L_x0a')
        g.q = q0
        g.wait_tag('w')
        g.label('L_x0b')
    else:
        g.wait_tag('w')
    a('s_barrier')
    stamp('B0')
    for mod in range(2):
        tr_reads(vWf[mod], mod)
    for mod in range(2):
        a('s_waitcnt lgkmcnt(%d)' % (15 if mod == 0 else 0))
        proj_mfma(vQD[mod], vWf[mod], vXf[mod])
    make_tag()
    a('v_mov_b32 v%d, s%d' % (vNeg, sTag))
    for mod in range(2):
        a('s_nop 0')
        select_tag(vA[mod], vQD[mod], True)
        a('ds_write_b128 v%d, v[%d:%d] offset:%d' % (vH1, vA[mod], vA[mod] + 3, L_STG + mod * 512))
    a('s_waitcnt lgkmcnt(0)')
    a('s_barrier')
    stamp('stg')
    if x0:
        a('s_cmp_eq_u32 s3, 0')
        a('s_cbranch_scc1 L_x0c')
    for j in range(early, 32):
        if x0 and j == early + x0:
            g.label('L_x0c')
        if x0 and j == early + x0:
            a('s_waitcnt vmcnt(%d)' % (win - 1))
            g.q = g.q[-(win - 1):]
        else:
            g.limit(win - 1)
        ring_load(sK[0], j)
    stamp('ring')
    a('s_barrier')
    stamp('B1')

    def pos(tau, r):
        return 8 * (r & 1) + 4 * (r >> 1) + 2 * (tau & 1) + (tau >> 1)

    def rotate():
        for i in range(14):
            a('v_mov_b32 v%d, v%d' % (vZ + i, vZ + i + 2))

    def k_group(refill):
        rotate()
        p, c = vPa, vCc
        for i in range(32):
            k, r = divmod(i, 4)
            g.wait_tag('R%d' % i)
            for e in range(4):
                a('v_dot2_f32_bf16 v%d, v%d, v%d, %s' % (p + r, vRing + 4 * i + e, vQn + e, '0' if e == 0 else 'v%d' % (p + r)))
            refill(i)
            if r == 3:
                a('v_add_f32_dpp v%d, v%d, v%d row_mirror %s' % (p, p, p, DPPF % 3))
                a('v_add_f32_dpp v%d, v%d, v%d row_mirror %s' % (p, p + 1, p + 1, DPPF % 12))
                a('v_add_f32_dpp v%d, v%d, v%d row_mirror %s' % (p + 2, p + 2, p + 2, DPPF % 3))
                a('v_add_f32_dpp v%d, v%d, v%d row_mirror %s' % (p + 2, p + 3, p + 3, DPPF % 12))
                a('s_nop 0')
                a('v_add_f32_dpp v%d, v%d, v%d row_half_mirror %s' % (c + (k & 3), p, p, DPPF % 5))
                a('v_add_f32_dpp v%d, v%d, v%d row_half_mirror %s' % (c + (k & 3), p + 2, p + 2, DPPF % 10))
            if i & 15 == 15:
                for t in range(4):
                    a('v_add_f32_dpp v%d, v%d, v%d quad_perm:[2,3,0,1] %s' % (c + t, c + t, c + t, DPPF % 15))
                a('v_cndmask_b32 v%d, v%d, v%d, s[%d:%d]' % (c, c, c + 1, sB1, sB1 + 1))
                a('v_cndmask_b32 v%d, v%d, v%d, s[%d:%d]' % (c + 2, c + 2, c + 3, sB1, sB1 + 1))
                a('s_nop 0')
                a('v_add_f32_dpp v%d, v%d, v%d quad_perm:[1,0,3,2] %s' % (c, c, c, DPPF % 15))
                a('v_add_f32_dpp v%d, v%d, v%d quad_perm:[1,0,3,2] %s' % (c + 2, c + 2, c + 2, DPPF % 15))
                a('v_cndmask_b32 v%d, v%d, v%d, s[%d:%d]' % (vZ + 14 + (i >> 4), c, c + 2, sB0, sB0 + 1))

    def v_group(refill):
        def build(i):
            for rr in range(4):
                a('v_and_b32_dpp v%d, v%d, v%d row_newbcast:%d %s' % (vA[i & 1] + rr, vZ + (i >> 4), vMask + rr, pos((i >> 2) & 3, i & 3), DPPF % 15))
        build(0)
        for i in range(32):
            if i < 31:
                build(i + 1)
            else:
                a('s_nop 1')
            g.wait_tag('R%d' % i)
            b = vRing + 4 * i
            a('v_mfma_f32_16x16x32_bf16 v[%d:%d], v[%d:%d], v[%d:%d], v[%d:%d]' % (vAcc, vAcc + 3, vA[i & 1], vA[i & 1] + 3, b, b + 3, vAcc, vAcc + 3))
            refill(i)
        rotate()

    wcur = [None]

    uid = [0]
    inboost = [False]

    def signal(word):
        a('s_mov_b64 exec, 1')
        a('ds_add_u32 v%d, v%d offset:%d' % (vCtl, vOne, L_CTL + 4 * word))
        a('s_mov_b64 exec, -1')

    def boost_rf(refill):
        def rf(i):
            if i % 8 == 1:
                a('ds_read_b32 v%d, v%d offset:%d' % (vU, vCtl, L_CTL + 4))
            if i % 8 == 4:
                a('s_waitcnt lgkmcnt(0)')
                a('v_cmp_ne_u32 vcc, 0, v%d' % vU)
            refill(i)
        return rf

    def paced(srd_, i, j):
        w = wcur[0](i) if wcur[0] else wpat[i]
        if inboost[0]:
            uid[0] += 1
            g.limit(Wb - 1)
            a('s_cbranch_vccnz L_u%d' % uid[0])
            a('s_waitcnt vmcnt(%d)' % (w - 1))
            g.label('L_u%d' % uid[0])
        elif (ctl or par) and not wcur[0] and i % 2 == 0 and len(g.q) >= w - 1:
            r = int('{:04b}'.format(i >> 1)[::-1], 2)
            uid[0] += 1
            g.limit(w)
            if r < uflex:
                a('s_cmp_gt_i32 s%d, %d' % (sU, r))
                a('s_cbranch_scc1 L_u%d' % uid[0])
            a('s_waitcnt vmcnt(%d)' % (w - 1))
            if r < uflex:
                a('s_cmp_ge_i32 s%d, %d' % (sU, -r))
                a('s_cbranch_scc1 L_u%d' % uid[0])
                a('s_waitcnt vmcnt(%d)' % (w - 2))
                g.label('L_u%d' % uid[0])
            else:
                g.q = g.q[len(g.q) - (w - 1):]
        else:
            g.limit(w - 1)
        ring_load(srd_, j)

    def group(body, refill):
        def rf(i):
            refill(i)
            if watch and i == sa:
                signal(0)
            if watch and i == sb and sa != sb:
                signal(3)
            if ctl and i == (29 if watch else 24):
                a('ds_read_b32 v%d, v%d offset:%d' % (vU, vCtl, L_CTL + 4))
        body(rf)
        if watch:
            a('s_waitcnt lgkmcnt(0)')
            a('v_readfirstlane_b32 s%d, v%d' % (sU, vU))
        elif ctl:
            a('s_mov_b64 exec, 1')
            a('ds_add_u32 v%d, v%d offset:%d' % (vCtl, vOne, L_CTL))
            a('s_mov_b64 exec, -1')
            a('s_waitcnt lgkmcnt(1)')
            a('v_readfirstlane_b32 s%d, v%d' % (sU, vU))

    def phase(name, body, srd_, srd_next, trips, D, Dn):
        g.limit(wpat[31])
        steady = ['R%d' % j for j in range(D - wpat[31], D)]
        assert g.q == steady[len(steady) - len(g.q):], (g.q, steady)
        g.q = list(steady)
        a('s_mov_b32 s%d, %d' % (sCnt, trips))
        g.label(name)
        group(body, lambda i: paced(srd_, i, i + D))
        assert g.q == steady
        a('s_sub_u32 s%d, s%d, 1' % (sCnt, sCnt))
        a('s_cmp_lg_u32 s%d, 0' % sCnt)
        a('s_cbranch_scc1 %s' % name)
        if srd_next is None and Wend:
            assert Wend < D
            wcur[0] = lambda i: Wend if i >= end0 else wpat[i]
            for _ in range(nend - 1):
                group(body, lambda i: paced(srd_, i, i + D))
                wcur[0] = lambda i: Wend

        if srd_next is None and boost:
            signal(0)
            a('s_mov_b64 vcc, 0')
            inboost[0] = True
            if boost > 1:
                steady2 = ['R%d' % j for j in range(D - Wb, D)]
                g.q = list(steady2)
                a('s_mov_b32 s%d, %d' % (sCnt, boost - 1))
                g.label(name + 'b')
                body(boost_rf(lambda i: paced(srd_, i, i + D)))
                assert g.q == steady2
                a('s_sub_u32 s%d, s%d, 1' % (sCnt, sCnt))
                a('s_cmp_lg_u32 s%d, 0' % sCnt)
                a('s_cbranch_scc1 %sb' % name)

        nj = [D]
        skip = [(k + 1) * 32 // (D - Dn + 1) for k in range(D - Dn)] if srd_next is not None else []

        def last(i):
            j = nj[0]
            if i in skip:
                pass
            elif j < 32:
                paced(srd_, i, j)
                nj[0] += 1
            elif srd_next is not None:
                if j == 32:
                    a('s_mov_b32 s%d, s%d' % (sOff, sBase))
                paced(srd_next, i, j)
                nj[0] += 1
            if srd_next is None and i == (32 - D if b2at is None else b2at):
                if boost or ltrig:
                    signal(3)
                else:
                    a('s_barrier')
        if srd_next is None and stamps == 'lg':
            stamp('LG')
        if srd_next is None:
            body(boost_rf(last) if boost else last)
        else:
            group(body, last)

    def wave_reduce(op, v):
        for ctl in ('row_mirror', 'row_half_mirror', 'quad_perm:[2,3,0,1]', 'quad_perm:[1,0,3,2]'):
            a('s_nop 1')
            a('%s_dpp v%d, v%d, v%d %s %s' % (op, v, v, v, ctl, DPPF % 15))
        a('s_nop 1')
        a('%s_dpp v%d, v%d, v%d row_bcast:15 row_mask:0xa bank_mask:0xf' % (op, v, v, v))
        a('s_nop 1')
        a('%s_dpp v%d, v%d, v%d row_bcast:31 row_mask:0xc bank_mask:0xf' % (op, v, v, v))
        a('s_nop 0')

    def softmax(fl):
        def tick():
            if fl:
                fl.pop(0)()
        a('v_max3_f32 v%d, v%d, v%d, v%d' % (vTmp, vZ, vZ + 1, vZ + 2))
        for i in range(3, 15, 2):
            a('v_max3_f32 v%d, v%d, v%d, v%d' % (vTmp, vTmp, vZ + i, vZ + i + 1))
        a('v_max_f32 v%d, v%d, v%d' % (vTmp, vTmp, vZ + 15))
        wave_reduce('v_max_f32', vTmp)
        a('v_readlane_b32 s%d, v%d, 63' % (sMt, vTmp))
        tick()
        a('v_mov_b32 v%d, s%d' % (vNeg, sC))
        a('s_nop 0')
        a('v_mul_f32 v%d, s%d, v%d' % (vNeg, sMt, vNeg))
        for i in range(16):
            a('v_fma_f32 v%d, v%d, s%d, -v%d' % (vZ + i, vZ + i, sC, vNeg))
        for i in range(16):
            a('v_exp_f32 v%d, v%d' % (vZ + i, vZ + i))
        tick()
        for r in range(4):
            a('v_mov_b32 v%d, 0' % (vAcc + r))
        a('v_add_f32 v%d, v%d, v%d' % (vS, vZ, vZ + 1))
        for i in range(2, 16):
            a('v_add_f32 v%d, v%d, v%d' % (vS, vS, vZ + i))
        for i in range(16):
            a('v_cvt_pk_bf16_f32 v%d, v%d, v%d' % (vZ + i, vZ + i, vZ + i))

    def save_state(mod):
        wave_reduce('v_add_f32', vS)
        a('v_readlane_b32 s%d, v%d, 63' % (sL, vS))
        a('v_lshlrev_b32 v%d, 5, v%d' % (vT2, vT0))
        a('v_lshl_add_u32 v%d, v%d, 4, v%d' % (vT2, vT1, vT2))
        a('s_lshl_b32 s%d, s3, 9' % sT0)
        a('v_add_u32 v%d, s%d, v%d' % (vT2, sT0, vT2))
        a('s_lshl_b32 s%d, s3, 3' % sT0)
        a('v_mov_b32 v%d, s%d' % (vT3, sT0))
        a('v_mov_b32 v%d, s%d' % (vPa, sMt))
        a('v_mov_b32 v%d, s%d' % (vPa + 1, sL))

    def write_state(mod):
        a('s_mov_b32 exec_hi, 0')
        a('ds_write_b128 v%d, v[%d:%d] offset:%d' % (vT2, vAcc, vAcc + 3, L_ACC + 2048 * mod))
        a('s_mov_b32 exec_lo, 1')
        a('ds_write_b64 v%d, v[%d:%d] offset:%d' % (vT3, vPa, vPa + 1, L_ML + 32 * mod))
        a('s_mov_b64 exec, -1')

    for mod in range(2):
        a('v_lshlrev_b32 v%d, 4, v%d' % (vNeg, vT0))
        a('ds_read_b128 v[%d:%d], v%d offset:%d' % (vQn, vQn + 3, vNeg, L_Q + 256 * mod))
        a('s_waitcnt lgkmcnt(0)')
        if mod == 0:
            nxt = [32]

            def shrink(i):
                while nxt[0] < 32 + (i + 1) * D // 32:
                    paced(sK[0], i, nxt[0])
                    nxt[0] += 1
            group(k_group, shrink)
        phase('L_k%d' % mod, k_group, sK[mod], sV[mod], 6 if mod == 0 else 7, D, D)
        stamp('K%d' % mod)
        fl = [lambda k=k: paced(sV[mod], 31, D + k) for k in range(fill)]
        softmax(fl)
        save_state(mod)
        while fl:
            fl.pop(0)()
        phase('L_v%d' % mod, v_group, sV[mod], sK[1] if mod == 0 else None, 8 - (nend if Wend else boost) if (mod == 1 and (Wend or boost)) else 7, D + fill, D)
        stamp('V%d' % mod)
        write_state(mod)
    a('v_lshrrev_b32 v%d, 7, v0' % vT2)
    a('v_lshlrev_b32 v%d, 5, v%d' % (vT3, vT2))
    a('v_lshlrev_b32 v%d, 11, v%d' % (vT2, vT2))
    a('v_and_b32 v%d, 127, v0' % vNeg)
    a('v_lshl_add_u32 v%d, v%d, 2, v%d' % (vT2, vNeg, vT2))
    a('s_lshl_b32 s%d, s%d, 3' % (sT0, sH))
    a('s_add_u32 s%d, s%d, s%d' % (sT0, sT0, sJ))
    a('s_lshl_b32 s%d, s%d, 10' % (sT0, sT0))
    a('s_add_u32 s%d, s%d, 0x%x' % (sCnt, sT0, WS_H2))
    a('s_waitcnt lgkmcnt(0)')
    if ldsync:
        a('s_mov_b64 exec, 1')
        a('ds_add_u32 v%d, v%d offset:%d' % (vCtl, vOne, L_CTL + 8))
        a('s_mov_b64 exec, -1')
        g.label('L_meet')
        a('ds_read_b32 v%d, v%d offset:%d' % (vU, vCtl, L_CTL + 8))
        a('s_waitcnt lgkmcnt(0)')
        a('v_cmp_gt_u32 vcc, 4, v%d' % vU)
        a('s_cbranch_vccnz L_meet')
    else:
        a('s_barrier')
    R = vS
    a('ds_read_b128 v[%d:%d], v%d offset:%d' % (R, R + 3, vT3, L_ML))
    a('ds_read_b128 v[%d:%d], v%d offset:%d' % (R + 4, R + 7, vT3, L_ML + 16))
    for w in range(4):
        a('ds_read_b32 v%d, v%d offset:%d' % (vA[0] + w, vT2, L_ACC + 512 * w))
    a('s_waitcnt lgkmcnt(4)')
    a('v_max3_f32 v%d, v%d, v%d, v%d' % (vT2, R, R + 2, R + 4))
    a('v_max_f32 v%d, v%d, v%d' % (vT2, vT2, R + 6))
    a('v_mul_f32 v%d, s%d, v%d' % (vNeg, sC, vT2))
    for w in range(4):
        a('v_fma_f32 v%d, v%d, s%d, -v%d' % (R + 2 * w, R + 2 * w, sC, vNeg))
    for w in range(4):
        a('v_exp_f32 v%d, v%d' % (R + 2 * w, R + 2 * w))
    a('s_nop 0')
    a('v_mul_f32 v%d, v%d, v%d' % (vT2, R, R + 1))
    for w in range(1, 4):
        a('v_fma_f32 v%d, v%d, v%d, v%d' % (vT2, R + 2 * w, R + 2 * w + 1, vT2))
    a('v_rcp_f32 v%d, v%d' % (vT2, vT2))
    a('s_waitcnt lgkmcnt(0)')
    a('v_mul_f32 v%d, v%d, v%d' % (vT3, R, vA[0]))
    for w in range(1, 4):
        a('v_fma_f32 v%d, v%d, v%d, v%d' % (vT3, R + 2 * w, vA[0] + w, vT3))
    a('v_mul_f32 v%d, v%d, v%d' % (vT3, vT3, vT2))
    a('v_mov_b32 v%d, s%d' % (vA[1] + 1, sTag))
    a('v_lshlrev_b32 v%d, 2, v0' % vNeg)
    a('v_mov_b32_dpp v%d, v%d quad_perm:[1,0,3,2] %s' % (vT2, vT3, DPPF % 15))
    a('v_cvt_pk_bf16_f32 v%d, v%d, v%d' % (vA[1], vT3, vT2))
    a('s_mov_b32 exec_lo, 0x55555555')
    a('s_mov_b32 exec_hi, 0x55555555')
    a('buffer_store_dwordx2 v[%d:%d], v%d, s[%d:%d], s%d offen sc1' % (vA[1], vA[1] + 1, vNeg, sWS, sWS + 3, sCnt))
    a('s_mov_b64 exec, -1')
    stamp('pubo')
    vWO, vOf, vD = vRing, vRing + 64, vRing + 96
    a('v_and_b32 v%d, 7, v%d' % (vT2, vLane))
    a('v_mul_u32_u24 v%d, 272, v%d' % (vT3, vT2))
    a('v_lshl_add_u32 v%d, v%d, 4, v%d' % (vT3, vT1, vT3))
    a('v_bfe_u32 v%d, v%d, 3, 1' % (vNeg, vLane))
    if fuse and pm3:
        a('v_lshlrev_b32 v%d, 9, v%d' % (vT2, vT2))
        a('s_lshl_b32 s%d, s%d, 5' % (sT0, sJ))
        a('s_add_u32 s%d, s%d, s%d' % (sT0, sT0, sH))
        a('s_lshl_b32 s%d, s%d, 13' % (sT0, sT0))
        a('s_lshl_b32 s%d, s3, 7' % sT1)
        a('s_add_u32 s%d, s%d, s%d' % (sT0, sT0, sT1))
        a('s_add_u32 s%d, s%d, 4096' % (sT1, sT0))
    elif fuse:
        a('v_lshlrev_b32 v%d, 14, v%d' % (vT2, vT2))
        a('s_lshl_b32 s%d, s%d, 18' % (sT0, sJ))
        a('s_lshl_b32 s%d, s%d, 8' % (sT1, sH))
        a('s_add_u32 s%d, s%d, s%d' % (sT0, sT0, sT1))
        a('s_lshr_b32 s%d, s3, 1' % sT1)
        a('s_lshl_b32 s%d, s%d, 13' % (sT1, sT1))
        a('s_add_u32 s%d, s%d, s%d' % (sT0, sT0, sT1))
        a('s_and_b32 s%d, s3, 1' % sT1)
        a('s_lshl_b32 s%d, s%d, 7' % (sT1, sT1))
        a('s_add_u32 s%d, s%d, s%d' % (sT0, sT0, sT1))
        a('s_add_u32 s%d, s%d, 0x20000' % (sT1, sT0))
    else:
        a('v_lshlrev_b32 v%d, 17, v%d' % (vT2, vT2))
        a('s_lshl_b32 s%d, s%d, 12' % (sT0, sH))
        a('s_lshl_b32 s%d, s%d, 9' % (sT1, sJ))
        a('s_add_u32 s%d, s%d, s%d' % (sT0, sT0, sT1))
        a('s_lshl_b32 s%d, s3, 7' % sT1)
        a('s_add_u32 s%d, s%d, s%d' % (sT0, sT0, sT1))
        a('s_add_u32 s%d, s%d, 0x100000' % (sT1, sT0))
    a('v_lshl_add_u32 v%d, v%d, 6, v%d' % (vT2, vNeg, vT2))
    a('v_lshl_add_u32 v%d, v%d, 4, v%d' % (vT2, vT1, vT2))
    a('v_mov_b32 v%d, 0xff' % vTmp)
    a('v_mov_b32 v%d, s%d' % (vNeg, sTag))
    if pre_tr:
        a('s_barrier')
        for mod in range(2):
            tr_reads(vWO + 32 * mod, mod)
    a('s_barrier')
    stamp('B4')
    for mod in range(2):
        for kb in range(4):
            r = vOf + 16 * mod + 4 * kb
            a('ds_read_b128 v[%d:%d], v%d offset:%d' % (r, r + 3, vT3, L_O + mod * 8 * 272 + kb * 64))
        if not pre_tr:
            tr_reads(vWO + 32 * mod, mod)
    for mod in range(2):
        a('s_waitcnt lgkmcnt(%d)' % ((4 if pre_tr else 15) if mod == 0 else 0))
        proj_mfma(vD + 8 * mod, vWO + 32 * mod, vOf + 16 * mod)
    for mod in range(2):
        a('s_nop %d' % (0 if mod == 0 or fuse else 3))
        select_tag(vD + 8 * mod, vD + 8 * mod, fuse)
        a('buffer_store_dwordx4 v[%d:%d], v%d, s[%d:%d], s%d offen %s' % (vD + 8 * mod, vD + 8 * mod + 3, vT2, sWS, sWS + 3, (sT0, sT1)[mod], 'sc1' if fuse else ''))
    if stamps:
        a('s_waitcnt vmcnt(0)')
        stamp('end')
        write_stamps(nst[0])
    nst_stream = nst[0]
    a('s_endpgm')

    g.label('L_comm')
    nst[0] = 0
    names.append('|')
    vG = 16
    vBad = 80
    a('s_setprio 3')
    srd(sWO[0], 12, 1 << 23)
    srd(sWO[1], 22, 1 << 23)
    if fuse:
        srd(sOut, 24, 32768)
    a('s_mov_b32 s%d, s%d' % (sBase, sH1))
    a('v_add_u32 v%d, 4096, v%d' % (vHi, vNat))
    a('s_lshl_b32 s%d, s%d, 16' % (sT0, sH))
    a('s_add_u32 s%d, s%d, 0x%x' % (sT0, sT0, WS_H1))
    a('s_lshl_b32 s%d, s%d, %d' % (sT1, sJ, 10 if pm1 else 13))
    a('s_add_u32 s%d, s%d, s%d' % (sOff, sT0, sT1))
    a('s_lshl_b32 s%d, s%d, %d' % (sT1, sJ, 13 if pm1 else 10))
    a('s_add_u32 s%d, s%d, s%d' % (sH1, sT0, sT1))
    a('v_lshlrev_b32 v%d, 3, v%d' % (vT3, vLane))
    npoll = [0]

    def poll(name, base, bytetag, slp, stride=0, vaddr=None):
        a('s_mov_b32 s%d, 0x%x' % (sCnt, tmo))
        g.label(name)
        for p in range(8):
            if stride:
                a('s_add_u32 s%d, s%d, %d' % (sMt, sOff, p * stride))
                a('buffer_load_dwordx4 v[%d:%d], v%d, s[%d:%d], s%d offen sc1' % (base + 4 * p, base + 4 * p + 3, vaddr, sWS, sWS + 3, sMt))
            else:
                a('buffer_load_dwordx4 v[%d:%d], v%d, s[%d:%d], s%d offen offset:%d sc1' % (base + 4 * p, base + 4 * p + 3, vHi if p & 4 else vNat, sWS, sWS + 3, sOff, 1024 * (p & 3)))
        a('v_mov_b32 v%d, 0' % vBad)
        for p in range(8):
            a('s_waitcnt vmcnt(%d)' % (7 - p))
            es = (0, 1, 2, 3) if bytetag else (1, 3)
            for e in es:
                a('v_xor_b32 v%d, s%d, v%d' % (base + 4 * p + e, sT8 if bytetag else sTag, base + 4 * p + e))
            for i in range(0, len(es), 2):
                a('v_or3_b32 v%d, v%d, v%d, v%d' % (vBad, vBad, base + 4 * p + es[i], base + 4 * p + es[i + 1]))
        if bytetag:
            a('v_and_b32 v%d, 0xff, v%d' % (vBad, vBad))
        a('v_cmp_ne_u32 vcc, 0, v%d' % vBad)
        a('s_cbranch_vccz %s_ok' % name)
        a('s_sleep %d' % slp)
        a('s_sub_u32 s%d, s%d, 1' % (sCnt, sCnt))
        a('s_cmp_lg_u32 s%d, 0' % sCnt)
        a('s_cbranch_scc1 %s' % name)
        g.label(name + '_ok')
        if stamps:
            a('s_sub_u32 s%d, 0x%x, s%d' % (20 + 2 * npoll[0], tmo, sCnt))
            npoll[0] += 1

    def sum8(b):
        for e in range(4):
            for p in range(0, 8, 2):
                a('v_add_f32 v%d, v%d, v%d' % (b + 4 * p + e, b + 4 * p + e, b + 4 * p + 4 + e))
            a('v_add_f32 v%d, v%d, v%d' % (b + e, b + e, b + 8 + e))
            a('v_add_f32 v%d, v%d, v%d' % (b + 16 + e, b + 16 + e, b + 24 + e))
            a('v_add_f32 v%d, v%d, v%d' % (b + e, b + e, b + 16 + e))

    if watch:
        a('v_mov_b32 v%d, 0' % vCtl)
        for r in range(4):
            a('v_mov_b32 v%d, 0' % (vG + r))
        a('ds_write_b128 v%d, v[%d:%d] offset:%d' % (vCtl, vG, vG + 3, L_CTL))
    elif ctl:
        a('s_lshr_b32 s%d, s2, %d' % (sDbg, csz.bit_length() - 1))
        a('s_mul_i32 s%d, s%d, 4352' % (sDbg, sDbg))
        a('s_add_u32 s%d, s%d, 0x%x' % (sDbg, sDbg, WS_CTL))
        a('s_load_dword s%d, s[28:29], s%d' % (sDbg + 1, sDbg))
        a('v_mov_b32 v%d, 0' % vCtl)
        a('v_mov_b32 v%d, 0' % vG)
        a('v_mov_b32 v%d, %d' % (vG + 1, ubias))
        a('ds_write_b64 v%d, v[%d:%d] offset:%d' % (vCtl, vG, vG + 1, L_CTL))
    if ldsync:
        a('v_mov_b32 v%d, 0' % vCtl)
        for r in range(4):
            a('v_mov_b32 v%d, 0' % (vG + r))
        a('ds_write_b128 v%d, v[%d:%d] offset:%d' % (vCtl, vG, vG + 3, L_CTL))
    a('s_barrier')
    make_tag()
    a('s_and_b32 s%d, s%d, 0xff' % (sT8, sTag))
    a('s_barrier')
    for p in range(8):
        a('ds_read_b128 v[%d:%d], v%d offset:%d' % (vG + 4 * p, vG + 4 * p + 3, vNat, L_STG + 1040 * p))
    for p in range(8):
        a('s_waitcnt lgkmcnt(%d)' % (7 - p))
        a('buffer_store_dwordx4 v[%d:%d], v%d, s[%d:%d], s%d offen sc1' % (vG + 4 * p, vG + 4 * p + 3, vNat, sWS, sWS + 3, sH1))
        a('s_add_u32 s%d, s%d, %d' % (sH1, sH1, 1024 if pm1 else 8192))
    a('s_waitcnt vmcnt(0)')
    stamp('st')
    poll('L_pq', vG, True, sleep, 8192 if pm1 else 0, vNat)
    sum8(vG)
    a('v_cvt_pk_bf16_f32 v%d, v%d, v%d' % (vG, vG, vG + 1))
    a('v_cvt_pk_bf16_f32 v%d, v%d, v%d' % (vG + 1, vG + 2, vG + 3))
    a('ds_write_b64 v%d, v[%d:%d] offset:%d' % (vT3, vG, vG + 1, L_Q))
    a('s_waitcnt lgkmcnt(0)')
    stamp('q')
    a('s_barrier')
    weight_voffsets(11)
    a('s_lshl_b32 s%d, s%d, 18' % (sT0, sH))
    a('s_lshl_b32 s%d, s%d, 8' % (sT1, sJ))
    a('s_add_u32 s%d, s%d, s%d' % (sWOff, sT0, sT1))
    a('s_lshl_b32 s%d, s%d, 13' % (sT0, sH))
    a('s_add_u32 s%d, s%d, 0x%x' % (sOff, sT0, WS_H2))
    a('v_lshrrev_b32 v%d, 5, v%d' % (vT2, vLane))
    a('v_mul_u32_u24 v%d, %d, v%d' % (vT2, 8 * 272, vT2))
    a('v_and_b32 v%d, 31, v%d' % (vT3, vLane))
    a('v_lshl_add_u32 v%d, v%d, 3, v%d' % (vT2, vT3, vT2))
    a('v_add_u32 v%d, %d, v%d' % (vT2, L_O, vT2))
    a('v_add_u32 v%d, %d, v%d' % (vT3, 4 * 272, vT2))
    a('s_mov_b32 s%d, %d' % (sLdsW, L_W))
    if watch:
        vWa, vWx = 82, 83
        if local:
            a('s_getreg_b32 s%d, hwreg(HW_REG_XCC_ID)' % sT0)
            a('s_and_b32 s%d, s%d, 15' % (sT0, sT0))
            a('s_bitcmp1_b32 s%d, 0' % sT0)
            lp = lpar if isinstance(lpar, list) else [16 * lpar, -16 * lpar]
            a('s_cselect_b32 s%d, %d, %d' % (sC, 8 + lp[1], 8 + lp[0]))
            a('s_mul_i32 s%d, s%d, 4352' % (sT0, sT0))
            a('s_add_u32 s%d, s%d, 0x%x' % (sDbg + 2, sT0, WS_CTL))
            a('s_getreg_b32 s%d, hwreg(HW_REG_HW_ID, 13, 2)' % sT1)
            a('s_getreg_b32 s%d, hwreg(HW_REG_HW_ID, 8, 4)' % sT0)
            a('s_lshl_b32 s%d, s%d, 6' % (sT1, sT1))
            a('s_lshl_b32 s%d, s%d, 2' % (sT0, sT0))
            a('s_add_u32 s%d, s%d, s%d' % (sT1, sT1, sT0))
            a('s_add_u32 s%d, s%d, s%d' % (sDbg, sDbg + 2, sT1))
            a('s_mov_b32 s%d, %d' % (sDbg + 1, 0 if nopost else 1))
            a('v_lshlrev_b32 v%d, 2, v%d' % (vWa, vLane))
        else:
            a('v_and_b32 v%d, 7, v%d' % (vWa, vLane))
            a('v_mul_u32_u24 v%d, 4352, v%d' % (vWa, vWa))
            a('v_lshrrev_b32 v%d, 3, v%d' % (vWx, vLane))
            a('v_lshl_add_u32 v%d, v%d, 2, v%d' % (vWa, vWx, vWa))
            a('s_and_b32 s%d, s2, 7' % sT0)
            a('s_mul_i32 s%d, s%d, 4352' % (sT0, sT0))
            a('s_lshr_b32 s%d, s2, 6' % sT1)
            a('s_lshl_b32 s%d, s%d, 2' % (sDbg, sT1))
            a('s_add_u32 s%d, s%d, s%d' % (sDbg, sDbg, sT0))
            a('s_add_u32 s%d, s%d, 0x%x' % (sDbg, sDbg, WS_CTL))
            a('s_lshl_b32 s%d, s%d, 1' % (sT1, sT1))
            a('s_cmp_eq_u32 s%d, s%d' % (sT1, sJ))
            a('s_cselect_b32 s%d, %d, 0' % (sDbg + 1, 0 if nopost else 1))
            sCtlB = 86
            a('s_add_u32 s%d, s%d, 0x%x' % (sCtlB, sWS, WS_CTL))
            a('s_addc_u32 s%d, s%d, 0' % (sCtlB + 1, sWS + 1))
            a('s_mov_b32 s%d, 0x%x' % (sDbg + 2, WS_CTL))
            a('s_mov_b32 s%d, 8' % sC)
        a('s_and_b32 s%d, s%d, 0xffffff00' % (sDbg + 3, sTag))
        a('s_mov_b32 s%d, %d' % (sL, period))
        a('s_mov_b32 s%d, 0' % sT1)
        if not local:
            a('s_mov_b32 exec_hi, 0')
        if stamps:
            a('s_mov_b32 s18, 0')
        g.label('L_ctl')
        a('s_lshl_b32 s%d, s%d, 2' % (sT0, sL))
        a('s_sub_u32 s%d, s%d, 2' % (sT0, sT0))
        def wait_word(word, nm):
            g.label('L_ctl' + nm)
            a('s_sleep 1')
            a('ds_read_b32 v%d, v%d offset:%d' % (vG, vCtl, L_CTL + 4 * word))
            a('s_waitcnt lgkmcnt(0)')
            a('v_cmp_gt_u32 vcc, s%d, v%d' % (sT0, vG))
            a('s_cbranch_vccnz L_ctl' + nm)

        def post():
            wait_word(0, 'a')
            a('s_cmp_eq_u32 s%d, 0' % (sDbg + 1))
            a('s_cbranch_scc1 L_ctlc')
            a('s_or_b32 s%d, s%d, s%d' % (sMt, sDbg + 3, sL))
            a('v_mov_b32 v%d, s%d' % (vG + 1, sMt))
            a('s_mov_b64 exec, 1')
            a('buffer_store_dword v%d, v%d, s[%d:%d], s%d offen %s' % (vG + 1, vCtl, sWS, sWS + 3, sDbg, '' if local else 'sc1'))
            a('s_mov_b64 exec, -1') if local else a('s_mov_b32 exec_lo, -1')
            g.label('L_ctlc')

        if sa <= sb:
            post()
        if sa != sb:
            wait_word(3, 'b')
        if spoll and not local:
            regs = list(range(40, 64, 4)) + [0, 0]
            base = [40, 44, 48, 52, 56, 60, 88, 28]
            for x in range(8):
                a('s_load_dwordx4 s[%d:%d], s[%d:%d], 0x%x glc' % (base[x], base[x] + 3, sCtlB, sCtlB + 1, x * 4352))
            a('s_mov_b32 s%d, 0' % sU)
            a('s_add_u32 s%d, s%d, s%d' % (sMt, sDbg + 3, sL))
            a('s_waitcnt lgkmcnt(0)')
            for x in range(8):
                for e in range(4):
                    a('s_sub_u32 s%d, s%d, s%d' % (base[x] + e, base[x] + e, sMt))
                    a('s_cmp_lt_u32 s%d, 64' % (base[x] + e))
                    a('s_addc_u32 s%d, s%d, 0' % (sU, sU))
        else:
            a('buffer_load_dword v%d, v%d, s[%d:%d], s%d offen %s' % (vG + 2, vWa, sWS, sWS + 3, sDbg + 2, lpol))
            if sa > sb:
                post()
            a('s_waitcnt vmcnt(0)')
            a('v_xor_b32 v%d, s%d, v%d' % (vG + 2, sDbg + 3, vG + 2))
            a('v_subrev_u32 v%d, s%d, v%d' % (vG + 2, sL, vG + 2))
            a('v_cmp_gt_u32 vcc, 64, v%d' % (vG + 2))
            a('s_nop 1')
            a('s_bcnt1_i32_b64 s%d, vcc' % sU)
        if stamps:
            a('s_add_u32 s18, s18, s%d' % sU)
        a('s_sub_i32 s%d, s%d, %d' % (sU, sU, f0))
        a('s_mul_i32 s%d, s%d, %d' % (sU, sU, umax))
        if keep:
            a('s_add_i32 s%d, s%d, s%d' % (sU, sU, sT1))
            a('s_mul_i32 s%d, s%d, %d' % (sT1, sU, keep))
            a('s_ashr_i32 s%d, s%d, 4' % (sT1, sT1))
        a('s_add_i32 s%d, s%d, s%d' % (sU, sU, sC))
        a('s_ashr_i32 s%d, s%d, 4' % (sU, sU))
        a('s_max_i32 s%d, s%d, %d' % (sU, sU, umin))
        a('v_mov_b32 v%d, s%d' % (vG, sU))
        a('ds_write_b32 v%d, v%d offset:%d' % (vCtl, vG, L_CTL + 4))
        a('s_add_u32 s%d, s%d, %d' % (sL, sL, period))
        a('s_cmp_le_u32 s%d, %d' % (sL, 31 if not Wend else 32 - nend))
        a('s_cbranch_scc1 L_ctl')
        a('s_mov_b64 exec, -1')
    elif ctl:
        f0 = first if first is not None else period
        last = (31 - (nend if Wend else 1) - f0) // period + 1
        a('s_mov_b64 exec, 1')
        a('s_mov_b32 s%d, %d' % (sT0, 4 * f0 - 1))
        a('s_mov_b32 s%d, 0' % sT1)
        a('s_mov_b32 s%d, %d' % (sL, last))
        g.label('L_ctl')
        a('s_sleep %d' % csleep)
        a('ds_read_b32 v%d, v%d offset:%d' % (vG, vCtl, L_CTL))
        a('s_waitcnt lgkmcnt(0)')
        a('v_readfirstlane_b32 s%d, v%d' % (sMt, vG))
        a('s_mov_b32 s%d, 1' % sU)
        a('s_nop 2')
        a('s_cmp_lt_u32 s%d, s%d' % (sMt, sT0))
        a('s_cbranch_scc1 L_ctl')
        a('s_atomic_add s%d, s[%d:%d], s%d glc' % (sU, sWS, sWS + 1, sDbg))
        a('s_add_u32 s%d, s%d, %d' % (sT0, sT0, 4 * period))
        a('s_waitcnt lgkmcnt(0)')
        a('s_sub_u32 s%d, s%d, s%d' % (sU, sU, sDbg + 1))
        a('s_add_u32 s%d, s%d, %d' % (sDbg + 1, sDbg + 1, csz))
        a('s_lshl_b32 s%d, s%d, 1' % (sU, sU))
        a('s_sub_i32 s%d, s%d, %d' % (sU, sU, csz - 1))
        a('s_max_i32 s%d, s%d, %d' % (sU, sU, -2 * csz))
        a('s_min_i32 s%d, s%d, %d' % (sU, sU, 2 * csz))
        a('s_mul_i32 s%d, s%d, %d' % (sU, sU, round(umax * 256 / (csz - 1))))
        if keep:
            a('s_add_i32 s%d, s%d, s%d' % (sU, sU, sT1))
            a('s_mul_i32 s%d, s%d, %d' % (sT1, sU, keep))
            a('s_ashr_i32 s%d, s%d, 4' % (sT1, sT1))
        a('s_add_i32 s%d, s%d, %d' % (sU, sU, 128 + 256 * ubias))
        a('s_ashr_i32 s%d, s%d, 8' % (sU, sU))
        a('v_mov_b32 v%d, s%d' % (vG, sU))
        a('ds_write_b32 v%d, v%d offset:%d' % (vCtl, vG, L_CTL + 4))
        a('s_sub_u32 s%d, s%d, 1' % (sL, sL))
        a('s_cmp_lg_u32 s%d, 0' % sL)
        a('s_cbranch_scc1 L_ctl')
        a('s_mov_b64 exec, -1')
    if boost:
        a('v_lshlrev_b32 v%d, 12, v%d' % (vBad, vLane))
        a('s_mov_b32 s%d, 0x%x' % (sT0, WS_H2))
        a('s_mov_b32 s%d, 0' % sU)
        g.label('L_w0')
        a('s_sleep 32')
        a('ds_read_b32 v%d, v%d offset:%d' % (vG, vCtl, L_CTL))
        a('s_waitcnt lgkmcnt(0)')
        a('v_cmp_eq_u32 vcc, 0, v%d' % vG)
        a('s_cbranch_vccnz L_w0')
        g.label('L_mon')
        a('buffer_load_dword v%d, v%d, s[%d:%d], s%d offen offset:4 sc1' % (vG + 1, vBad, sWS, sWS + 3, sT0))
        a('s_waitcnt vmcnt(0)')
        a('v_cmp_eq_u32 vcc, s%d, v%d' % (sTag, vG + 1))
        a('ds_read_b32 v%d, v%d offset:%d' % (vG, vCtl, L_CTL + 12))
        a('s_bcnt1_i32_b64 s%d, vcc' % sMt)
        a('s_cmp_ge_u32 s%d, %d' % (sMt, thr))
        a('s_cbranch_scc1 L_open')
        a('s_waitcnt lgkmcnt(0)')
        a('v_cmp_le_u32 vcc, 2, v%d' % vG)
        a('s_cbranch_vccnz L_over')
        a('s_sleep %d' % msleep)
        a('s_branch L_mon')
        g.label('L_open')
        a('s_mov_b32 s%d, 1' % sU)
        a('v_mov_b32 v%d, 1' % (vG + 1))
        a('ds_write_b32 v%d, v%d offset:%d' % (vCtl, vG + 1, L_CTL + 4))
        g.label('L_w1')
        a('ds_read_b32 v%d, v%d offset:%d' % (vG, vCtl, L_CTL + 12))
        a('s_waitcnt lgkmcnt(0)')
        a('v_cmp_le_u32 vcc, 2, v%d' % vG)
        a('s_cbranch_vccnz L_over')
        a('s_sleep 2')
        a('s_branch L_w1')
        g.label('L_over')
        if stamps:
            a('s_mov_b32 s18, s%d' % sU)
        a('s_cmp_lg_u32 s%d, 0' % sU)
        a('s_cselect_b64 vcc, -1, 0')
    elif ltrig:
        assert watch and local and ldsync and sa == sb
        g.label('L_tr')
        a('ds_read_b32 v%d, v%d offset:%d' % (vG, vCtl, L_CTL + 12))
        a('buffer_load_dword v%d, v%d, s[%d:%d], s%d offen %s' % (vG + 2, 82, sWS, sWS + 3, sDbg + 2, lpol))
        a('s_waitcnt lgkmcnt(0)')
        a('v_cmp_le_u32 vcc, 2, v%d' % vG)
        a('s_cbranch_vccnz L_trown')
        a('s_waitcnt vmcnt(0)')
        a('v_xor_b32 v%d, s%d, v%d' % (vG + 2, sDbg + 3, vG + 2))
        a('v_cmp_eq_u32 vcc, 40, v%d' % (vG + 2))
        a('s_nop 1')
        a('s_bcnt1_i32_b64 s%d, vcc' % sU)
        a('s_cmp_ge_u32 s%d, %d' % (sU, ltrig))
        a('s_cbranch_scc1 L_trgo')
        a('s_sleep 2')
        a('s_branch L_tr')
        g.label('L_trown')
        a('s_or_b32 s%d, s%d, 40' % (sMt, sDbg + 3))
        a('v_mov_b32 v%d, s%d' % (vG + 1, sMt))
        a('s_mov_b64 exec, 1')
        a('buffer_store_dword v%d, v%d, s[%d:%d], s%d offen' % (vG + 1, vCtl, sWS, sWS + 3, sDbg))
        g.label('L_trgo')
        a('s_mov_b64 exec, -1')
    else:
        a('s_barrier')
    for mod in range(2):
        a('s_mov_b32 s%d, s%d' % (sT0, sWOff))
        a('s_mov_b32 s%d, 8' % sCnt)
        g.label('L_wo%d' % mod)
        for i in range(4):
            if wowin:
                if boost:
                    a('s_cbranch_vccnz L_wo%d_%d' % (mod, i))
                a('s_waitcnt vmcnt(%d)' % (wowin - 1))
                g.label('L_wo%d_%d' % (mod, i))
            a('s_mov_b32 m0, s%d' % sLdsW)
            a('s_add_u32 s%d, s%d, 1024' % (sLdsW, sLdsW))
            a('buffer_load_dwordx4 v%d, s[%d:%d], s%d offen %s lds' % (vW1 if i & 2 else vW, sWO[mod], sWO[mod] + 3, sT0, wpol))
            a('s_add_u32 s%d, s%d, 8192' % (sT0, sT0))
        a('s_sub_u32 s%d, s%d, 1' % (sCnt, sCnt))
        a('s_cmp_lg_u32 s%d, 0' % sCnt)
        a('s_cbranch_scc1 L_wo%d' % mod)
        if mod == 0 and not ldsync:
            a('s_barrier')
    if pre_tr:
        a('s_waitcnt vmcnt(0)')
        a('s_barrier')
    stamp('wo')
    poll('L_po', vG, False, sleep)
    for p in range(8):
        a('ds_write2_b32 v%d, v%d, v%d offset0:%d offset1:%d' % (vT2 if p < 4 else vT3, vG + 4 * p, vG + 4 * p + 2, 68 * (p & 3), 68 * (p & 3) + 1))
    a('s_waitcnt lgkmcnt(0)')
    stamp('o')
    a('s_barrier')
    if fuse:
        if pm3:
            a('s_lshl_b32 s%d, s%d, 18' % (sT0, sJ))
            a('s_lshl_b32 s%d, s%d, 8' % (sT1, sH))
            a('s_add_u32 s%d, s%d, s%d' % (sOff, sT0, sT1))
            a('v_lshlrev_b32 v%d, 4, v%d' % (vHi, vT0))
            a('v_lshl_add_u32 v%d, v%d, 13, v%d' % (vHi, vT1, vHi))
        else:
            a('s_lshl_b32 s%d, s%d, 5' % (sT0, sJ))
            a('s_add_u32 s%d, s%d, s%d' % (sT0, sT0, sH))
            a('s_lshl_b32 s%d, s%d, 13' % (sOff, sT0))
        a('s_bfe_u32 s%d, s%d, 0x30001' % (sT0, sH))
        a('s_lshl_b32 s%d, s%d, 12' % (sT0, sT0))
        a('s_lshr_b32 s%d, s%d, 4' % (sT1, sH))
        a('s_lshl_b32 s%d, s%d, 11' % (sT1, sT1))
        a('s_add_u32 s%d, s%d, s%d' % (sT0, sT0, sT1))
        a('s_lshl_b32 s%d, s%d, 8' % (sT1, sJ))
        a('s_add_u32 s%d, s%d, s%d' % (sT0, sT0, sT1))
        a('s_and_b32 s%d, s%d, 1' % (sT1, sH))
        a('s_lshl_b32 s%d, s%d, 7' % (sT1, sT1))
        a('s_add_u32 s%d, s%d, s%d' % (sWOff, sT0, sT1))
        a('v_lshlrev_b32 v%d, 3, v%d' % (vT2, vT0))
        poll('L_pp', vG, True, sleep3, 32768 if pm3 else 0, vHi)
        sum8(vG)
        for swap in ('v_permlane32_swap_b32', 'v_permlane16_swap_b32'):
            for r in range(4):
                a('v_mov_b32 v%d, v%d' % (vG + 4 + r, vG + r))
            a('s_nop 1')
            for r in range(4):
                a('%s v%d, v%d' % (swap, vG + r, vG + 4 + r))
            a('s_nop 1')
            for r in range(4):
                a('v_add_f32 v%d, v%d, v%d' % (vG + r, vG + r, vG + 4 + r))
        a('v_cvt_pk_bf16_f32 v%d, v%d, v%d' % (vG, vG, vG + 1))
        a('v_cvt_pk_bf16_f32 v%d, v%d, v%d' % (vG + 1, vG + 2, vG + 3))
        a('s_mov_b32 exec_lo, 0xffff')
        a('s_mov_b32 exec_hi, 0')
        a('buffer_store_dwordx2 v[%d:%d], v%d, s[%d:%d], s%d offen' % (vG, vG + 1, vT2, sOut, sOut + 3, sWOff))
    a('s_cmp_lg_u32 %s, 0' % ('s2' if fuse else 's%d' % sJ))
    a('s_cbranch_scc1 L_comm_end')
    a('v_mov_b32 v%d, s%d' % (vT2, sTag))
    a('v_mov_b32 v%d, 0' % vT3)
    a('s_mov_b64 exec, 1')
    a('buffer_store_dword v%d, v%d, s[%d:%d], s%d offen' % (vT2, vT3, sWS, sWS + 3, sBase))
    g.label('L_comm_end')
    if stamps:
        a('s_waitcnt vmcnt(0)')
        stamp('fin')
        write_stamps(11)
    g.label('L_exit')
    a('s_endpgm')

    kd = '''.section .rodata,"a"
.p2align 6
.amdhsa_kernel %s
  .amdhsa_next_free_vgpr %d
  .amdhsa_next_free_sgpr %d
  .amdhsa_accum_offset %d
  .amdhsa_group_segment_fixed_size 0
  .amdhsa_kernarg_size 104
  .amdhsa_user_sgpr_count 2
  .amdhsa_user_sgpr_kernarg_segment_ptr 1
  .amdhsa_system_sgpr_workgroup_id_x 1
''' + ('  .amdhsa_float_denorm_mode_32 3\n' if denorm else '') + '''.end_amdhsa_kernel
'''
    tail = kd % (K1, 256, 100, 256)
    if fuse:
        head = HEADER + '; @launch grid=(256,1,1) block=(320,1,1) lds=%d\n' % L_END
    else:
        head = HEADER + '; @launch kernel=%s grid=(256,1,1) block=(320,1,1) lds=%d\n; @launch kernel=%s grid=(256,1,1) block=(64,1,1) lds=0\n' % (K1, L_END, K2)
        tail += kd % (K2, 40, 24, 40)
        g.L += ['.globl %s' % K2, '.p2align 8', '.type %s,@function' % K2]
        g.label(K2)
        for s in '''s_cmp_ge_u32 s2, 256
s_cbranch_scc1 L_exit2
s_load_dwordx2 s[8:9], s[0:1], 96
s_load_dwordx2 s[12:13], s[0:1], 80
s_lshr_b32 s3, s2, 4
s_and_b32 s4, s2, 15
v_lshrrev_b32 v1, 4, v0
v_and_b32 v2, 15, v0
v_lshlrev_b32 v3, 15, v1
v_lshl_add_u32 v3, v2, 4, v3
s_lshl_b32 s5, s3, 17
s_lshl_b32 s6, s4, 8
s_add_u32 s5, s5, s6
s_mov_b32 s10, 0x200000
s_mov_b32 s11, 0x20000
s_mov_b32 s14, 32768
s_mov_b32 s15, 0x20000
s_waitcnt lgkmcnt(0)'''.split('\n'):
            a(s)
        for k in range(8):
            a('buffer_load_dwordx4 v[%d:%d], v3, s[8:11], s5 offen' % (8 + 4 * k, 11 + 4 * k))
            if k < 7:
                a('s_add_u32 s5, s5, 4096')
        for s in '''s_and_b32 s6, s3, 7
s_lshl_b32 s6, s6, 12
s_lshr_b32 s7, s3, 3
s_lshl_b32 s7, s7, 11
s_add_u32 s6, s6, s7
s_lshl_b32 s7, s4, 7
s_add_u32 s6, s6, s7
v_lshl_add_u32 v4, v2, 3, s6'''.split('\n'):
            a(s)
        for k in range(1, 8):
            a('s_waitcnt vmcnt(%d)' % (7 - k))
            for r in range(4):
                a('v_add_f32 v%d, v%d, v%d' % (8 + r, 8 + r, 8 + 4 * k + r))
        for swap in ('v_permlane32_swap_b32', 'v_permlane16_swap_b32'):
            for r in range(4):
                a('v_mov_b32 v%d, v%d' % (12 + r, 8 + r))
            a('s_nop 1')
            for r in range(4):
                a('%s v%d, v%d' % (swap, 8 + r, 12 + r))
            a('s_nop 1')
            for r in range(4):
                a('v_add_f32 v%d, v%d, v%d' % (8 + r, 8 + r, 12 + r))
        a('v_cvt_pk_bf16_f32 v8, v8, v9')
        a('v_cvt_pk_bf16_f32 v9, v10, v11')
        a('s_mov_b32 exec_lo, 0xffff')
        a('s_mov_b32 exec_hi, 0')
        a('buffer_store_dwordx2 v[8:9], v4, s[12:15], 0 offen')
        g.label('L_exit2')
        a('s_endpgm')
    if stamps:
        head += '; nst3=%d names: start %s\n' % (nst_stream + 1, ' '.join(names))
    return head + '\n'.join(g.L) + '\n' + tail


if __name__ == '__main__':
    import json
    kw = json.loads(sys.argv[2]) if len(sys.argv) > 2 else {}
    src = gen(**kw)
    open(sys.argv[1], 'w').write(src)
```

```python
import sys, math, struct

NAME = 'concat_heads__mha_block_cached__mha_block_cached__decode'
HEADER = open('cdna_kernels/' + NAME + '.s.ref').read().split('; Override launch')[0]

DESIGN = """
One launch, 256 workgroups (one per CU), 5 waves each.  Workgroup (h, j): head h, batch j of both modules.
The 1 GiB of K/V is streamed in four chip-wide phases K_A, V_A, K_B, V_B (one large buffer at a time: reading
several at once costs up to 13 % of the HBM rate, depending on where they were allocated).
 waves 0-3  stream with five 1 KiB loads in flight each (enough to fill HBM, few enough to share it evenly).
            K pass: v_dot2 + DPP reduction -> 1024 scores per wave in 16 registers; exact softmax per wave
            (true maximum); V pass: p on the diagonal of the MFMA A operand, V rows as the B operand.
 wave 4     hand-offs through d_ws.  Every word carries a tag derived from a word at WS_EPOCH that the launch
            moves on at its end, so words of an earlier launch are never taken for this launch's.
   H1  x @ wq: (h, j) multiplies rows 128j..128j+127 for all batches, the 8 workgroups of a head swap partial sums
   H2  the 8 workgroups of a head swap their attention outputs; (h, j) multiplies with columns 128j..128j+127 of wo
   H3  the 32 workgroups of a column slice swap partial outputs; each sums 64 outputs over the heads
            While the stream runs it also trims the loads in flight by a few percent from the progress words of
            the neighbours, so that all workgroups finish together.  That affects speed only.
"""


def f32bits(x):
    return struct.unpack('<I', struct.pack('<f', x))[0]


CSCALE = (128 ** -0.5) * math.log2(math.e)
WS_H3 = 0
WS_H1 = 2 << 20
WS_H2 = 4 << 20
WS_EPOCH = 5 << 20
WS_CTL = (5 << 20) + 65536
WS_END = 6 << 20
WS_STAMP = 8 << 20
L_Q = 0
L_ACC = 512
L_ML = 4608
L_O = 4672
L_CTL = 9152
L_STG = 9216
L_W = 17664
L_END = L_W + 65536


class Asm:
    def __init__(self):
        self.L = []
        self.q = []

    def a(self, s):
        self.L.append('    ' + s)

    def c(self, s):
        self.L.append('    ; ' + s)

    def label(self, s):
        self.L.append(s + ':')

    def vm(self, tag, s):
        self.a(s)
        self.q.append(tag)
        assert len(self.q) <= 63

    def wait_tag(self, tag):
        idx = [i for i, t in enumerate(self.q) if t == tag]
        if idx:
            self.a('s_waitcnt vmcnt(%d)' % (len(self.q) - 1 - idx[-1]))
            self.q = self.q[idx[-1] + 1:]

    def limit(self, n):
        if len(self.q) > n:
            self.a('s_waitcnt vmcnt(%d)' % n)
            self.q = self.q[len(self.q) - n:] if n else []


def gen(W=5, D=8, T=8, early=8, x0=4, win=10, sleep=2, sleep3=2, tmo=1 << 20, stamps=False,
        chk=((18, 29, 31),), umax=4, uflex=8, umin=-8, lpar=(8, -24), xg=10, xp=4, xoff=8, xlast=26,
        ltrig=8, b2at=28, lastchk=False):
    g = Asm()
    a, c = g.a, g.c
    nchk = len(chk)
    assert W + 1 < D <= 32
    sX, sWQ, sK, sV, sWO = (32, 36), (40, 44), (48, 56), (52, 60), (64, 68)
    sWS, sOut = 72, 32
    sTag, sH, sJ, sOff, sCnt, sT0, sT1, sC = 76, 77, 78, 79, 80, 81, 82, 83
    sB1, sB0, sN8 = 86, 88, 90
    sMt, sBase, sL, sLdsW, sWOff, sH1, sT8, sU = 92, 93, 94, 95, 96, 97, 84, 85
    sOwn, sLine, sThi = 36, 38, 39
    sXo, sXa, sXb, sXr = 40, 41, 42, 43
    vLane, vT0, vT1, vT2, vT3 = 1, 2, 3, 4, 5
    vHi, vNat = 6, 7
    vMask = 8
    vAcc = 12
    vA = (16, 20)
    vS, vPa, vCc = 24, 28, 32
    vNeg, vTmp, vTr, vW = 36, 37, 38, 39
    vZ = 40
    vQn = 72
    vXf = (76, 92)
    vTr1, vW1, vH1, vCtl, vOne, vU = 108, 109, 110, 111, 120, 121
    vWf = (40, 224)
    vQD = (24, 112)
    vRing = 128
    DPPF = 'row_mask:0xf bank_mask:0x%x'
    nst = [0]
    names = []

    def stamp(name):
        if stamps:
            names.append(name)
            a('s_memrealtime s[%d:%d]' % (4 + 2 * nst[0], 5 + 2 * nst[0]))
            nst[0] += 1

    def write_stamps(n):
        a('s_waitcnt vmcnt(0) lgkmcnt(0)')
        a('s_mov_b64 exec, -1')
        a('s_getreg_b32 s99, hwreg(HW_REG_XCC_ID)')
        a('v_mov_b32 v%d, s99' % vT2)
        a('v_writelane_b32 v%d, s98, 0' % vT2)
        for i in range(n):
            a('v_writelane_b32 v%d, s%d, %d' % (vT2, 4 + 2 * i, i + 1))
        a('s_mul_i32 s%d, s2, 5' % sT0)
        a('s_add_u32 s%d, s%d, s3' % (sT0, sT0))
        a('s_lshl_b32 s%d, s%d, 8' % (sT0, sT0))
        a('s_add_u32 s%d, s%d, 0x%x' % (sT0, sT0, WS_STAMP))
        a('v_lshl_add_u32 v%d, v%d, 2, s%d' % (vT3, vLane, sT0))
        a('buffer_store_dword v%d, v%d, s[%d:%d], 0 offen' % (vT2, vT3, sWS, sWS + 3))

    def srd(d, p, size):
        a('s_mov_b32 s%d, s%d' % (d, p))
        a('s_mov_b32 s%d, s%d' % (d + 1, p + 1))
        a('s_mov_b32 s%d, 0x%x' % (d + 2, size))
        a('s_mov_b32 s%d, 0x20000' % (d + 3))

    def make_tag():
        c('tag = next value of a full-period generator: differs from the old word, also in its low byte')
        a('s_waitcnt lgkmcnt(0)')
        a('s_mul_i32 s%d, s%d, 0x19660d' % (sTag, sTag))
        a('s_add_u32 s%d, s%d, 0x3c6ef35f' % (sTag, sTag))

    def weight_voffsets(shift):
        c('16-byte chunk k of row r lands in slot k ^ (2*(r&3) + 8*((r>>3)&1)): conflict-free transposed reads')
        a('v_lshlrev_b32 v%d, 1, v%d' % (vW, vT1))
        a('v_xor_b32 v%d, v%d, v%d' % (vW, vW, vT0))
        a('v_lshlrev_b32 v%d, 4, v%d' % (vW, vW))
        a('v_lshl_add_u32 v%d, v%d, %d, v%d' % (vW, vT1, shift, vW))
        a('v_xor_b32 v%d, 128, v%d' % (vW1, vW))

    K1 = NAME + '_kernel'
    g.L += ['.amdgcn_target "amdgcn-amd-amdhsa--gfx950"', '.text', '.globl %s' % K1, '.p2align 8', '.type %s,@function' % K1]
    g.label(K1)
    a('s_cmp_ge_u32 s2, 256')
    a('s_cbranch_scc1 L_exit')
    if stamps:
        a('s_memrealtime s[98:99]')
    a('s_load_dwordx16 s[4:19], s[0:1], 0')
    a('s_load_dwordx8 s[20:27], s[0:1], 64')
    a('s_load_dwordx2 s[28:29], s[0:1], 96')
    a('v_lshrrev_b32 v%d, 6, v0' % vT0)
    a('v_and_b32 v%d, 63, v0' % vLane)
    a('v_readfirstlane_b32 s3, v%d' % vT0)
    c('h = (id & 7) + 8*(id >> 6), j = (id >> 3) & 7')
    a('s_lshr_b32 s%d, s2, 6' % sH)
    a('s_lshl_b32 s%d, s%d, 3' % (sH, sH))
    a('s_and_b32 s%d, s2, 7' % sT0)
    a('s_add_u32 s%d, s%d, s%d' % (sH, sH, sT0))
    a('s_bfe_u32 s%d, s2, 0x30003' % sJ)
    a('s_mov_b32 s%d, 0x%x' % (sH1, WS_EPOCH))
    a('v_and_b32 v%d, 15, v%d' % (vT0, vLane))
    a('v_lshrrev_b32 v%d, 4, v%d' % (vT1, vLane))
    a('v_lshlrev_b32 v%d, 4, v%d' % (vNat, vLane))
    a('s_cmp_eq_u32 s3, 4')
    a('s_waitcnt lgkmcnt(0)')
    a('s_load_dword s%d, s[28:29], s%d' % (sTag, sH1))
    srd(sWS, 28, (WS_STAMP + (1 << 20)) if stamps else WS_END)
    a('s_cbranch_scc1 L_comm')

    c('================ waves 0-3')
    srd(sWQ[0], 10, 1 << 23)
    srd(sX[0], 4, 16384)
    c('wq rows 128j + 32w .. + 31, columns of head h -> LDS [128 rows][256 B], four rows per instruction')
    weight_voffsets(13)
    a('s_lshl_b32 s%d, s%d, 20' % (sT0, sJ))
    a('s_lshl_b32 s%d, s%d, 8' % (sT1, sH))
    a('s_add_u32 s%d, s%d, s%d' % (sT0, sT0, sT1))
    a('s_lshl_b32 s%d, s3, 18' % sT1)
    a('s_add_u32 s%d, s%d, s%d' % (sWOff, sT0, sT1))
    a('s_lshl_b32 s%d, s3, 13' % sLdsW)
    c('x fragments: lane (n, g) holds x[n & 7][128j + 32kb + 8g ..]')
    vXa = vAcc
    a('v_and_b32 v%d, 7, v%d' % (vXa, vLane))
    a('v_lshlrev_b32 v%d, 11, v%d' % (vXa, vXa))
    a('v_lshl_add_u32 v%d, v%d, 4, v%d' % (vXa, vT1, vXa))
    a('s_lshl_b32 s%d, s%d, 8' % (sT1, sJ))
    srd(sX[1], 14, 16384)
    for mod in range(2):
        for kb in range(4):
            r = vXf[mod] + 4 * kb
            g.vm('w', 'buffer_load_dwordx4 v[%d:%d], v%d, s[%d:%d], s%d offen offset:%d' % (r, r + 3, vXa, sX[mod], sX[mod] + 3, sT1, 64 * kb))
    for mod in range(2):
        if mod:
            srd(sWQ[1], 20, 1 << 23)
        for i in range(8):
            a('s_add_u32 m0, s%d, %d' % (sLdsW, L_W + mod * 32768 + i * 1024))
            a('s_add_u32 s%d, s%d, %d' % (sT0, sWOff, i * 4 * 8192))
            g.vm('w', 'buffer_load_dwordx4 v%d, s[%d:%d], s%d offen nt lds' % (vW1 if i & 2 else vW, sWQ[mod], sWQ[mod] + 3, sT0))
    srd(sK[0], 6, 1 << 28)
    c('K/V of (batch j, head h): the four waves take tiles of %d KiB in turn' % T)
    a('s_lshl_b32 s%d, s%d, 5' % (sBase, sJ))
    a('s_add_u32 s%d, s%d, s%d' % (sBase, sBase, sH))
    a('s_lshl_b32 s%d, s%d, 20' % (sBase, sBase))
    a('s_mul_i32 s%d, s3, %d' % (sT0, T * 1024))
    a('s_add_u32 s%d, s%d, s%d' % (sBase, sBase, sT0))
    a('s_mov_b32 s%d, s%d' % (sOff, sBase))

    def ring_load(srd_, j):
        r = vRing + 4 * (j & 31)
        g.vm('R%d' % (j & 31), 'buffer_load_dwordx4 v[%d:%d], v%d, s[%d:%d], s%d offen offset:%d nt' % (r, r + 3, vNat, srd_, srd_ + 3, sOff, 1024 * (j & 3)))
        if j & 3 == 3:
            a('s_add_u32 s%d, s%d, %d' % (sOff, sOff, 4096 if (j + 1) % T else 3 * T * 1024 + 4096))

    for j in range(early):
        ring_load(sK[0], j)
    srd(sV[0], 8, 1 << 28)
    srd(sK[1], 16, 1 << 28)
    srd(sV[1], 18, 1 << 28)
    c('transposed-read address: (8g + r)*256 + ((4w + 2cb) ^ (2r + 8(g&1)))*16 + (l&3)*8,  r = (l>>2)&3')
    a('v_lshrrev_b32 v%d, 2, v%d' % (vTmp, vT0))
    a('v_and_b32 v%d, 1, v%d' % (vTr, vT1))
    a('v_lshl_add_u32 v%d, v%d, 2, v%d' % (vTr, vTr, vTmp))
    a('s_lshl_b32 s%d, s3, 1' % sT0)
    a('v_xor_b32 v%d, s%d, v%d' % (vTr, sT0, vTr))
    a('v_lshlrev_b32 v%d, 5, v%d' % (vTr, vTr))
    a('v_lshl_add_u32 v%d, v%d, 11, v%d' % (vTr, vT1, vTr))
    a('v_lshl_add_u32 v%d, v%d, 8, v%d' % (vTr, vTmp, vTr))
    a('v_and_b32 v%d, 3, v%d' % (vT3, vLane))
    a('v_lshl_add_u32 v%d, v%d, 3, v%d' % (vTr, vT3, vTr))
    a('v_xor_b32 v%d, 32, v%d' % (vTr1, vTr))
    a('v_add_u32 v%d, %d, v%d' % (vTr, L_W, vTr))
    a('v_add_u32 v%d, %d, v%d' % (vTr1, L_W, vTr1))
    a('s_mov_b32 s%d, 0x%08x' % (sC, f32bits(CSCALE)))
    for reg, val in ((sB1, 0xcccccccc), (sB0, 0xaaaaaaaa), (sN8, 0xff00ff00)):
        a('s_mov_b32 s%d, 0x%08x' % (reg, val))
        a('s_mov_b32 s%d, 0x%08x' % (reg + 1, val))
    c('masks that put p on the diagonal of the A operand')
    a('v_mov_b32 v%d, 0xffff' % vNeg)
    a('v_mov_b32 v%d, 0xffff0000' % vTmp)
    a('v_cndmask_b32 v%d, v%d, v%d, s[%d:%d]' % (vNeg, vNeg, vTmp, sB0, sB0 + 1))
    a('v_bfe_u32 v%d, v%d, 1, 2' % (vTmp, vLane))
    for rr in range(4):
        a('v_cmp_eq_u32 vcc, %d, v%d' % (rr, vTmp))
        a('s_nop 1')
        a('v_cndmask_b32 v%d, 0, v%d, vcc' % (vMask + rr, vNeg))
    c('staging address of the q partials: (n&7)*1040 + w*128 + (n>>3)*64 + g*16')
    a('v_and_b32 v%d, 7, v%d' % (vTmp, vLane))
    a('v_mul_u32_u24 v%d, 1040, v%d' % (vH1, vTmp))
    a('v_bfe_u32 v%d, v%d, 3, 1' % (vTmp, vLane))
    a('v_lshl_add_u32 v%d, v%d, 6, v%d' % (vH1, vTmp, vH1))
    a('v_lshl_add_u32 v%d, v%d, 4, v%d' % (vH1, vT1, vH1))
    a('s_lshl_b32 s%d, s3, 7' % sT0)
    a('v_add_u32 v%d, s%d, v%d' % (vH1, sT0, vH1))

    def tr_reads(dst, mod):
        for cb in range(2):
            for kb in range(4):
                for hh in range(2):
                    r = dst + (cb * 4 + kb) * 4 + 2 * hh
                    a('ds_read_b64_tr_b16 v[%d:%d], v%d offset:%d' % (r, r + 1, vTr1 if cb else vTr, mod * 32768 + kb * 8192 + hh * 1024))

    def proj_mfma(d, wf, xf):
        for kb in range(4):
            for cb in range(2):
                w = wf + (cb * 4 + kb) * 4
                dd = d + 4 * cb
                a('v_mfma_f32_16x16x32_bf16 v[%d:%d], v[%d:%d], v[%d:%d], %s' % (dd, dd + 3, w, w + 3, xf + 4 * kb, xf + 4 * kb + 3, '0' if kb == 0 else 'v[%d:%d]' % (dd, dd + 3)))

    def select_tag(dst, d):
        for r in range(4):
            a('v_cndmask_b32 v%d, v%d, v%d, s[%d:%d]' % (dst + r, d + r, d + 4 + r, sN8, sN8 + 1))
        for r in range(4):
            a('v_bfi_b32 v%d, v%d, v%d, v%d' % (dst + r, vTmp, vNeg, dst + r))

    a('v_mov_b32 v%d, 0xff' % vTmp)
    a('v_mov_b32 v%d, 0' % vCtl)
    a('v_mov_b32 v%d, 1' % vOne)
    a('s_mov_b32 s%d, 0' % sU)
    c('wave 0 shares its SIMD with wave 4 and would fall behind while that one works: a head start')
    assert early % 4 == 0 and 0 < x0 <= 4 and early + x0 <= 24
    a('s_cmp_lg_u32 s3, 0')
    a('s_cbranch_scc1 L_x0a')
    q0 = list(g.q)
    for j in range(early, early + x0):
        ring_load(sK[0], j)
    g.wait_tag('w')
    a('s_branch L_x0b')
    g.label('L_x0a')
    g.q = q0
    g.wait_tag('w')
    g.label('L_x0b')
    a('s_barrier')
    c('B0: all rows of wq_A and wq_B have landed')
    stamp('B0')
    for mod in range(2):
        tr_reads(vWf[mod], mod)
    for mod in range(2):
        a('s_waitcnt lgkmcnt(%d)' % (15 if mod == 0 else 0))
        proj_mfma(vQD[mod], vWf[mod], vXf[mod])
    make_tag()
    a('v_mov_b32 v%d, s%d' % (vNeg, sTag))
    for mod in range(2):
        a('s_nop 0')
        select_tag(vA[mod], vQD[mod])
        a('ds_write_b128 v%d, v[%d:%d] offset:%d' % (vH1, vA[mod], vA[mod] + 3, L_STG + mod * 512))
    a('s_waitcnt lgkmcnt(0)')
    a('s_barrier')
    c('B0b: wave 4 sends the partials out; fill the ring with K meanwhile')
    stamp('stg')
    a('s_cmp_eq_u32 s3, 0')
    a('s_cbranch_scc1 L_x0c')
    for j in range(early, 32):
        if j == early + x0:
            g.label('L_x0c')
            a('s_waitcnt vmcnt(%d)' % (win - 1))
            g.q = g.q[-(win - 1):]
        else:
            g.limit(win - 1)
        ring_load(sK[0], j)
    stamp('ring')
    a('s_barrier')
    c('B1: q is in LDS')
    stamp('B1')

    def pos(tau, r):
        return 8 * (r & 1) + 4 * (r >> 1) + 2 * (tau & 1) + (tau >> 1)

    def rotate():
        for i in range(14):
            a('v_mov_b32 v%d, v%d' % (vZ + i, vZ + i + 2))

    def k_group(refill):
        rotate()
        p, cc = vPa, vCc
        for i in range(32):
            k, r = divmod(i, 4)
            g.wait_tag('R%d' % i)
            for e in range(4):
                a('v_dot2_f32_bf16 v%d, v%d, v%d, %s' % (p + r, vRing + 4 * i + e, vQn + e, '0' if e == 0 else 'v%d' % (p + r)))
            refill(i)
            if r == 3:
                a('v_add_f32_dpp v%d, v%d, v%d row_mirror %s' % (p, p, p, DPPF % 3))
                a('v_add_f32_dpp v%d, v%d, v%d row_mirror %s' % (p, p + 1, p + 1, DPPF % 12))
                a('v_add_f32_dpp v%d, v%d, v%d row_mirror %s' % (p + 2, p + 2, p + 2, DPPF % 3))
                a('v_add_f32_dpp v%d, v%d, v%d row_mirror %s' % (p + 2, p + 3, p + 3, DPPF % 12))
                a('s_nop 0')
                a('v_add_f32_dpp v%d, v%d, v%d row_half_mirror %s' % (cc + (k & 3), p, p, DPPF % 5))
                a('v_add_f32_dpp v%d, v%d, v%d row_half_mirror %s' % (cc + (k & 3), p + 2, p + 2, DPPF % 10))
            if i & 15 == 15:
                for t in range(4):
                    a('v_add_f32_dpp v%d, v%d, v%d quad_perm:[2,3,0,1] %s' % (cc + t, cc + t, cc + t, DPPF % 15))
                a('v_cndmask_b32 v%d, v%d, v%d, s[%d:%d]' % (cc, cc, cc + 1, sB1, sB1 + 1))
                a('v_cndmask_b32 v%d, v%d, v%d, s[%d:%d]' % (cc + 2, cc + 2, cc + 3, sB1, sB1 + 1))
                a('s_nop 0')
                a('v_add_f32_dpp v%d, v%d, v%d quad_perm:[1,0,3,2] %s' % (cc, cc, cc, DPPF % 15))
                a('v_add_f32_dpp v%d, v%d, v%d quad_perm:[1,0,3,2] %s' % (cc + 2, cc + 2, cc + 2, DPPF % 15))
                a('v_cndmask_b32 v%d, v%d, v%d, s[%d:%d]' % (vZ + 14 + (i >> 4), cc, cc + 2, sB0, sB0 + 1))

    def v_group(refill):
        def build(i):
            for rr in range(4):
                a('v_and_b32_dpp v%d, v%d, v%d row_newbcast:%d %s' % (vA[i & 1] + rr, vZ + (i >> 4), vMask + rr, pos((i >> 2) & 3, i & 3), DPPF % 15))
        build(0)
        for i in range(32):
            if i < 31:
                build(i + 1)
            else:
                a('s_nop 1')
            g.wait_tag('R%d' % i)
            b = vRing + 4 * i
            a('v_mfma_f32_16x16x32_bf16 v[%d:%d], v[%d:%d], v[%d:%d], v[%d:%d]' % (vAcc, vAcc + 3, vA[i & 1], vA[i & 1] + 3, b, b + 3, vAcc, vAcc + 3))
            refill(i)
        rotate()

    uid = [0]

    def signal(word):
        a('s_mov_b64 exec, 1')
        a('ds_add_u32 v%d, v%d offset:%d' % (vCtl, vOne, L_CTL + 4 * word))
        a('s_mov_b64 exec, -1')

    def paced(srd_, i, j):
        r = int('{:04b}'.format(i >> 1)[::-1], 2)
        if i % 2 == 0 and len(g.q) >= W - 1 and r < uflex:
            uid[0] += 1
            g.limit(W)
            a('s_cmp_gt_i32 s%d, %d' % (sU, r))
            a('s_cbranch_scc1 L_u%d' % uid[0])
            a('s_waitcnt vmcnt(%d)' % (W - 1))
            a('s_cmp_ge_i32 s%d, %d' % (sU, -r))
            a('s_cbranch_scc1 L_u%d' % uid[0])
            a('s_waitcnt vmcnt(%d)' % (W - 2))
            g.label('L_u%d' % uid[0])
        else:
            g.limit(W - 1)
        ring_load(srd_, j)

    def group(body, refill, upto=32):
        def take():
            a('s_waitcnt lgkmcnt(0)')
            a('v_readfirstlane_b32 s%d, v%d' % (sU, vU))

        def rf(i):
            refill(i)
            for sa, sr, sx in chk:
                if sx < upto:
                    if i == sa:
                        signal(0)
                    if i == sr:
                        a('ds_read_b32 v%d, v%d offset:%d' % (vU, vCtl, L_CTL + 4))
                    if i == sx and sx < 31:
                        take()
        body(rf)
        if chk[-1][2] == 31 and upto == 32:
            take()

    def phase(name, body, srd_, srd_next, trips):
        g.limit(W)
        steady = ['R%d' % j for j in range(D - W, D)]
        assert g.q == steady[len(steady) - len(g.q):]
        g.q = list(steady)
        a('s_mov_b32 s%d, %d' % (sCnt, trips))
        g.label(name)
        group(body, lambda i: paced(srd_, i, i + D))
        assert g.q == steady
        a('s_sub_u32 s%d, s%d, 1' % (sCnt, sCnt))
        a('s_cmp_lg_u32 s%d, 0' % sCnt)
        a('s_cbranch_scc1 %s' % name)

        def last(i):
            if i + D < 32:
                paced(srd_, i, i + D)
            elif srd_next is not None:
                if i + D == 32:
                    a('s_mov_b32 s%d, s%d' % (sOff, sBase))
                paced(srd_next, i, i + D)
            if srd_next is None and i == b2at:
                signal(3)
        c('last group of the phase: the look-ahead crosses into the next buffer')
        group(body, last, 32 if srd_next is not None else (24 if lastchk else 0))

    def wave_reduce(op, v):
        for ctl in ('row_mirror', 'row_half_mirror', 'quad_perm:[2,3,0,1]', 'quad_perm:[1,0,3,2]'):
            a('s_nop 1')
            a('%s_dpp v%d, v%d, v%d %s %s' % (op, v, v, v, ctl, DPPF % 15))
        a('s_nop 1')
        a('%s_dpp v%d, v%d, v%d row_bcast:15 row_mask:0xa bank_mask:0xf' % (op, v, v, v))
        a('s_nop 1')
        a('%s_dpp v%d, v%d, v%d row_bcast:31 row_mask:0xc bank_mask:0xf' % (op, v, v, v))
        a('s_nop 0')

    def softmax():
        c('softmax of this wave\'s 1024 scores: m = max, p = 2^(c*s - c*m), l = sum p')
        a('v_max3_f32 v%d, v%d, v%d, v%d' % (vTmp, vZ, vZ + 1, vZ + 2))
        for i in range(3, 15, 2):
            a('v_max3_f32 v%d, v%d, v%d, v%d' % (vTmp, vTmp, vZ + i, vZ + i + 1))
        a('v_max_f32 v%d, v%d, v%d' % (vTmp, vTmp, vZ + 15))
        wave_reduce('v_max_f32', vTmp)
        a('v_readlane_b32 s%d, v%d, 63' % (sMt, vTmp))
        a('v_mov_b32 v%d, s%d' % (vNeg, sC))
        a('s_nop 0')
        a('v_mul_f32 v%d, s%d, v%d' % (vNeg, sMt, vNeg))
        for i in range(16):
            a('v_fma_f32 v%d, v%d, s%d, -v%d' % (vZ + i, vZ + i, sC, vNeg))
        for i in range(16):
            a('v_exp_f32 v%d, v%d' % (vZ + i, vZ + i))
        for r in range(4):
            a('v_mov_b32 v%d, 0' % (vAcc + r))
        a('v_add_f32 v%d, v%d, v%d' % (vS, vZ, vZ + 1))
        for i in range(2, 16):
            a('v_add_f32 v%d, v%d, v%d' % (vS, vS, vZ + i))
        for i in range(16):
            a('v_cvt_pk_bf16_f32 v%d, v%d, v%d' % (vZ + i, vZ + i, vZ + i))
        wave_reduce('v_add_f32', vS)
        a('v_readlane_b32 s%d, v%d, 63' % (sL, vS))
        a('v_lshlrev_b32 v%d, 5, v%d' % (vT2, vT0))
        a('v_lshl_add_u32 v%d, v%d, 4, v%d' % (vT2, vT1, vT2))
        a('s_lshl_b32 s%d, s3, 9' % sT0)
        a('v_add_u32 v%d, s%d, v%d' % (vT2, sT0, vT2))
        a('s_lshl_b32 s%d, s3, 3' % sT0)
        a('v_mov_b32 v%d, s%d' % (vT3, sT0))
        a('v_mov_b32 v%d, s%d' % (vPa, sMt))
        a('v_mov_b32 v%d, s%d' % (vPa + 1, sL))

    for mod in range(2):
        c('---------------- K pass, module %s' % 'AB'[mod])
        a('v_lshlrev_b32 v%d, 4, v%d' % (vNeg, vT0))
        a('ds_read_b128 v[%d:%d], v%d offset:%d' % (vQn, vQn + 3, vNeg, L_Q + 256 * mod))
        a('s_waitcnt lgkmcnt(0)')
        if mod == 0:
            c('the ring was filled 32 deep while q was on its way: the look-ahead shrinks to %d over this group' % D)
            nxt = [32]

            def shrink(i):
                while nxt[0] < 32 + (i + 1) * D // 32:
                    paced(sK[0], i, nxt[0])
                    nxt[0] += 1
            group(k_group, shrink)
        phase('L_k%d' % mod, k_group, sK[mod], sV[mod], 6 if mod == 0 else 7)
        stamp('K%d' % mod)
        softmax()
        c('---------------- V pass, module %s' % 'AB'[mod])
        phase('L_v%d' % mod, v_group, sV[mod], sK[1] if mod == 0 else None, 7)
        stamp('V%d' % mod)
        c('leave (acc, m, l) in LDS')
        a('s_mov_b32 exec_hi, 0')
        a('ds_write_b128 v%d, v[%d:%d] offset:%d' % (vT2, vAcc, vAcc + 3, L_ACC + 2048 * mod))
        a('s_mov_b32 exec_lo, 1')
        a('ds_write_b64 v%d, v[%d:%d] offset:%d' % (vT3, vPa, vPa + 1, L_ML + 32 * mod))
        a('s_mov_b64 exec, -1')
    c('---------------- combine the four waves: thread t -> module t>>7, d = t&127')
    a('v_lshrrev_b32 v%d, 7, v0' % vT2)
    a('v_lshlrev_b32 v%d, 5, v%d' % (vT3, vT2))
    a('v_lshlrev_b32 v%d, 11, v%d' % (vT2, vT2))
    a('v_and_b32 v%d, 127, v0' % vNeg)
    a('v_lshl_add_u32 v%d, v%d, 2, v%d' % (vT2, vNeg, vT2))
    a('s_lshl_b32 s%d, s%d, 3' % (sT0, sH))
    a('s_add_u32 s%d, s%d, s%d' % (sT0, sT0, sJ))
    a('s_lshl_b32 s%d, s%d, 10' % (sT0, sT0))
    a('s_add_u32 s%d, s%d, 0x%x' % (sCnt, sT0, WS_H2))
    a('s_waitcnt lgkmcnt(0)')
    c('waves 0-3 meet on an LDS counter (wave 4 is busy)')
    signal(2)
    g.label('L_meet')
    a('ds_read_b32 v%d, v%d offset:%d' % (vU, vCtl, L_CTL + 8))
    a('s_waitcnt lgkmcnt(0)')
    a('v_cmp_gt_u32 vcc, 4, v%d' % vU)
    a('s_cbranch_vccnz L_meet')
    R = vS
    a('ds_read_b128 v[%d:%d], v%d offset:%d' % (R, R + 3, vT3, L_ML))
    a('ds_read_b128 v[%d:%d], v%d offset:%d' % (R + 4, R + 7, vT3, L_ML + 16))
    for w in range(4):
        a('ds_read_b32 v%d, v%d offset:%d' % (vA[0] + w, vT2, L_ACC + 512 * w))
    a('s_waitcnt lgkmcnt(4)')
    a('v_max3_f32 v%d, v%d, v%d, v%d' % (vT2, R, R + 2, R + 4))
    a('v_max_f32 v%d, v%d, v%d' % (vT2, vT2, R + 6))
    a('v_mul_f32 v%d, s%d, v%d' % (vNeg, sC, vT2))
    for w in range(4):
        a('v_fma_f32 v%d, v%d, s%d, -v%d' % (R + 2 * w, R + 2 * w, sC, vNeg))
    for w in range(4):
        a('v_exp_f32 v%d, v%d' % (R + 2 * w, R + 2 * w))
    a('s_nop 0')
    a('v_mul_f32 v%d, v%d, v%d' % (vT2, R, R + 1))
    for w in range(1, 4):
        a('v_fma_f32 v%d, v%d, v%d, v%d' % (vT2, R + 2 * w, R + 2 * w + 1, vT2))
    a('v_rcp_f32 v%d, v%d' % (vT2, vT2))
    a('s_waitcnt lgkmcnt(0)')
    a('v_mul_f32 v%d, v%d, v%d' % (vT3, R, vA[0]))
    for w in range(1, 4):
        a('v_fma_f32 v%d, v%d, v%d, v%d' % (vT3, R + 2 * w, vA[0] + w, vT3))
    a('v_mul_f32 v%d, v%d, v%d' % (vT3, vT3, vT2))
    c('H2: publish o as {two bf16, tag}')
    a('v_mov_b32 v%d, s%d' % (vA[1] + 1, sTag))
    a('v_lshlrev_b32 v%d, 2, v0' % vNeg)
    a('v_mov_b32_dpp v%d, v%d quad_perm:[1,0,3,2] %s' % (vT2, vT3, DPPF % 15))
    a('v_cvt_pk_bf16_f32 v%d, v%d, v%d' % (vA[1], vT3, vT2))
    a('s_mov_b32 exec_lo, 0x55555555')
    a('s_mov_b32 exec_hi, 0x55555555')
    a('buffer_store_dwordx2 v[%d:%d], v%d, s[%d:%d], s%d offen sc1' % (vA[1], vA[1] + 1, vNeg, sWS, sWS + 3, sCnt))
    a('s_mov_b64 exec, -1')
    stamp('pubo')
    vWO, vOf, vD = vRing, vRing + 64, vRing + 96
    c('o fragment address: (n&7)*272 + g*16')
    a('v_and_b32 v%d, 7, v%d' % (vT2, vLane))
    a('v_mul_u32_u24 v%d, 272, v%d' % (vT3, vT2))
    a('v_lshl_add_u32 v%d, v%d, 4, v%d' % (vT3, vT1, vT3))
    a('v_bfe_u32 v%d, v%d, 3, 1' % (vNeg, vLane))
    c('H3 address: (j*32 + h)*8192 + mod*4096 + b*512 + w*128 + (n>>3)*64 + g*16')
    a('v_lshlrev_b32 v%d, 9, v%d' % (vT2, vT2))
    a('s_lshl_b32 s%d, s%d, 5' % (sT0, sJ))
    a('s_add_u32 s%d, s%d, s%d' % (sT0, sT0, sH))
    a('s_lshl_b32 s%d, s%d, 13' % (sT0, sT0))
    a('s_lshl_b32 s%d, s3, 7' % sT1)
    a('s_add_u32 s%d, s%d, s%d' % (sT0, sT0, sT1))
    a('s_add_u32 s%d, s%d, 4096' % (sT1, sT0))
    a('v_lshl_add_u32 v%d, v%d, 6, v%d' % (vT2, vNeg, vT2))
    a('v_lshl_add_u32 v%d, v%d, 4, v%d' % (vT2, vT1, vT2))
    a('v_mov_b32 v%d, 0xff' % vTmp)
    a('v_mov_b32 v%d, s%d' % (vNeg, sTag))
    a('s_barrier')
    c('B3: wo is in LDS')
    for mod in range(2):
        tr_reads(vWO + 32 * mod, mod)
    a('s_barrier')
    c('B4: o of the 8 batches is in LDS')
    stamp('B4')
    for mod in range(2):
        for kb in range(4):
            r = vOf + 16 * mod + 4 * kb
            a('ds_read_b128 v[%d:%d], v%d offset:%d' % (r, r + 3, vT3, L_O + mod * 8 * 272 + kb * 64))
    for mod in range(2):
        a('s_waitcnt lgkmcnt(%d)' % (4 if mod == 0 else 0))
        proj_mfma(vD + 8 * mod, vWO + 32 * mod, vOf + 16 * mod)
    for mod in range(2):
        a('s_nop 0')
        select_tag(vD + 8 * mod, vD + 8 * mod)
        a('buffer_store_dwordx4 v[%d:%d], v%d, s[%d:%d], s%d offen sc1' % (vD + 8 * mod, vD + 8 * mod + 3, vT2, sWS, sWS + 3, (sT0, sT1)[mod]))
    if stamps:
        a('s_waitcnt vmcnt(0)')
        stamp('end')
        write_stamps(nst[0])
    nst_stream = nst[0]
    a('s_endpgm')

    g.label('L_comm')
    c('================ wave 4')
    nst[0] = 0
    names.append('|')
    vG = 16
    vBad, vWa, vWx = 80, 82, 83
    a('s_setprio 3')
    srd(sWO[0], 12, 1 << 23)
    srd(sWO[1], 22, 1 << 23)
    srd(sOut, 24, 32768)
    a('s_mov_b32 s%d, s%d' % (sBase, sH1))
    a('v_add_u32 v%d, 4096, v%d' % (vHi, vNat))
    a('s_lshl_b32 s%d, s%d, 16' % (sT0, sH))
    a('s_add_u32 s%d, s%d, 0x%x' % (sT0, sT0, WS_H1))
    a('s_lshl_b32 s%d, s%d, 13' % (sT1, sJ))
    a('s_add_u32 s%d, s%d, s%d' % (sOff, sT0, sT1))
    a('s_lshl_b32 s%d, s%d, 10' % (sT1, sJ))
    a('s_add_u32 s%d, s%d, s%d' % (sH1, sT0, sT1))
    a('v_lshlrev_b32 v%d, 3, v%d' % (vT3, vLane))
    npoll = [0]

    def poll(name, bytetag, slp, stride=0):
        a('s_mov_b32 s%d, 0x%x' % (sCnt, tmo))
        g.label(name)
        for p in range(8):
            if stride:
                a('s_add_u32 s%d, s%d, %d' % (sMt, sOff, p * stride))
                a('buffer_load_dwordx4 v[%d:%d], v%d, s[%d:%d], s%d offen sc1' % (vG + 4 * p, vG + 4 * p + 3, vHi, sWS, sWS + 3, sMt))
            else:
                a('buffer_load_dwordx4 v[%d:%d], v%d, s[%d:%d], s%d offen offset:%d sc1' % (vG + 4 * p, vG + 4 * p + 3, vHi if p & 4 else vNat, sWS, sWS + 3, sOff, 1024 * (p & 3)))
        a('v_mov_b32 v%d, 0' % vBad)
        for p in range(8):
            a('s_waitcnt vmcnt(%d)' % (7 - p))
            es = (0, 1, 2, 3) if bytetag else (1, 3)
            for e in es:
                a('v_xor_b32 v%d, s%d, v%d' % (vG + 4 * p + e, sT8 if bytetag else sTag, vG + 4 * p + e))
            for i in range(0, len(es), 2):
                a('v_or3_b32 v%d, v%d, v%d, v%d' % (vBad, vBad, vG + 4 * p + es[i], vG + 4 * p + es[i + 1]))
        if bytetag:
            a('v_and_b32 v%d, 0xff, v%d' % (vBad, vBad))
        a('v_cmp_ne_u32 vcc, 0, v%d' % vBad)
        a('s_cbranch_vccz %s_ok' % name)
        a('s_sleep %d' % slp)
        a('s_sub_u32 s%d, s%d, 1' % (sCnt, sCnt))
        a('s_cmp_lg_u32 s%d, 0' % sCnt)
        a('s_cbranch_scc1 %s' % name)
        g.label(name + '_ok')
        if stamps:
            a('s_sub_u32 s%d, 0x%x, s%d' % (20 + 2 * npoll[0], tmo, sCnt))
            npoll[0] += 1

    def sum8():
        b = vG
        for e in range(4):
            for p in range(0, 8, 2):
                a('v_add_f32 v%d, v%d, v%d' % (b + 4 * p + e, b + 4 * p + e, b + 4 * p + 4 + e))
            a('v_add_f32 v%d, v%d, v%d' % (b + e, b + e, b + 8 + e))
            a('v_add_f32 v%d, v%d, v%d' % (b + 16 + e, b + 16 + e, b + 24 + e))
            a('v_add_f32 v%d, v%d, v%d' % (b + e, b + e, b + 16 + e))

    def post(value_sgpr, soff, pol=''):
        a('v_mov_b32 v%d, s%d' % (vG + 1, value_sgpr))
        a('s_mov_b64 exec, 1')
        a(('buffer_store_dword v%d, v%d, s[%d:%d], s%d offen %s' % (vG + 1, vCtl, sWS, sWS + 3, soff, pol)).rstrip())

    a('v_mov_b32 v%d, 0' % vCtl)
    for r in range(4):
        a('v_mov_b32 v%d, 0' % (vG + r))
    a('ds_write_b128 v%d, v[%d:%d] offset:%d' % (vCtl, vG, vG + 3, L_CTL))
    a('s_barrier')
    make_tag()
    a('s_and_b32 s%d, s%d, 0xff' % (sT8, sTag))
    a('s_barrier')
    c('H1: send the partial sums for the 8 batches, gather the 8 partial sums for batch j')
    for p in range(8):
        a('ds_read_b128 v[%d:%d], v%d offset:%d' % (vG + 4 * p, vG + 4 * p + 3, vNat, L_STG + 1040 * p))
    for p in range(8):
        a('s_waitcnt lgkmcnt(%d)' % (7 - p))
        a('buffer_store_dwordx4 v[%d:%d], v%d, s[%d:%d], s%d offen sc1' % (vG + 4 * p, vG + 4 * p + 3, vNat, sWS, sWS + 3, sH1))
        a('s_add_u32 s%d, s%d, 8192' % (sH1, sH1))
    a('s_waitcnt vmcnt(0)')
    stamp('st')
    poll('L_pq', True, sleep)
    sum8()
    a('v_cvt_pk_bf16_f32 v%d, v%d, v%d' % (vG, vG, vG + 1))
    a('v_cvt_pk_bf16_f32 v%d, v%d, v%d' % (vG + 1, vG + 2, vG + 3))
    a('ds_write_b64 v%d, v[%d:%d] offset:%d' % (vT3, vG, vG + 1, L_Q))
    a('s_waitcnt lgkmcnt(0)')
    stamp('q')
    a('s_barrier')
    c('B1 passed.  wo rows 128h .. + 127, columns 128j .. + 127 will go where wq was')
    weight_voffsets(11)
    a('s_lshl_b32 s%d, s%d, 18' % (sT0, sH))
    a('s_lshl_b32 s%d, s%d, 8' % (sT1, sJ))
    a('s_add_u32 s%d, s%d, s%d' % (sWOff, sT0, sT1))
    a('s_lshl_b32 s%d, s%d, 13' % (sT0, sH))
    a('s_add_u32 s%d, s%d, 0x%x' % (sOff, sT0, WS_H2))
    c('LDS address of the gathered o: (l>>5)*8*272 + (l&31)*8')
    a('v_lshrrev_b32 v%d, 5, v%d' % (vT2, vLane))
    a('v_mul_u32_u24 v%d, %d, v%d' % (vT2, 8 * 272, vT2))
    a('v_and_b32 v%d, 31, v%d' % (vT3, vLane))
    a('v_lshl_add_u32 v%d, v%d, 3, v%d' % (vT2, vT3, vT2))
    a('v_add_u32 v%d, %d, v%d' % (vT2, L_O, vT2))
    a('v_add_u32 v%d, %d, v%d' % (vT3, 4 * 272, vT2))
    a('s_mov_b32 s%d, %d' % (sLdsW, L_W))
    c('Progress words (speed only): one per CU in a block per die, stored plainly and read through that die\'s L2.')
    c('The share of neighbours that are ahead trims the loads in flight; odd dies run a little faster by nature.')
    a('s_getreg_b32 s%d, hwreg(HW_REG_XCC_ID)' % sT0)
    a('s_and_b32 s%d, s%d, 15' % (sT0, sT0))
    a('s_bitcmp1_b32 s%d, 0' % sT0)
    a('s_cselect_b32 s%d, %d, %d' % (sC, 8 + lpar[1], 8 + lpar[0]))
    a('s_mul_i32 s%d, s%d, 4352' % (sT0, sT0))
    a('s_add_u32 s%d, s%d, 0x%x' % (sLine, sT0, WS_CTL))
    a('s_getreg_b32 s%d, hwreg(HW_REG_HW_ID, 13, 2)' % sT1)
    a('s_getreg_b32 s%d, hwreg(HW_REG_HW_ID, 8, 4)' % sT0)
    a('s_lshl_b32 s%d, s%d, 6' % (sT1, sT1))
    a('s_lshl_b32 s%d, s%d, 2' % (sT0, sT0))
    a('s_add_u32 s%d, s%d, s%d' % (sT1, sT1, sT0))
    a('s_add_u32 s%d, s%d, s%d' % (sOwn, sLine, sT1))
    a('v_lshlrev_b32 v%d, 2, v%d' % (vWa, vLane))
    c('Every %d groups one workgroup per die compares with the other dies; slot 63 passes the result on.' % xp)
    a('v_mul_u32_u24 v%d, 4352, v%d' % (vWx, vLane))
    a('s_add_u32 s%d, s%d, 0x10000' % (sXo, sLine))
    a('s_mov_b32 s%d, 0x%x' % (sXa, WS_CTL + 0x10000))
    a('s_add_u32 s%d, s%d, 252' % (sXb, sLine))
    a('s_lshr_b32 s%d, s2, 3' % sXr)
    a('s_and_b32 s%d, s%d, %d' % (sT0, sXr, xp - 1))
    a('s_cmp_eq_u32 s%d, 0' % sT0)
    a('s_cselect_b32 s%d, s%d, 0' % (sXr, sXr))
    a('s_cmp_le_u32 s%d, %d' % (sXr, xlast))
    a('s_cselect_b32 s%d, s%d, 0' % (sXr, sXr))
    if nchk > 1:
        a('s_mul_i32 s%d, s%d, %d' % (sXr, sXr, nchk))
    a('s_and_b32 s%d, s%d, 0xffffff00' % (sThi, sTag))
    a('s_mov_b32 s%d, 1' % sL)
    if stamps:
        a('s_mov_b32 s18, 0')
        a('s_mov_b32 s16, 0')
    g.label('L_ctl')
    a('s_lshl_b32 s%d, s%d, 2' % (sT0, sL))
    a('s_sub_u32 s%d, s%d, 2' % (sT0, sT0))
    g.label('L_ctla')
    a('s_sleep 1')
    a('ds_read_b32 v%d, v%d offset:%d' % (vG, vCtl, L_CTL))
    a('s_waitcnt lgkmcnt(0)')
    a('v_cmp_gt_u32 vcc, s%d, v%d' % (sT0, vG))
    a('s_cbranch_vccnz L_ctla')
    a('s_or_b32 s%d, s%d, s%d' % (sMt, sThi, sL))
    a('s_cmp_lg_u32 s%d, s%d' % (sL, sXr))
    a('s_cbranch_scc1 L_ctlb')
    a('s_mov_b64 exec, 0xff')
    a('buffer_load_dword v%d, v%d, s[%d:%d], s%d offen sc1' % (vG + 3, vWx, sWS, sWS + 3, sXa))
    post(sMt, sXo, 'sc1')
    a('s_mov_b64 exec, -1')
    g.label('L_ctlb')
    post(sMt, sOwn)
    a('s_mov_b64 exec, -1')
    a('buffer_load_dword v%d, v%d, s[%d:%d], s%d offen sc1' % (vG + 2, vWa, sWS, sWS + 3, sLine))
    a('s_waitcnt vmcnt(0)')
    a('v_xor_b32 v%d, s%d, v%d' % (vG + 2, sThi, vG + 2))
    a('s_cmp_lg_u32 s%d, s%d' % (sL, sXr))
    a('s_cbranch_scc1 L_ctly')
    a('v_xor_b32 v%d, s%d, v%d' % (vG + 3, sThi, vG + 3))
    a('v_subrev_u32 v%d, s%d, v%d' % (vG + 3, sL, vG + 3))
    a('s_mov_b64 exec, 0xff')
    a('v_cmp_gt_u32 vcc, 64, v%d' % (vG + 3))
    a('s_nop 1')
    a('s_bcnt1_i32_b64 s%d, vcc' % sU)
    if stamps:
        a('s_add_u32 s16, s16, s%d' % sU)
    a('s_mul_i32 s%d, s%d, %d' % (sU, sU, xg))
    a('s_min_u32 s%d, s%d, 63' % (sU, sU))
    a('s_or_b32 s%d, s%d, 128' % (sU, sU))
    a('s_or_b32 s%d, s%d, s%d' % (sU, sU, sThi))
    post(sU, sXb)
    a('s_mov_b64 exec, -1')
    g.label('L_ctly')
    a('s_nop 0')
    a('v_readlane_b32 s%d, v%d, 63' % (sMt, vG + 2))
    a('v_subrev_u32 v%d, s%d, v%d' % (vG + 2, sL, vG + 2))
    a('v_cmp_gt_u32 vcc, 64, v%d' % (vG + 2))
    a('s_nop 1')
    a('s_bcnt1_i32_b64 s%d, vcc' % sU)
    if stamps:
        a('s_add_u32 s18, s18, s%d' % sU)
    a('s_sub_i32 s%d, s%d, 16' % (sU, sU))
    a('s_mul_i32 s%d, s%d, %d' % (sU, sU, umax))
    a('s_sub_u32 s%d, s%d, 128' % (sMt, sMt))
    a('s_cmp_lt_u32 s%d, 64' % sMt)
    a('s_cselect_b32 s%d, s%d, %d' % (sMt, sMt, xoff))
    a('s_sub_i32 s%d, s%d, %d' % (sMt, sMt, xoff))
    a('s_add_i32 s%d, s%d, s%d' % (sU, sU, sMt))
    a('s_add_i32 s%d, s%d, s%d' % (sU, sU, sC))
    a('s_ashr_i32 s%d, s%d, 4' % (sU, sU))
    a('s_max_i32 s%d, s%d, %d' % (sU, sU, umin))
    a('v_mov_b32 v%d, s%d' % (vG, sU))
    a('ds_write_b32 v%d, v%d offset:%d' % (vCtl, vG, L_CTL + 4))
    a('s_add_u32 s%d, s%d, 1' % (sL, sL))
    nlast = 31 * nchk + (sum(1 for x in chk if x[2] < 24) if lastchk else 0)
    assert nlast < 64
    a('s_cmp_le_u32 s%d, %d' % (sL, nlast))
    a('s_cbranch_scc1 L_ctl')
    c('fetch wo once this workgroup\'s stream is all but over, or as soon as %d neighbours are there' % ltrig)
    DONE = 100
    g.label('L_tr')
    a('ds_read_b32 v%d, v%d offset:%d' % (vG, vCtl, L_CTL + 12))
    a('buffer_load_dword v%d, v%d, s[%d:%d], s%d offen sc1' % (vG + 2, vWa, sWS, sWS + 3, sLine))
    a('s_waitcnt lgkmcnt(0)')
    a('v_cmp_le_u32 vcc, 2, v%d' % vG)
    a('s_cbranch_vccnz L_trown')
    a('s_waitcnt vmcnt(0)')
    a('v_xor_b32 v%d, s%d, v%d' % (vG + 2, sThi, vG + 2))
    a('v_cmp_eq_u32 vcc, %d, v%d' % (DONE, vG + 2))
    a('s_nop 1')
    a('s_bcnt1_i32_b64 s%d, vcc' % sU)
    a('s_cmp_ge_u32 s%d, %d' % (sU, ltrig))
    a('s_cbranch_scc1 L_trgo')
    a('s_sleep 2')
    a('s_branch L_tr')
    g.label('L_trown')
    a('s_or_b32 s%d, s%d, %d' % (sMt, sThi, DONE))
    post(sMt, sOwn)
    g.label('L_trgo')
    a('s_mov_b64 exec, -1')
    for mod in range(2):
        a('s_mov_b32 s%d, s%d' % (sT0, sWOff))
        a('s_mov_b32 s%d, 8' % sCnt)
        g.label('L_wo%d' % mod)
        for i in range(4):
            a('s_mov_b32 m0, s%d' % sLdsW)
            a('s_add_u32 s%d, s%d, 1024' % (sLdsW, sLdsW))
            a('buffer_load_dwordx4 v%d, s[%d:%d], s%d offen nt lds' % (vW1 if i & 2 else vW, sWO[mod], sWO[mod] + 3, sT0))
            a('s_add_u32 s%d, s%d, 8192' % (sT0, sT0))
        a('s_sub_u32 s%d, s%d, 1' % (sCnt, sCnt))
        a('s_cmp_lg_u32 s%d, 0' % sCnt)
        a('s_cbranch_scc1 L_wo%d' % mod)
    a('s_waitcnt vmcnt(0)')
    a('s_barrier')
    c('B3 passed.  H2: gather o of the 8 batches')
    stamp('wo')
    poll('L_po', False, sleep)
    for p in range(8):
        a('ds_write2_b32 v%d, v%d, v%d offset0:%d offset1:%d' % (vT2 if p < 4 else vT3, vG + 4 * p, vG + 4 * p + 2, 68 * (p & 3), 68 * (p & 3) + 1))
    a('s_waitcnt lgkmcnt(0)')
    stamp('o')
    a('s_barrier')
    c('B4 passed.  H3: row h of the 32 blocks of slice j = outputs (mod, b, half) with h = mod*16 + b*2 + half')
    a('s_lshl_b32 s%d, s%d, 18' % (sT0, sJ))
    a('s_lshl_b32 s%d, s%d, 8' % (sT1, sH))
    a('s_add_u32 s%d, s%d, s%d' % (sOff, sT0, sT1))
    a('v_lshlrev_b32 v%d, 4, v%d' % (vHi, vT0))
    a('v_lshl_add_u32 v%d, v%d, 13, v%d' % (vHi, vT1, vHi))
    c('out byte offset: b*4096 + mod*2048 + j*256 + half*128 + (l&15)*8')
    a('s_bfe_u32 s%d, s%d, 0x30001' % (sT0, sH))
    a('s_lshl_b32 s%d, s%d, 12' % (sT0, sT0))
    a('s_lshr_b32 s%d, s%d, 4' % (sT1, sH))
    a('s_lshl_b32 s%d, s%d, 11' % (sT1, sT1))
    a('s_add_u32 s%d, s%d, s%d' % (sT0, sT0, sT1))
    a('s_lshl_b32 s%d, s%d, 8' % (sT1, sJ))
    a('s_add_u32 s%d, s%d, s%d' % (sT0, sT0, sT1))
    a('s_and_b32 s%d, s%d, 1' % (sT1, sH))
    a('s_lshl_b32 s%d, s%d, 7' % (sT1, sT1))
    a('s_add_u32 s%d, s%d, s%d' % (sWOff, sT0, sT1))
    a('v_lshlrev_b32 v%d, 3, v%d' % (vT2, vT0))
    poll('L_pp', True, sleep3, 32768)
    sum8()
    for swap in ('v_permlane32_swap_b32', 'v_permlane16_swap_b32'):
        for r in range(4):
            a('v_mov_b32 v%d, v%d' % (vG + 4 + r, vG + r))
        a('s_nop 1')
        for r in range(4):
            a('%s v%d, v%d' % (swap, vG + r, vG + 4 + r))
        a('s_nop 1')
        for r in range(4):
            a('v_add_f32 v%d, v%d, v%d' % (vG + r, vG + r, vG + 4 + r))
    a('v_cvt_pk_bf16_f32 v%d, v%d, v%d' % (vG, vG, vG + 1))
    a('v_cvt_pk_bf16_f32 v%d, v%d, v%d' % (vG + 1, vG + 2, vG + 3))
    a('s_mov_b32 exec_lo, 0xffff')
    a('s_mov_b32 exec_hi, 0')
    a('buffer_store_dwordx2 v[%d:%d], v%d, s[%d:%d], s%d offen' % (vG, vG + 1, vT2, sOut, sOut + 3, sWOff))
    c('H3 has arrived, so every workgroup has read the epoch word: workgroup 0 moves it on')
    a('s_cmp_lg_u32 s2, 0')
    a('s_cbranch_scc1 L_comm_end')
    a('v_mov_b32 v%d, s%d' % (vT2, sTag))
    a('v_mov_b32 v%d, 0' % vT3)
    a('s_mov_b64 exec, 1')
    a('buffer_store_dword v%d, v%d, s[%d:%d], s%d offen' % (vT2, vT3, sWS, sWS + 3, sBase))
    g.label('L_comm_end')
    if stamps:
        a('s_waitcnt vmcnt(0)')
        stamp('fin')
        write_stamps(11)
    g.label('L_exit')
    a('s_endpgm')

    tail = '''.section .rodata,"a"
.p2align 6
.amdhsa_kernel %s
  .amdhsa_next_free_vgpr 256
  .amdhsa_next_free_sgpr 100
  .amdhsa_accum_offset 256
  .amdhsa_group_segment_fixed_size 0
  .amdhsa_kernarg_size 104
  .amdhsa_user_sgpr_count 2
  .amdhsa_user_sgpr_kernarg_segment_ptr 1
  .amdhsa_system_sgpr_workgroup_id_x 1
  .amdhsa_float_denorm_mode_32 3
.end_amdhsa_kernel
''' % K1
    head = HEADER + '; @launch grid=(256,1,1) block=(320,1,1) lds=%d\n' % L_END
    if stamps:
        head += '; nst3=%d names: start %s\n' % (nst_stream + 1, ' '.join(names))
    head += ''.join(('; ' + l).rstrip() + '\n' for l in DESIGN.split('\n'))
    return head + '\n'.join(g.L) + '\n' + tail


if __name__ == '__main__':
    import json
    kw = json.loads(sys.argv[2]) if len(sys.argv) > 2 else {}
    src = gen(**kw)
    open(sys.argv[1], 'w').write(src)
```

```python
import sys, math, struct

NAME = 'concat_heads__mha_block_cached__mha_block_cached__decode'
HEADER = open('cdna_kernels/' + NAME + '.s.ref').read().split('; Override launch')[0]

DESIGN = """
One launch, 256 workgroups (one per CU), 5 waves each.  Workgroup (h, j): head h, batch j of both modules.
The 1 GiB of K/V is streamed in four chip-wide phases K_A, V_A, K_B, V_B (one large buffer at a time: reading
several at once costs up to 13 % of the HBM rate, depending on where they were allocated).
 waves 0-3  stream with five 1 KiB loads in flight each (enough to fill HBM, few enough to share it evenly).
            K pass: v_dot2 + DPP reduction -> 1024 scores per wave in 16 registers; exact softmax per wave
            (true maximum); V pass: p on the diagonal of the MFMA A operand, V rows as the B operand.
 wave 4     hand-offs through d_ws.  Every word carries a tag derived from a word at WS_EPOCH that the launch
            moves on at its end, so words of an earlier launch are never taken for this launch's.
   H1  x @ wq: (h, j) multiplies rows 128j..128j+127 for all batches, the 8 workgroups of a head swap partial sums
   H2  the 8 workgroups of a head swap their attention outputs; (h, j) multiplies with columns 128j..128j+127 of wo
   H3  the 32 workgroups of a column slice swap partial outputs; each sums 64 outputs over the heads
            While the stream runs it also trims the loads in flight by a few percent from the progress words of
            the neighbours, so that all workgroups finish together.  That affects speed only.
"""


def f32bits(x):
    return struct.unpack('<I', struct.pack('<f', x))[0]


CSCALE = (128 ** -0.5) * math.log2(math.e)
WS_H3 = 0
WS_H1 = 2 << 20
WS_H2 = 4 << 20
WS_EPOCH = 5 << 20
WS_CTL = (5 << 20) + 65536
WS_END = 6 << 20
WS_STAMP = 8 << 20
L_Q = 0
L_ACC = 512
L_ML = 4608
L_O = 4672
L_CTL = 9152
L_STG = 9216
L_W = 17664
L_END = L_W + 65536


class Asm:
    def __init__(self):
        self.L = []
        self.q = []

    def a(self, s):
        self.L.append('    ' + s)

    def c(self, s):
        self.L.append('    ; ' + s)

    def label(self, s):
        self.L.append(s + ':')

    def vm(self, tag, s):
        self.a(s)
        self.q.append(tag)
        assert len(self.q) <= 63

    def wait_tag(self, tag):
        idx = [i for i, t in enumerate(self.q) if t == tag]
        if idx:
            self.a('s_waitcnt vmcnt(%d)' % (len(self.q) - 1 - idx[-1]))
            self.q = self.q[idx[-1] + 1:]

    def limit(self, n):
        if len(self.q) > n:
            self.a('s_waitcnt vmcnt(%d)' % n)
            self.q = self.q[len(self.q) - n:] if n else []


def gen(W=5, D=8, T=8, early=8, x0=4, win=10, sleep=2, sleep3=2, tmo=1 << 20, stamps=False,
        chk=((18, 29, 31),), umax=4, uflex=10, umin=-10, lpar=(8, -24), xg=10, xp=4, xoff=8, xlast=26,
        ltrig=4, b2at=20, lastchk=False, touch=0, woprio=3, sprio=0, wowin=24, wg=4, og=False, b5=True):
    g = Asm()
    a, c = g.a, g.c
    nchk = len(chk)
    assert W + 1 < D <= 32
    sX, sWQ, sK, sV, sWO = (32, 36), (40, 44), (48, 56), (52, 60), (64, 68)
    sWS, sOut = 72, 32
    sTag, sH, sJ, sOff, sCnt, sT0, sT1, sC = 76, 77, 78, 79, 80, 81, 82, 83
    sB1, sB0, sN8 = 86, 88, 90
    sMt, sBase, sL, sLdsW, sWOff, sH1, sT8, sU = 92, 93, 94, 95, 96, 97, 84, 85
    sRk = 64
    sOwn, sLine, sThi = 36, 38, 39
    sXo, sXa, sXb, sXr = 40, 41, 42, 43
    vLane, vT0, vT1, vT2, vT3 = 1, 2, 3, 4, 5
    vHi, vNat = 6, 7
    vMask = 8
    vAcc = 12
    vA = (16, 20)
    vS, vPa, vCc = 24, 28, 32
    vNeg, vTmp, vTr, vW = 36, 37, 38, 39
    vZ = 40
    vQn = 72
    vXf = (76, 92)
    vTr1, vW1, vH1, vCtl, vOne, vU, vRk = 108, 109, 110, 111, 120, 121, 122
    vWf = (40, 224)
    vQD = (24, 112)
    vRing = 128
    DPPF = 'row_mask:0xf bank_mask:0x%x'
    nst = [0]
    names = []

    def stamp(name):
        if stamps:
            names.append(name)
            a('s_memrealtime s[%d:%d]' % (4 + 2 * nst[0], 5 + 2 * nst[0]))
            nst[0] += 1

    def write_stamps(n):
        a('s_waitcnt vmcnt(0) lgkmcnt(0)')
        a('s_mov_b64 exec, -1')
        a('s_getreg_b32 s99, hwreg(HW_REG_XCC_ID)')
        a('v_mov_b32 v%d, s99' % vT2)
        a('v_writelane_b32 v%d, s98, 0' % vT2)
        for i in range(n):
            a('v_writelane_b32 v%d, s%d, %d' % (vT2, 4 + 2 * i, i + 1))
        a('s_mul_i32 s%d, s2, 5' % sT0)
        a('s_add_u32 s%d, s%d, s3' % (sT0, sT0))
        a('s_lshl_b32 s%d, s%d, 8' % (sT0, sT0))
        a('s_add_u32 s%d, s%d, 0x%x' % (sT0, sT0, WS_STAMP))
        a('v_lshl_add_u32 v%d, v%d, 2, s%d' % (vT3, vLane, sT0))
        a('buffer_store_dword v%d, v%d, s[%d:%d], 0 offen' % (vT2, vT3, sWS, sWS + 3))

    def srd(d, p, size):
        a('s_mov_b32 s%d, s%d' % (d, p))
        a('s_mov_b32 s%d, s%d' % (d + 1, p + 1))
        a('s_mov_b32 s%d, 0x%x' % (d + 2, size))
        a('s_mov_b32 s%d, 0x20000' % (d + 3))

    def make_tag():
        c('tag = next value of a full-period generator: differs from the old word, also in its low byte')
        a('s_waitcnt lgkmcnt(0)')
        a('s_mul_i32 s%d, s%d, 0x19660d' % (sTag, sTag))
        a('s_add_u32 s%d, s%d, 0x3c6ef35f' % (sTag, sTag))

    def weight_voffsets(shift):
        c('16-byte chunk k of row r lands in slot k ^ (2*(r&3) + 8*((r>>3)&1)): conflict-free transposed reads')
        a('v_lshlrev_b32 v%d, 1, v%d' % (vW, vT1))
        a('v_xor_b32 v%d, v%d, v%d' % (vW, vW, vT0))
        a('v_lshlrev_b32 v%d, 4, v%d' % (vW, vW))
        a('v_lshl_add_u32 v%d, v%d, %d, v%d' % (vW, vT1, shift, vW))
        a('v_xor_b32 v%d, 128, v%d' % (vW1, vW))

    K1 = NAME + '_kernel'
    g.L += ['.amdgcn_target "amdgcn-amd-amdhsa--gfx950"', '.text', '.globl %s' % K1, '.p2align 8', '.type %s,@function' % K1]
    g.label(K1)
    a('s_cmp_ge_u32 s2, 256')
    a('s_cbranch_scc1 L_exit')
    if stamps:
        a('s_memrealtime s[98:99]')
    a('s_load_dwordx16 s[4:19], s[0:1], 0')
    a('s_load_dwordx8 s[20:27], s[0:1], 64')
    a('s_load_dwordx2 s[28:29], s[0:1], 96')
    a('v_lshrrev_b32 v%d, 6, v0' % vT0)
    a('v_and_b32 v%d, 63, v0' % vLane)
    a('v_readfirstlane_b32 s3, v%d' % vT0)
    c('h = (id & 7) + 8*(id >> 6), j = (id >> 3) & 7')
    a('s_lshr_b32 s%d, s2, 6' % sH)
    a('s_lshl_b32 s%d, s%d, 3' % (sH, sH))
    a('s_and_b32 s%d, s2, 7' % sT0)
    a('s_add_u32 s%d, s%d, s%d' % (sH, sH, sT0))
    a('s_bfe_u32 s%d, s2, 0x30003' % sJ)
    a('s_mov_b32 s%d, 0x%x' % (sH1, WS_EPOCH))
    a('v_and_b32 v%d, 15, v%d' % (vT0, vLane))
    a('v_lshrrev_b32 v%d, 4, v%d' % (vT1, vLane))
    a('v_lshlrev_b32 v%d, 4, v%d' % (vNat, vLane))
    a('s_cmp_eq_u32 s3, 4')
    a('s_waitcnt lgkmcnt(0)')
    a('s_load_dword s%d, s[28:29], s%d' % (sTag, sH1))
    srd(sWS, 28, (WS_STAMP + (1 << 20)) if stamps else WS_END)
    a('s_cbranch_scc1 L_comm')

    c('================ waves 0-3')
    srd(sWQ[0], 10, 1 << 23)
    srd(sX[0], 4, 16384)
    c('wq rows 128j + 32w .. + 31, columns of head h -> LDS [128 rows][256 B], four rows per instruction')
    weight_voffsets(13)
    a('s_lshl_b32 s%d, s%d, 20' % (sT0, sJ))
    a('s_lshl_b32 s%d, s%d, 8' % (sT1, sH))
    a('s_add_u32 s%d, s%d, s%d' % (sT0, sT0, sT1))
    a('s_lshl_b32 s%d, s3, 18' % sT1)
    a('s_add_u32 s%d, s%d, s%d' % (sWOff, sT0, sT1))
    a('s_lshl_b32 s%d, s3, 13' % sLdsW)
    c('x fragments: lane (n, g) holds x[n & 7][128j + 32kb + 8g ..]')
    vXa = vAcc
    a('v_and_b32 v%d, 7, v%d' % (vXa, vLane))
    a('v_lshlrev_b32 v%d, 11, v%d' % (vXa, vXa))
    a('v_lshl_add_u32 v%d, v%d, 4, v%d' % (vXa, vT1, vXa))
    a('s_lshl_b32 s%d, s%d, 8' % (sT1, sJ))
    srd(sX[1], 14, 16384)
    for mod in range(2):
        for kb in range(4):
            r = vXf[mod] + 4 * kb
            g.vm('w', 'buffer_load_dwordx4 v[%d:%d], v%d, s[%d:%d], s%d offen offset:%d' % (r, r + 3, vXa, sX[mod], sX[mod] + 3, sT1, 64 * kb))
    for mod in range(2):
        if mod:
            srd(sWQ[1], 20, 1 << 23)
        for i in range(8):
            a('s_add_u32 m0, s%d, %d' % (sLdsW, L_W + mod * 32768 + i * 1024))
            a('s_add_u32 s%d, s%d, %d' % (sT0, sWOff, i * 4 * 8192))
            g.vm('w', 'buffer_load_dwordx4 v%d, s[%d:%d], s%d offen nt lds' % (vW1 if i & 2 else vW, sWQ[mod], sWQ[mod] + 3, sT0))
    srd(sK[0], 6, 1 << 28)
    c('K/V of (batch j, head h): the four waves take tiles of %d KiB in turn' % T)
    a('s_lshl_b32 s%d, s%d, 5' % (sBase, sJ))
    a('s_add_u32 s%d, s%d, s%d' % (sBase, sBase, sH))
    a('s_lshl_b32 s%d, s%d, 20' % (sBase, sBase))
    a('s_mul_i32 s%d, s3, %d' % (sT0, T * 1024))
    a('s_add_u32 s%d, s%d, s%d' % (sBase, sBase, sT0))
    a('s_mov_b32 s%d, s%d' % (sOff, sBase))

    def ring_load(srd_, j):
        r = vRing + 4 * (j & 31)
        g.vm('R%d' % (j & 31), 'buffer_load_dwordx4 v[%d:%d], v%d, s[%d:%d], s%d offen offset:%d nt' % (r, r + 3, vNat, srd_, srd_ + 3, sOff, 1024 * (j & 3)))
        if j & 3 == 3:
            a('s_add_u32 s%d, s%d, %d' % (sOff, sOff, 4096 if (j + 1) % T else 3 * T * 1024 + 4096))

    for j in range(early):
        ring_load(sK[0], j)
    srd(sV[0], 8, 1 << 28)
    srd(sK[1], 16, 1 << 28)
    srd(sV[1], 18, 1 << 28)
    c('transposed-read address: (8g + r)*256 + ((4w + 2cb) ^ (2r + 8(g&1)))*16 + (l&3)*8,  r = (l>>2)&3')
    a('v_lshrrev_b32 v%d, 2, v%d' % (vTmp, vT0))
    a('v_and_b32 v%d, 1, v%d' % (vTr, vT1))
    a('v_lshl_add_u32 v%d, v%d, 2, v%d' % (vTr, vTr, vTmp))
    a('s_lshl_b32 s%d, s3, 1' % sT0)
    a('v_xor_b32 v%d, s%d, v%d' % (vTr, sT0, vTr))
    a('v_lshlrev_b32 v%d, 5, v%d' % (vTr, vTr))
    a('v_lshl_add_u32 v%d, v%d, 11, v%d' % (vTr, vT1, vTr))
    a('v_lshl_add_u32 v%d, v%d, 8, v%d' % (vTr, vTmp, vTr))
    a('v_and_b32 v%d, 3, v%d' % (vT3, vLane))
    a('v_lshl_add_u32 v%d, v%d, 3, v%d' % (vTr, vT3, vTr))
    a('v_xor_b32 v%d, 32, v%d' % (vTr1, vTr))
    a('v_add_u32 v%d, %d, v%d' % (vTr, L_W, vTr))
    a('v_add_u32 v%d, %d, v%d' % (vTr1, L_W, vTr1))
    a('s_mov_b32 s%d, 0x%08x' % (sC, f32bits(CSCALE)))
    for reg, val in ((sB1, 0xcccccccc), (sB0, 0xaaaaaaaa), (sN8, 0xff00ff00)):
        a('s_mov_b32 s%d, 0x%08x' % (reg, val))
        a('s_mov_b32 s%d, 0x%08x' % (reg + 1, val))
    c('masks that put p on the diagonal of the A operand')
    a('v_mov_b32 v%d, 0xffff' % vNeg)
    a('v_mov_b32 v%d, 0xffff0000' % vTmp)
    a('v_cndmask_b32 v%d, v%d, v%d, s[%d:%d]' % (vNeg, vNeg, vTmp, sB0, sB0 + 1))
    a('v_bfe_u32 v%d, v%d, 1, 2' % (vTmp, vLane))
    for rr in range(4):
        a('v_cmp_eq_u32 vcc, %d, v%d' % (rr, vTmp))
        a('s_nop 1')
        a('v_cndmask_b32 v%d, 0, v%d, vcc' % (vMask + rr, vNeg))
    c('staging address of the q partials: (n&7)*1040 + w*128 + (n>>3)*64 + g*16')
    a('v_and_b32 v%d, 7, v%d' % (vTmp, vLane))
    a('v_mul_u32_u24 v%d, 1040, v%d' % (vH1, vTmp))
    a('v_bfe_u32 v%d, v%d, 3, 1' % (vTmp, vLane))
    a('v_lshl_add_u32 v%d, v%d, 6, v%d' % (vH1, vTmp, vH1))
    a('v_lshl_add_u32 v%d, v%d, 4, v%d' % (vH1, vT1, vH1))
    a('s_lshl_b32 s%d, s3, 7' % sT0)
    a('v_add_u32 v%d, s%d, v%d' % (vH1, sT0, vH1))

    def tr_reads(dst, mod):
        for cb in range(2):
            for kb in range(4):
                for hh in range(2):
                    r = dst + (cb * 4 + kb) * 4 + 2 * hh
                    a('ds_read_b64_tr_b16 v[%d:%d], v%d offset:%d' % (r, r + 1, vTr1 if cb else vTr, mod * 32768 + kb * 8192 + hh * 1024))

    def proj_mfma(d, wf, xf):
        for kb in range(4):
            for cb in range(2):
                w = wf + (cb * 4 + kb) * 4
                dd = d + 4 * cb
                a('v_mfma_f32_16x16x32_bf16 v[%d:%d], v[%d:%d], v[%d:%d], %s' % (dd, dd + 3, w, w + 3, xf + 4 * kb, xf + 4 * kb + 3, '0' if kb == 0 else 'v[%d:%d]' % (dd, dd + 3)))

    def select_tag(dst, d):
        for r in range(4):
            a('v_cndmask_b32 v%d, v%d, v%d, s[%d:%d]' % (dst + r, d + r, d + 4 + r, sN8, sN8 + 1))
        for r in range(4):
            a('v_bfi_b32 v%d, v%d, v%d, v%d' % (dst + r, vTmp, vNeg, dst + r))

    a('v_mov_b32 v%d, 0xff' % vTmp)
    a('v_mov_b32 v%d, 0' % vCtl)
    a('v_mov_b32 v%d, 1' % vOne)
    a('s_mov_b32 s%d, 0' % sU)
    if wg:
        a('s_mov_b32 s%d, -4' % sRk)
    c('wave 0 shares its SIMD with wave 4 and would fall behind while that one works: a head start')
    assert early % 4 == 0 and 0 < x0 <= 4 and early + x0 <= 24
    a('s_cmp_lg_u32 s3, 0')
    a('s_cbranch_scc1 L_x0a')
    q0 = list(g.q)
    for j in range(early, early + x0):
        ring_load(sK[0], j)
    g.wait_tag('w')
    a('s_branch L_x0b')
    g.label('L_x0a')
    g.q = q0
    g.wait_tag('w')
    g.label('L_x0b')
    a('s_barrier')
    c('B0: all rows of wq_A and wq_B have landed')
    stamp('B0')
    for mod in range(2):
        tr_reads(vWf[mod], mod)
    for mod in range(2):
        a('s_waitcnt lgkmcnt(%d)' % (15 if mod == 0 else 0))
        proj_mfma(vQD[mod], vWf[mod], vXf[mod])
    make_tag()
    a('v_mov_b32 v%d, s%d' % (vNeg, sTag))
    for mod in range(2):
        a('s_nop 0')
        select_tag(vA[mod], vQD[mod])
        a('ds_write_b128 v%d, v[%d:%d] offset:%d' % (vH1, vA[mod], vA[mod] + 3, L_STG + mod * 512))
    a('s_waitcnt lgkmcnt(0)')
    a('s_barrier')
    c('B0b: wave 4 sends the partials out; fill the ring with K meanwhile')
    stamp('stg')
    a('s_cmp_eq_u32 s3, 0')
    a('s_cbranch_scc1 L_x0c')
    for j in range(early, 32):
        if j == early + x0:
            g.label('L_x0c')
            a('s_waitcnt vmcnt(%d)' % (win - 1))
            g.q = g.q[-(win - 1):]
        else:
            g.limit(win - 1)
        ring_load(sK[0], j)
    stamp('ring')
    a('s_barrier')
    c('B1: q is in LDS')
    if sprio:
        a('s_setprio %d' % sprio)
    stamp('B1')

    def pos(tau, r):
        return 8 * (r & 1) + 4 * (r >> 1) + 2 * (tau & 1) + (tau >> 1)

    def rotate():
        for i in range(14):
            a('v_mov_b32 v%d, v%d' % (vZ + i, vZ + i + 2))

    def k_group(refill):
        rotate()
        p, cc = vPa, vCc
        for i in range(32):
            k, r = divmod(i, 4)
            g.wait_tag('R%d' % i)
            for e in range(4):
                a('v_dot2_f32_bf16 v%d, v%d, v%d, %s' % (p + r, vRing + 4 * i + e, vQn + e, '0' if e == 0 else 'v%d' % (p + r)))
            refill(i)
            if r == 3:
                a('v_add_f32_dpp v%d, v%d, v%d row_mirror %s' % (p, p, p, DPPF % 3))
                a('v_add_f32_dpp v%d, v%d, v%d row_mirror %s' % (p, p + 1, p + 1, DPPF % 12))
                a('v_add_f32_dpp v%d, v%d, v%d row_mirror %s' % (p + 2, p + 2, p + 2, DPPF % 3))
                a('v_add_f32_dpp v%d, v%d, v%d row_mirror %s' % (p + 2, p + 3, p + 3, DPPF % 12))
                a('s_nop 0')
                a('v_add_f32_dpp v%d, v%d, v%d row_half_mirror %s' % (cc + (k & 3), p, p, DPPF % 5))
                a('v_add_f32_dpp v%d, v%d, v%d row_half_mirror %s' % (cc + (k & 3), p + 2, p + 2, DPPF % 10))
            if i & 15 == 15:
                for t in range(4):
                    a('v_add_f32_dpp v%d, v%d, v%d quad_perm:[2,3,0,1] %s' % (cc + t, cc + t, cc + t, DPPF % 15))
                a('v_cndmask_b32 v%d, v%d, v%d, s[%d:%d]' % (cc, cc, cc + 1, sB1, sB1 + 1))
                a('v_cndmask_b32 v%d, v%d, v%d, s[%d:%d]' % (cc + 2, cc + 2, cc + 3, sB1, sB1 + 1))
                a('s_nop 0')
                a('v_add_f32_dpp v%d, v%d, v%d quad_perm:[1,0,3,2] %s' % (cc, cc, cc, DPPF % 15))
                a('v_add_f32_dpp v%d, v%d, v%d quad_perm:[1,0,3,2] %s' % (cc + 2, cc + 2, cc + 2, DPPF % 15))
                a('v_cndmask_b32 v%d, v%d, v%d, s[%d:%d]' % (vZ + 14 + (i >> 4), cc, cc + 2, sB0, sB0 + 1))

    def v_group(refill):
        def build(i):
            for rr in range(4):
                a('v_and_b32_dpp v%d, v%d, v%d row_newbcast:%d %s' % (vA[i & 1] + rr, vZ + (i >> 4), vMask + rr, pos((i >> 2) & 3, i & 3), DPPF % 15))
        build(0)
        for i in range(32):
            if i < 31:
                build(i + 1)
            else:
                a('s_nop 1')
            g.wait_tag('R%d' % i)
            b = vRing + 4 * i
            a('v_mfma_f32_16x16x32_bf16 v[%d:%d], v[%d:%d], v[%d:%d], v[%d:%d]' % (vAcc, vAcc + 3, vA[i & 1], vA[i & 1] + 3, b, b + 3, vAcc, vAcc + 3))
            refill(i)
        rotate()

    uid = [0]

    def signal(word, rtn=False):
        a('s_mov_b64 exec, 1')
        if rtn:
            a('ds_add_rtn_u32 v%d, v%d, v%d offset:%d' % (vRk, vCtl, vOne, L_CTL + 4 * word))
        else:
            a('ds_add_u32 v%d, v%d offset:%d' % (vCtl, vOne, L_CTL + 4 * word))
        a('s_mov_b64 exec, -1')

    def paced(srd_, i, j):
        r = int('{:04b}'.format(i >> 1)[::-1], 2)
        if i % 2 == 0 and len(g.q) >= W - 1 and r < uflex:
            uid[0] += 1
            g.limit(W)
            a('s_cmp_gt_i32 s%d, %d' % (sU, r))
            a('s_cbranch_scc1 L_u%d' % uid[0])
            a('s_waitcnt vmcnt(%d)' % (W - 1))
            a('s_cmp_ge_i32 s%d, %d' % (sU, -r))
            a('s_cbranch_scc1 L_u%d' % uid[0])
            a('s_waitcnt vmcnt(%d)' % (W - 2))
            g.label('L_u%d' % uid[0])
        else:
            g.limit(W - 1)
        ring_load(srd_, j)

    def group(body, refill, upto=32):
        def take():
            a('s_waitcnt lgkmcnt(0)')
            a('v_readfirstlane_b32 s%d, v%d' % (sU, vU))
            if wg:
                a('v_readfirstlane_b32 s%d, v%d' % (sT0, vRk))
                a('s_add_u32 s%d, s%d, 4' % (sRk, sRk))
                a('s_nop 0')
                a('s_sub_i32 s%d, s%d, s%d' % (sT0, sT0, sRk))
                a('s_mul_i32 s%d, s%d, %d' % (sT0, sT0, 2 * wg))
                a('s_add_i32 s%d, s%d, %d' % (sT0, sT0, 2 - 3 * wg))
                a('s_ashr_i32 s%d, s%d, 2' % (sT0, sT0))
                a('s_add_i32 s%d, s%d, s%d' % (sU, sU, sT0))

        def rf(i):
            refill(i)
            for sa, sr, sx in chk:
                if sx < upto:
                    if i == sa:
                        signal(0, wg)
                    if i == sr:
                        a('ds_read_b32 v%d, v%d offset:%d' % (vU, vCtl, L_CTL + 4))
                    if i == sx and sx < 31:
                        take()
        body(rf)
        if chk[-1][2] == 31 and upto == 32:
            take()

    def phase(name, body, srd_, srd_next, trips):
        g.limit(W)
        steady = ['R%d' % j for j in range(D - W, D)]
        assert g.q == steady[len(steady) - len(g.q):]
        g.q = list(steady)
        a('s_mov_b32 s%d, %d' % (sCnt, trips))
        g.label(name)
        group(body, lambda i: paced(srd_, i, i + D))
        assert g.q == steady
        a('s_sub_u32 s%d, s%d, 1' % (sCnt, sCnt))
        a('s_cmp_lg_u32 s%d, 0' % sCnt)
        a('s_cbranch_scc1 %s' % name)

        def last(i):
            if i + D < 32:
                paced(srd_, i, i + D)
            elif srd_next is not None:
                if i + D == 32:
                    a('s_mov_b32 s%d, s%d' % (sOff, sBase))
                paced(srd_next, i, i + D)
            if srd_next is None and i == b2at:
                signal(3)
        c('last group of the phase: the look-ahead crosses into the next buffer')
        group(body, last, 32 if srd_next is not None else (24 if lastchk else 0))

    def wave_reduce(op, v):
        for ctl in ('row_mirror', 'row_half_mirror', 'quad_perm:[2,3,0,1]', 'quad_perm:[1,0,3,2]'):
            a('s_nop 1')
            a('%s_dpp v%d, v%d, v%d %s %s' % (op, v, v, v, ctl, DPPF % 15))
        a('s_nop 1')
        a('%s_dpp v%d, v%d, v%d row_bcast:15 row_mask:0xa bank_mask:0xf' % (op, v, v, v))
        a('s_nop 1')
        a('%s_dpp v%d, v%d, v%d row_bcast:31 row_mask:0xc bank_mask:0xf' % (op, v, v, v))
        a('s_nop 0')

    def softmax():
        c('softmax of this wave\'s 1024 scores: m = max, p = 2^(c*s - c*m), l = sum p')
        a('v_max3_f32 v%d, v%d, v%d, v%d' % (vTmp, vZ, vZ + 1, vZ + 2))
        for i in range(3, 15, 2):
            a('v_max3_f32 v%d, v%d, v%d, v%d' % (vTmp, vTmp, vZ + i, vZ + i + 1))
        a('v_max_f32 v%d, v%d, v%d' % (vTmp, vTmp, vZ + 15))
        wave_reduce('v_max_f32', vTmp)
        a('v_readlane_b32 s%d, v%d, 63' % (sMt, vTmp))
        a('v_mov_b32 v%d, s%d' % (vNeg, sC))
        a('s_nop 0')
        a('v_mul_f32 v%d, s%d, v%d' % (vNeg, sMt, vNeg))
        for i in range(16):
            a('v_fma_f32 v%d, v%d, s%d, -v%d' % (vZ + i, vZ + i, sC, vNeg))
        for i in range(16):
            a('v_exp_f32 v%d, v%d' % (vZ + i, vZ + i))
        for r in range(4):
            a('v_mov_b32 v%d, 0' % (vAcc + r))
        a('v_add_f32 v%d, v%d, v%d' % (vS, vZ, vZ + 1))
        for i in range(2, 16):
            a('v_add_f32 v%d, v%d, v%d' % (vS, vS, vZ + i))
        for i in range(16):
            a('v_cvt_pk_bf16_f32 v%d, v%d, v%d' % (vZ + i, vZ + i, vZ + i))
        wave_reduce('v_add_f32', vS)
        a('v_readlane_b32 s%d, v%d, 63' % (sL, vS))
        a('v_lshlrev_b32 v%d, 5, v%d' % (vT2, vT0))
        a('v_lshl_add_u32 v%d, v%d, 4, v%d' % (vT2, vT1, vT2))
        a('s_lshl_b32 s%d, s3, 9' % sT0)
        a('v_add_u32 v%d, s%d, v%d' % (vT2, sT0, vT2))
        a('s_lshl_b32 s%d, s3, 3' % sT0)
        a('v_mov_b32 v%d, s%d' % (vT3, sT0))
        a('v_mov_b32 v%d, s%d' % (vPa, sMt))
        a('v_mov_b32 v%d, s%d' % (vPa + 1, sL))

    for mod in range(2):
        c('---------------- K pass, module %s' % 'AB'[mod])
        a('v_lshlrev_b32 v%d, 4, v%d' % (vNeg, vT0))
        a('ds_read_b128 v[%d:%d], v%d offset:%d' % (vQn, vQn + 3, vNeg, L_Q + 256 * mod))
        a('s_waitcnt lgkmcnt(0)')
        if mod == 0:
            c('the ring was filled 32 deep while q was on its way: the look-ahead shrinks to %d over this group' % D)
            nxt = [32]

            def shrink(i):
                while nxt[0] < 32 + (i + 1) * D // 32:
                    paced(sK[0], i, nxt[0])
                    nxt[0] += 1
            group(k_group, shrink)
        phase('L_k%d' % mod, k_group, sK[mod], sV[mod], 6 if mod == 0 else 7)
        stamp('K%d' % mod)
        softmax()
        c('---------------- V pass, module %s' % 'AB'[mod])
        phase('L_v%d' % mod, v_group, sV[mod], sK[1] if mod == 0 else None, 7)
        stamp('V%d' % mod)
        c('leave (acc, m, l) in LDS')
        a('s_mov_b32 exec_hi, 0')
        a('ds_write_b128 v%d, v[%d:%d] offset:%d' % (vT2, vAcc, vAcc + 3, L_ACC + 2048 * mod))
        a('s_mov_b32 exec_lo, 1')
        a('ds_write_b64 v%d, v[%d:%d] offset:%d' % (vT3, vPa, vPa + 1, L_ML + 32 * mod))
        a('s_mov_b64 exec, -1')
    c('---------------- combine the four waves: thread t -> module t>>7, d = t&127')
    a('v_lshrrev_b32 v%d, 7, v0' % vT2)
    a('v_lshlrev_b32 v%d, 5, v%d' % (vT3, vT2))
    a('v_lshlrev_b32 v%d, 11, v%d' % (vT2, vT2))
    a('v_and_b32 v%d, 127, v0' % vNeg)
    a('v_lshl_add_u32 v%d, v%d, 2, v%d' % (vT2, vNeg, vT2))
    a('s_lshl_b32 s%d, s%d, 3' % (sT0, sH))
    a('s_add_u32 s%d, s%d, s%d' % (sT0, sT0, sJ))
    a('s_lshl_b32 s%d, s%d, 10' % (sT0, sT0))
    a('s_add_u32 s%d, s%d, 0x%x' % (sCnt, sT0, WS_H2))
    a('s_waitcnt lgkmcnt(0)')
    c('waves 0-3 meet on an LDS counter (wave 4 is busy)')
    signal(2)
    g.label('L_meet')
    a('ds_read_b32 v%d, v%d offset:%d' % (vU, vCtl, L_CTL + 8))
    a('s_waitcnt lgkmcnt(0)')
    a('v_cmp_gt_u32 vcc, 4, v%d' % vU)
    a('s_cbranch_vccnz L_meet')
    R = vS
    a('ds_read_b128 v[%d:%d], v%d offset:%d' % (R, R + 3, vT3, L_ML))
    a('ds_read_b128 v[%d:%d], v%d offset:%d' % (R + 4, R + 7, vT3, L_ML + 16))
    for w in range(4):
        a('ds_read_b32 v%d, v%d offset:%d' % (vA[0] + w, vT2, L_ACC + 512 * w))
    a('s_waitcnt lgkmcnt(4)')
    a('v_max3_f32 v%d, v%d, v%d, v%d' % (vT2, R, R + 2, R + 4))
    a('v_max_f32 v%d, v%d, v%d' % (vT2, vT2, R + 6))
    a('v_mul_f32 v%d, s%d, v%d' % (vNeg, sC, vT2))
    for w in range(4):
        a('v_fma_f32 v%d, v%d, s%d, -v%d' % (R + 2 * w, R + 2 * w, sC, vNeg))
    for w in range(4):
        a('v_exp_f32 v%d, v%d' % (R + 2 * w, R + 2 * w))
    a('s_nop 0')
    a('v_mul_f32 v%d, v%d, v%d' % (vT2, R, R + 1))
    for w in range(1, 4):
        a('v_fma_f32 v%d, v%d, v%d, v%d' % (vT2, R + 2 * w, R + 2 * w + 1, vT2))
    a('v_rcp_f32 v%d, v%d' % (vT2, vT2))
    a('s_waitcnt lgkmcnt(0)')
    a('v_mul_f32 v%d, v%d, v%d' % (vT3, R, vA[0]))
    for w in range(1, 4):
        a('v_fma_f32 v%d, v%d, v%d, v%d' % (vT3, R + 2 * w, vA[0] + w, vT3))
    a('v_mul_f32 v%d, v%d, v%d' % (vT3, vT3, vT2))
    c('H2: publish o as {two bf16, tag}')
    a('v_mov_b32 v%d, s%d' % (vA[1] + 1, sTag))
    a('v_lshlrev_b32 v%d, 2, v0' % vNeg)
    a('v_mov_b32_dpp v%d, v%d quad_perm:[1,0,3,2] %s' % (vT2, vT3, DPPF % 15))
    a('v_cvt_pk_bf16_f32 v%d, v%d, v%d' % (vA[1], vT3, vT2))
    a('s_mov_b32 exec_lo, 0x55555555')
    a('s_mov_b32 exec_hi, 0x55555555')
    a('buffer_store_dwordx2 v[%d:%d], v%d, s[%d:%d], s%d offen sc1' % (vA[1], vA[1] + 1, vNeg, sWS, sWS + 3, sCnt))
    a('s_mov_b64 exec, -1')
    stamp('pubo')
    vWO, vOf, vD = vRing, vRing + 64, vRing + 96
    c('o fragment address: (n&7)*272 + g*16')
    a('v_and_b32 v%d, 7, v%d' % (vT2, vLane))
    a('v_mul_u32_u24 v%d, 272, v%d' % (vT3, vT2))
    a('v_lshl_add_u32 v%d, v%d, 4, v%d' % (vT3, vT1, vT3))
    a('v_bfe_u32 v%d, v%d, 3, 1' % (vNeg, vLane))
    c('H3 address: (j*32 + h)*8192 + mod*4096 + b*512 + w*128 + (n>>3)*64 + g*16')
    a('v_lshlrev_b32 v%d, 9, v%d' % (vT2, vT2))
    a('s_lshl_b32 s%d, s%d, 5' % (sT0, sJ))
    a('s_add_u32 s%d, s%d, s%d' % (sT0, sT0, sH))
    a('s_lshl_b32 s%d, s%d, 13' % (sT0, sT0))
    a('s_lshl_b32 s%d, s3, 7' % sT1)
    a('s_add_u32 s%d, s%d, s%d' % (sT0, sT0, sT1))
    a('s_add_u32 s%d, s%d, 4096' % (sT1, sT0))
    a('v_lshl_add_u32 v%d, v%d, 6, v%d' % (vT2, vNeg, vT2))
    a('v_lshl_add_u32 v%d, v%d, 4, v%d' % (vT2, vT1, vT2))
    a('v_mov_b32 v%d, 0xff' % vTmp)
    a('v_mov_b32 v%d, s%d' % (vNeg, sTag))
    if og:
        c('H2: wave w gathers o of batches 2w and 2w+1 -> LDS (l>>5)*8*272 + (l&31)*8 + b*272')
        vP2, vB2, vL2 = vZ, vZ + 8, vZ + 9
        a('s_lshl_b32 s%d, s%d, 13' % (sOff, sH))
        a('s_lshl_b32 s%d, s3, 11' % sMt)
        a('s_add_u32 s%d, s%d, s%d' % (sOff, sOff, sMt))
        a('s_add_u32 s%d, s%d, 0x%x' % (sOff, sOff, WS_H2))
        a('v_lshrrev_b32 v%d, 5, v%d' % (vL2, vLane))
        a('v_mul_u32_u24 v%d, %d, v%d' % (vL2, 8 * 272, vL2))
        a('v_and_b32 v%d, 31, v%d' % (vB2, vLane))
        a('v_lshl_add_u32 v%d, v%d, 3, v%d' % (vL2, vB2, vL2))
        a('s_mul_i32 s%d, s3, %d' % (sMt, 2 * 272))
        a('s_add_u32 s%d, s%d, %d' % (sMt, sMt, L_O))
        a('v_add_u32 v%d, s%d, v%d' % (vL2, sMt, vL2))
        a('s_mov_b32 s%d, 0x%x' % (sCnt, tmo))
        g.label('L_po')
        for p in range(2):
            a('buffer_load_dwordx4 v[%d:%d], v%d, s[%d:%d], s%d offen offset:%d sc1' % (vP2 + 4 * p, vP2 + 4 * p + 3, vNat, sWS, sWS + 3, sOff, 1024 * p))
        a('s_waitcnt vmcnt(1)')
        a('v_xor_b32 v%d, s%d, v%d' % (vP2 + 1, sTag, vP2 + 1))
        a('v_xor_b32 v%d, s%d, v%d' % (vP2 + 3, sTag, vP2 + 3))
        a('s_waitcnt vmcnt(0)')
        a('v_xor_b32 v%d, s%d, v%d' % (vP2 + 5, sTag, vP2 + 5))
        a('v_xor_b32 v%d, s%d, v%d' % (vP2 + 7, sTag, vP2 + 7))
        a('v_or3_b32 v%d, v%d, v%d, v%d' % (vB2, vP2 + 1, vP2 + 3, vP2 + 5))
        a('v_or_b32 v%d, v%d, v%d' % (vB2, vB2, vP2 + 7))
        a('v_cmp_ne_u32 vcc, 0, v%d' % vB2)
        a('s_cbranch_vccz L_po_ok')
        a('s_sleep %d' % sleep)
        a('s_sub_u32 s%d, s%d, 1' % (sCnt, sCnt))
        a('s_cmp_lg_u32 s%d, 0' % sCnt)
        a('s_cbranch_scc1 L_po')
        g.label('L_po_ok')
        for p in range(2):
            a('ds_write2_b32 v%d, v%d, v%d offset0:%d offset1:%d' % (vL2, vP2 + 4 * p, vP2 + 4 * p + 2, 68 * p, 68 * p + 1))
        a('s_waitcnt lgkmcnt(0)')
        a('s_barrier')
        c('B4: wo and o of the 8 batches are in LDS')
    else:
        a('s_barrier')
        c('B3: wo is in LDS')
        for mod in range(2):
            tr_reads(vWO + 32 * mod, mod)
        a('s_barrier')
        c('B4: o of the 8 batches is in LDS')
    stamp('B4')
    for mod in range(2):
        for kb in range(4):
            r = vOf + 16 * mod + 4 * kb
            a('ds_read_b128 v[%d:%d], v%d offset:%d' % (r, r + 3, vT3, L_O + mod * 8 * 272 + kb * 64))
        if og:
            tr_reads(vWO + 32 * mod, mod)
    for mod in range(2):
        a('s_waitcnt lgkmcnt(%d)' % ((15 if og else 4) if mod == 0 else 0))
        proj_mfma(vD + 8 * mod, vWO + 32 * mod, vOf + 16 * mod)
    for mod in range(2):
        a('s_nop 0')
        select_tag(vD + 8 * mod, vD + 8 * mod)
        a('buffer_store_dwordx4 v[%d:%d], v%d, s[%d:%d], s%d offen sc1' % (vD + 8 * mod, vD + 8 * mod + 3, vT2, sWS, sWS + 3, (sT0, sT1)[mod]))
    if b5:
        a('s_waitcnt vmcnt(0)')
        a('s_barrier')
        c('B5: wave 4 starts to look for the other heads only now (lines it has read cost their writers a probe)')
    if stamps:
        a('s_waitcnt vmcnt(0)')
        stamp('end')
        write_stamps(nst[0])
    nst_stream = nst[0]
    a('s_endpgm')

    g.label('L_comm')
    c('================ wave 4')
    nst[0] = 0
    names.append('|')
    vG = 16
    vBad, vWa, vWx = 80, 82, 83
    a('s_setprio 3')
    if touch:
        c('one scalar load per page that comes up later: the address translations are fetched ahead of the stream')
        a('s_lshl_b32 s%d, s%d, 5' % (sT0, sJ))
        a('s_add_u32 s%d, s%d, s%d' % (sT0, sT0, sH))
        a('s_lshl_b32 s%d, s%d, 20' % (sT0, sT0))
        a('s_lshl_b32 s%d, s%d, 20' % (sT1, sJ))
        a('s_lshl_b32 s%d, s%d, 18' % (sL, sH))
        a('s_mov_b32 s%d, 0x%x' % (sMt, WS_H1))
        tl = []
        if touch & 1:
            tl += [(6, sT0), (20, sT1), (28, sMt)]
        if touch & 2:
            tl += [(8, sT0), (16, sT0), (18, sT0), (12, sL), (22, sL), (28, None), (24, None)]
        for n, (p, so) in enumerate(tl):
            a('s_load_dword s%d, s[%d:%d], %s' % (44 + n, p, p + 1, 's%d' % so if so else '0'))
    srd(sWO[0], 12, 1 << 23)
    srd(sWO[1], 22, 1 << 23)
    srd(sOut, 24, 32768)
    a('s_mov_b32 s%d, s%d' % (sBase, sH1))
    a('v_add_u32 v%d, 4096, v%d' % (vHi, vNat))
    a('s_lshl_b32 s%d, s%d, 16' % (sT0, sH))
    a('s_add_u32 s%d, s%d, 0x%x' % (sT0, sT0, WS_H1))
    a('s_lshl_b32 s%d, s%d, 13' % (sT1, sJ))
    a('s_add_u32 s%d, s%d, s%d' % (sOff, sT0, sT1))
    a('s_lshl_b32 s%d, s%d, 10' % (sT1, sJ))
    a('s_add_u32 s%d, s%d, s%d' % (sH1, sT0, sT1))
    a('v_lshlrev_b32 v%d, 3, v%d' % (vT3, vLane))
    npoll = [0]

    def poll(name, bytetag, slp, stride=0):
        a('s_mov_b32 s%d, 0x%x' % (sCnt, tmo))
        g.label(name)
        for p in range(8):
            if stride:
                a('s_add_u32 s%d, s%d, %d' % (sMt, sOff, p * stride))
                a('buffer_load_dwordx4 v[%d:%d], v%d, s[%d:%d], s%d offen sc1' % (vG + 4 * p, vG + 4 * p + 3, vHi, sWS, sWS + 3, sMt))
            else:
                a('buffer_load_dwordx4 v[%d:%d], v%d, s[%d:%d], s%d offen offset:%d sc1' % (vG + 4 * p, vG + 4 * p + 3, vHi if p & 4 else vNat, sWS, sWS + 3, sOff, 1024 * (p & 3)))
        a('v_mov_b32 v%d, 0' % vBad)
        for p in range(8):
            a('s_waitcnt vmcnt(%d)' % (7 - p))
            es = (0, 1, 2, 3) if bytetag else (1, 3)
            for e in es:
                a('v_xor_b32 v%d, s%d, v%d' % (vG + 4 * p + e, sT8 if bytetag else sTag, vG + 4 * p + e))
            for i in range(0, len(es), 2):
                a('v_or3_b32 v%d, v%d, v%d, v%d' % (vBad, vBad, vG + 4 * p + es[i], vG + 4 * p + es[i + 1]))
        if bytetag:
            a('v_and_b32 v%d, 0xff, v%d' % (vBad, vBad))
        a('v_cmp_ne_u32 vcc, 0, v%d' % vBad)
        a('s_cbranch_vccz %s_ok' % name)
        a('s_sleep %d' % slp)
        a('s_sub_u32 s%d, s%d, 1' % (sCnt, sCnt))
        a('s_cmp_lg_u32 s%d, 0' % sCnt)
        a('s_cbranch_scc1 %s' % name)
        g.label(name + '_ok')
        if stamps:
            a('s_sub_u32 s%d, 0x%x, s%d' % (20 + 2 * npoll[0], tmo, sCnt))
            npoll[0] += 1

    def sum8():
        b = vG
        for e in range(4):
            for p in range(0, 8, 2):
                a('v_add_f32 v%d, v%d, v%d' % (b + 4 * p + e, b + 4 * p + e, b + 4 * p + 4 + e))
            a('v_add_f32 v%d, v%d, v%d' % (b + e, b + e, b + 8 + e))
            a('v_add_f32 v%d, v%d, v%d' % (b + 16 + e, b + 16 + e, b + 24 + e))
            a('v_add_f32 v%d, v%d, v%d' % (b + e, b + e, b + 16 + e))

    def post(value_sgpr, soff, pol=''):
        a('v_mov_b32 v%d, s%d' % (vG + 1, value_sgpr))
        a('s_mov_b64 exec, 1')
        a(('buffer_store_dword v%d, v%d, s[%d:%d], s%d offen %s' % (vG + 1, vCtl, sWS, sWS + 3, soff, pol)).rstrip())

    a('v_mov_b32 v%d, 0' % vCtl)
    for r in range(4):
        a('v_mov_b32 v%d, 0' % (vG + r))
    a('ds_write_b128 v%d, v[%d:%d] offset:%d' % (vCtl, vG, vG + 3, L_CTL))
    a('s_barrier')
    make_tag()
    a('s_and_b32 s%d, s%d, 0xff' % (sT8, sTag))
    a('s_barrier')
    c('H1: send the partial sums for the 8 batches, gather the 8 partial sums for batch j')
    for p in range(8):
        a('ds_read_b128 v[%d:%d], v%d offset:%d' % (vG + 4 * p, vG + 4 * p + 3, vNat, L_STG + 1040 * p))
    for p in range(8):
        a('s_waitcnt lgkmcnt(%d)' % (7 - p))
        a('buffer_store_dwordx4 v[%d:%d], v%d, s[%d:%d], s%d offen sc1' % (vG + 4 * p, vG + 4 * p + 3, vNat, sWS, sWS + 3, sH1))
        a('s_add_u32 s%d, s%d, 8192' % (sH1, sH1))
    a('s_waitcnt vmcnt(0)')
    stamp('st')
    poll('L_pq', True, sleep)
    sum8()
    a('v_cvt_pk_bf16_f32 v%d, v%d, v%d' % (vG, vG, vG + 1))
    a('v_cvt_pk_bf16_f32 v%d, v%d, v%d' % (vG + 1, vG + 2, vG + 3))
    a('ds_write_b64 v%d, v[%d:%d] offset:%d' % (vT3, vG, vG + 1, L_Q))
    a('s_waitcnt lgkmcnt(0)')
    stamp('q')
    a('s_barrier')
    c('B1 passed.  wo rows 128h .. + 127, columns 128j .. + 127 will go where wq was')
    weight_voffsets(11)
    a('s_lshl_b32 s%d, s%d, 18' % (sT0, sH))
    a('s_lshl_b32 s%d, s%d, 8' % (sT1, sJ))
    a('s_add_u32 s%d, s%d, s%d' % (sWOff, sT0, sT1))
    a('s_lshl_b32 s%d, s%d, 13' % (sT0, sH))
    a('s_add_u32 s%d, s%d, 0x%x' % (sOff, sT0, WS_H2))
    c('LDS address of the gathered o: (l>>5)*8*272 + (l&31)*8')
    a('v_lshrrev_b32 v%d, 5, v%d' % (vT2, vLane))
    a('v_mul_u32_u24 v%d, %d, v%d' % (vT2, 8 * 272, vT2))
    a('v_and_b32 v%d, 31, v%d' % (vT3, vLane))
    a('v_lshl_add_u32 v%d, v%d, 3, v%d' % (vT2, vT3, vT2))
    a('v_add_u32 v%d, %d, v%d' % (vT2, L_O, vT2))
    a('v_add_u32 v%d, %d, v%d' % (vT3, 4 * 272, vT2))
    a('s_mov_b32 s%d, %d' % (sLdsW, L_W))
    c('Progress words (speed only): one per CU in a block per die, stored plainly and read through that die\'s L2.')
    c('The share of neighbours that are ahead trims the loads in flight; odd dies run a little faster by nature.')
    a('s_getreg_b32 s%d, hwreg(HW_REG_XCC_ID)' % sT0)
    a('s_and_b32 s%d, s%d, 15' % (sT0, sT0))
    a('s_bitcmp1_b32 s%d, 0' % sT0)
    a('s_cselect_b32 s%d, %d, %d' % (sC, 8 + lpar[1], 8 + lpar[0]))
    a('s_mul_i32 s%d, s%d, 4352' % (sT0, sT0))
    a('s_add_u32 s%d, s%d, 0x%x' % (sLine, sT0, WS_CTL))
    a('s_getreg_b32 s%d, hwreg(HW_REG_HW_ID, 13, 2)' % sT1)
    a('s_getreg_b32 s%d, hwreg(HW_REG_HW_ID, 8, 4)' % sT0)
    a('s_lshl_b32 s%d, s%d, 6' % (sT1, sT1))
    a('s_lshl_b32 s%d, s%d, 2' % (sT0, sT0))
    a('s_add_u32 s%d, s%d, s%d' % (sT1, sT1, sT0))
    a('s_add_u32 s%d, s%d, s%d' % (sOwn, sLine, sT1))
    a('v_lshlrev_b32 v%d, 2, v%d' % (vWa, vLane))
    c('Every %d groups one workgroup per die compares with the other dies; slot 63 passes the result on.' % xp)
    a('v_mul_u32_u24 v%d, 4352, v%d' % (vWx, vLane))
    a('s_add_u32 s%d, s%d, 0x10000' % (sXo, sLine))
    a('s_mov_b32 s%d, 0x%x' % (sXa, WS_CTL + 0x10000))
    a('s_add_u32 s%d, s%d, 252' % (sXb, sLine))
    a('s_lshr_b32 s%d, s2, 3' % sXr)
    a('s_and_b32 s%d, s%d, %d' % (sT0, sXr, xp - 1))
    a('s_cmp_eq_u32 s%d, 0' % sT0)
    a('s_cselect_b32 s%d, s%d, 0' % (sXr, sXr))
    a('s_cmp_le_u32 s%d, %d' % (sXr, xlast))
    a('s_cselect_b32 s%d, s%d, 0' % (sXr, sXr))
    if nchk > 1:
        a('s_mul_i32 s%d, s%d, %d' % (sXr, sXr, nchk))
    a('s_and_b32 s%d, s%d, 0xffffff00' % (sThi, sTag))
    a('s_mov_b32 s%d, 1' % sL)
    if stamps:
        a('s_mov_b32 s18, 0')
        a('s_mov_b32 s16, 0')
    g.label('L_ctl')
    a('s_lshl_b32 s%d, s%d, 2' % (sT0, sL))
    a('s_sub_u32 s%d, s%d, 2' % (sT0, sT0))
    g.label('L_ctla')
    a('s_sleep 1')
    a('ds_read_b32 v%d, v%d offset:%d' % (vG, vCtl, L_CTL))
    a('s_waitcnt lgkmcnt(0)')
    a('v_cmp_gt_u32 vcc, s%d, v%d' % (sT0, vG))
    a('s_cbranch_vccnz L_ctla')
    a('s_or_b32 s%d, s%d, s%d' % (sMt, sThi, sL))
    a('s_cmp_lg_u32 s%d, s%d' % (sL, sXr))
    a('s_cbranch_scc1 L_ctlb')
    a('s_mov_b64 exec, 0xff')
    a('buffer_load_dword v%d, v%d, s[%d:%d], s%d offen sc1' % (vG + 3, vWx, sWS, sWS + 3, sXa))
    post(sMt, sXo, 'sc1')
    a('s_mov_b64 exec, -1')
    g.label('L_ctlb')
    post(sMt, sOwn)
    a('s_mov_b64 exec, -1')
    a('buffer_load_dword v%d, v%d, s[%d:%d], s%d offen sc1' % (vG + 2, vWa, sWS, sWS + 3, sLine))
    a('s_waitcnt vmcnt(0)')
    a('v_xor_b32 v%d, s%d, v%d' % (vG + 2, sThi, vG + 2))
    a('s_cmp_lg_u32 s%d, s%d' % (sL, sXr))
    a('s_cbranch_scc1 L_ctly')
    a('v_xor_b32 v%d, s%d, v%d' % (vG + 3, sThi, vG + 3))
    a('v_subrev_u32 v%d, s%d, v%d' % (vG + 3, sL, vG + 3))
    a('s_mov_b64 exec, 0xff')
    a('v_cmp_gt_u32 vcc, 64, v%d' % (vG + 3))
    a('s_nop 1')
    a('s_bcnt1_i32_b64 s%d, vcc' % sU)
    if stamps:
        a('s_add_u32 s16, s16, s%d' % sU)
    a('s_mul_i32 s%d, s%d, %d' % (sU, sU, xg))
    a('s_min_u32 s%d, s%d, 63' % (sU, sU))
    a('s_or_b32 s%d, s%d, 128' % (sU, sU))
    a('s_or_b32 s%d, s%d, s%d' % (sU, sU, sThi))
    post(sU, sXb)
    a('s_mov_b64 exec, -1')
    g.label('L_ctly')
    a('s_nop 0')
    a('v_readlane_b32 s%d, v%d, 63' % (sMt, vG + 2))
    a('v_subrev_u32 v%d, s%d, v%d' % (vG + 2, sL, vG + 2))
    a('v_cmp_gt_u32 vcc, 64, v%d' % (vG + 2))
    a('s_nop 1')
    a('s_bcnt1_i32_b64 s%d, vcc' % sU)
    if stamps:
        a('s_add_u32 s18, s18, s%d' % sU)
    a('s_sub_i32 s%d, s%d, 16' % (sU, sU))
    a('s_mul_i32 s%d, s%d, %d' % (sU, sU, umax))
    a('s_sub_u32 s%d, s%d, 128' % (sMt, sMt))
    a('s_cmp_lt_u32 s%d, 64' % sMt)
    a('s_cselect_b32 s%d, s%d, %d' % (sMt, sMt, xoff))
    a('s_sub_i32 s%d, s%d, %d' % (sMt, sMt, xoff))
    a('s_add_i32 s%d, s%d, s%d' % (sU, sU, sMt))
    a('s_add_i32 s%d, s%d, s%d' % (sU, sU, sC))
    a('s_ashr_i32 s%d, s%d, 4' % (sU, sU))
    a('s_max_i32 s%d, s%d, %d' % (sU, sU, umin))
    a('v_mov_b32 v%d, s%d' % (vG, sU))
    a('ds_write_b32 v%d, v%d offset:%d' % (vCtl, vG, L_CTL + 4))
    a('s_add_u32 s%d, s%d, 1' % (sL, sL))
    nlast = 31 * nchk + (sum(1 for x in chk if x[2] < 24) if lastchk else 0)
    assert nlast < 64
    a('s_cmp_le_u32 s%d, %d' % (sL, nlast))
    a('s_cbranch_scc1 L_ctl')
    c('fetch wo once this workgroup\'s stream is all but over, or as soon as %d neighbours are there' % ltrig)
    DONE = 100
    g.label('L_tr')
    a('ds_read_b32 v%d, v%d offset:%d' % (vG, vCtl, L_CTL + 12))
    a('buffer_load_dword v%d, v%d, s[%d:%d], s%d offen sc1' % (vG + 2, vWa, sWS, sWS + 3, sLine))
    a('s_waitcnt lgkmcnt(0)')
    a('v_cmp_le_u32 vcc, 2, v%d' % vG)
    a('s_cbranch_vccnz L_trown')
    a('s_waitcnt vmcnt(0)')
    a('v_xor_b32 v%d, s%d, v%d' % (vG + 2, sThi, vG + 2))
    a('v_cmp_eq_u32 vcc, %d, v%d' % (DONE, vG + 2))
    a('s_nop 1')
    a('s_bcnt1_i32_b64 s%d, vcc' % sU)
    a('s_cmp_ge_u32 s%d, %d' % (sU, ltrig))
    a('s_cbranch_scc1 L_trgo')
    a('s_sleep 2')
    a('s_branch L_tr')
    g.label('L_trown')
    a('s_or_b32 s%d, s%d, %d' % (sMt, sThi, DONE))
    post(sMt, sOwn)
    g.label('L_trgo')
    a('s_mov_b64 exec, -1')
    if woprio != 3:
        a('s_setprio %d' % woprio)
    for mod in range(2):
        a('s_mov_b32 s%d, s%d' % (sT0, sWOff))
        a('s_mov_b32 s%d, 8' % sCnt)
        g.label('L_wo%d' % mod)
        for i in range(4):
            if wowin:
                a('s_waitcnt vmcnt(%d)' % (wowin - 1))
            a('s_mov_b32 m0, s%d' % sLdsW)
            a('s_add_u32 s%d, s%d, 1024' % (sLdsW, sLdsW))
            a('buffer_load_dwordx4 v%d, s[%d:%d], s%d offen nt lds' % (vW1 if i & 2 else vW, sWO[mod], sWO[mod] + 3, sT0))
            a('s_add_u32 s%d, s%d, 8192' % (sT0, sT0))
        a('s_sub_u32 s%d, s%d, 1' % (sCnt, sCnt))
        a('s_cmp_lg_u32 s%d, 0' % sCnt)
        a('s_cbranch_scc1 L_wo%d' % mod)
    if woprio != 3:
        a('s_setprio 3')
    a('s_waitcnt vmcnt(0)')
    if og:
        stamp('wo')
        stamp('o')
        if stamps:
            a('s_mov_b32 s22, 0')
            npoll[0] += 1
    else:
        a('s_barrier')
        c('B3 passed.  H2: gather o of the 8 batches')
        stamp('wo')
        poll('L_po', False, sleep)
        for p in range(8):
            a('ds_write2_b32 v%d, v%d, v%d offset0:%d offset1:%d' % (vT2 if p < 4 else vT3, vG + 4 * p, vG + 4 * p + 2, 68 * (p & 3), 68 * (p & 3) + 1))
        a('s_waitcnt lgkmcnt(0)')
        stamp('o')
    a('s_barrier')
    c('B4 passed.  H3: row h of the 32 blocks of slice j = outputs (mod, b, half) with h = mod*16 + b*2 + half')
    a('s_lshl_b32 s%d, s%d, 18' % (sT0, sJ))
    a('s_lshl_b32 s%d, s%d, 8' % (sT1, sH))
    a('s_add_u32 s%d, s%d, s%d' % (sOff, sT0, sT1))
    a('v_lshlrev_b32 v%d, 4, v%d' % (vHi, vT0))
    a('v_lshl_add_u32 v%d, v%d, 13, v%d' % (vHi, vT1, vHi))
    c('out byte offset: b*4096 + mod*2048 + j*256 + half*128 + (l&15)*8')
    a('s_bfe_u32 s%d, s%d, 0x30001' % (sT0, sH))
    a('s_lshl_b32 s%d, s%d, 12' % (sT0, sT0))
    a('s_lshr_b32 s%d, s%d, 4' % (sT1, sH))
    a('s_lshl_b32 s%d, s%d, 11' % (sT1, sT1))
    a('s_add_u32 s%d, s%d, s%d' % (sT0, sT0, sT1))
    a('s_lshl_b32 s%d, s%d, 8' % (sT1, sJ))
    a('s_add_u32 s%d, s%d, s%d' % (sT0, sT0, sT1))
    a('s_and_b32 s%d, s%d, 1' % (sT1, sH))
    a('s_lshl_b32 s%d, s%d, 7' % (sT1, sT1))
    a('s_add_u32 s%d, s%d, s%d' % (sWOff, sT0, sT1))
    a('v_lshlrev_b32 v%d, 3, v%d' % (vT2, vT0))
    if b5:
        a('s_barrier')
    poll('L_pp', True, sleep3, 32768)
    sum8()
    for swap in ('v_permlane32_swap_b32', 'v_permlane16_swap_b32'):
        for r in range(4):
            a('v_mov_b32 v%d, v%d' % (vG + 4 + r, vG + r))
        a('s_nop 1')
        for r in range(4):
            a('%s v%d, v%d' % (swap, vG + r, vG + 4 + r))
        a('s_nop 1')
        for r in range(4):
            a('v_add_f32 v%d, v%d, v%d' % (vG + r, vG + r, vG + 4 + r))
    a('v_cvt_pk_bf16_f32 v%d, v%d, v%d' % (vG, vG, vG + 1))
    a('v_cvt_pk_bf16_f32 v%d, v%d, v%d' % (vG + 1, vG + 2, vG + 3))
    a('s_mov_b32 exec_lo, 0xffff')
    a('s_mov_b32 exec_hi, 0')
    a('buffer_store_dwordx2 v[%d:%d], v%d, s[%d:%d], s%d offen' % (vG, vG + 1, vT2, sOut, sOut + 3, sWOff))
    c('H3 has arrived, so every workgroup has read the epoch word: workgroup 0 moves it on')
    a('s_cmp_lg_u32 s2, 0')
    a('s_cbranch_scc1 L_comm_end')
    a('v_mov_b32 v%d, s%d' % (vT2, sTag))
    a('v_mov_b32 v%d, 0' % vT3)
    a('s_mov_b64 exec, 1')
    a('buffer_store_dword v%d, v%d, s[%d:%d], s%d offen' % (vT2, vT3, sWS, sWS + 3, sBase))
    g.label('L_comm_end')
    if stamps:
        a('s_waitcnt vmcnt(0)')
        stamp('fin')
        write_stamps(11)
    g.label('L_exit')
    a('s_endpgm')

    tail = '''.section .rodata,"a"
.p2align 6
.amdhsa_kernel %s
  .amdhsa_next_free_vgpr 256
  .amdhsa_next_free_sgpr 100
  .amdhsa_accum_offset 256
  .amdhsa_group_segment_fixed_size 0
  .amdhsa_kernarg_size 104
  .amdhsa_user_sgpr_count 2
  .amdhsa_user_sgpr_kernarg_segment_ptr 1
  .amdhsa_system_sgpr_workgroup_id_x 1
  .amdhsa_float_denorm_mode_32 3
.end_amdhsa_kernel
''' % K1
    head = HEADER + '; @launch grid=(256,1,1) block=(320,1,1) lds=%d\n' % L_END
    if stamps:
        head += '; nst3=%d names: start %s\n' % (nst_stream + 1, ' '.join(names))
    head += ''.join(('; ' + l).rstrip() + '\n' for l in DESIGN.split('\n'))
    return head + '\n'.join(g.L) + '\n' + tail


if __name__ == '__main__':
    import json
    kw = json.loads(sys.argv[2]) if len(sys.argv) > 2 else {}
    src = gen(**kw)
    open(sys.argv[1], 'w').write(src)
```

```python
import sys, math, struct

NAME = 'concat_heads__mha_block_cached__mha_block_cached__decode'
HEADER = open('cdna_kernels/' + NAME + '.s.ref').read().split('; Override launch')[0]

DESIGN = """
One launch, 256 workgroups (one per CU), 5 waves each.  Workgroup (h, j): head h, batch j of both modules.
The 1 GiB of K/V is streamed in four chip-wide phases K_A, V_A, K_B, V_B (one large buffer at a time: reading
several at once costs up to 13 % of the HBM rate, depending on where they were allocated).
 waves 0-3  stream with five 1 KiB loads in flight each (enough to fill HBM, few enough to share it evenly).
            K pass: v_dot2 + DPP reduction -> 1024 scores per wave in 16 registers; exact softmax per wave
            (true maximum); V pass: p on the diagonal of the MFMA A operand, V rows as the B operand.
 wave 4     hand-offs through d_ws.  Every word carries a tag derived from a word at WS_EPOCH that the launch
            moves on at its end, so words of an earlier launch are never taken for this launch's.
   H1  x @ wq: (h, j) multiplies rows 128j..128j+127 for all batches, the 8 workgroups of a head swap partial sums
   H2  the 8 workgroups of a head swap their attention outputs; (h, j) multiplies with columns 128j..128j+127 of wo
   H3  the 32 workgroups of a column slice swap partial outputs; each sums 64 outputs over the heads
            While the stream runs it also trims the loads in flight by a few percent from the progress words of
            the neighbours, so that all workgroups finish together.  That affects speed only.
"""


def f32bits(x):
    return struct.unpack('<I', struct.pack('<f', x))[0]


CSCALE = (128 ** -0.5) * math.log2(math.e)
WS_H3 = 0
WS_H1 = 2 << 20
WS_H2 = 4 << 20
WS_EPOCH = 5 << 20
WS_CTL = (5 << 20) + 65536
WS_END = 6 << 20
WS_STAMP = 8 << 20
L_Q = 0
L_ACC = 512
L_ML = 4608
L_O = 4672
L_CTL = 9152
L_STG = 9216
L_W = 17664
L_END = L_W + 65536


class Asm:
    def __init__(self):
        self.L = []
        self.q = []

    def a(self, s):
        self.L.append('    ' + s)

    def c(self, s):
        self.L.append('    ; ' + s)

    def label(self, s):
        self.L.append(s + ':')

    def vm(self, tag, s):
        self.a(s)
        self.q.append(tag)
        assert len(self.q) <= 63

    def wait_tag(self, tag):
        idx = [i for i, t in enumerate(self.q) if t == tag]
        if idx:
            self.a('s_waitcnt vmcnt(%d)' % (len(self.q) - 1 - idx[-1]))
            self.q = self.q[idx[-1] + 1:]

    def limit(self, n):
        if len(self.q) > n:
            self.a('s_waitcnt vmcnt(%d)' % n)
            self.q = self.q[len(self.q) - n:] if n else []


def gen(W=5, D=8, T=8, early=8, x0=4, win=10, sleep=2, sleep3=2, tmo=1 << 20, stamps=False,
        chk=((18, 29, 31),), umax=4, uflex=10, umin=-10, lpar=(8, -24), xg=10, xp=4, xoff=8, xlast=26,
        ltrig=4, b2at=20, lastchk=False, touch=0, woprio=3, sprio=0, wowin=24, wg=4, og=False, b5=True, thr2=0, per=1):
    g = Asm()
    a, c = g.a, g.c
    nchk = len(chk)
    assert W + 1 < D <= 32
    sX, sWQ, sK, sV, sWO = (32, 36), (40, 44), (48, 56), (52, 60), (64, 68)
    sWS, sOut = 72, 32
    sTag, sH, sJ, sOff, sCnt, sT0, sT1, sC = 76, 77, 78, 79, 80, 81, 82, 83
    sB1, sB0, sN8 = 86, 88, 90
    sMt, sBase, sL, sLdsW, sWOff, sH1, sT8, sU = 92, 93, 94, 95, 96, 97, 84, 85
    sRk = 64
    sOwn, sLine, sThi = 36, 38, 39
    sXo, sXa, sXb, sXr = 40, 41, 42, 43
    vLane, vT0, vT1, vT2, vT3 = 1, 2, 3, 4, 5
    vHi, vNat = 6, 7
    vMask = 8
    vAcc = 12
    vA = (16, 20)
    vS, vPa, vCc = 24, 28, 32
    vNeg, vTmp, vTr, vW = 36, 37, 38, 39
    vZ = 40
    vQn = 72
    vXf = (76, 92)
    vTr1, vW1, vH1, vCtl, vOne, vU, vRk = 108, 109, 110, 111, 120, 121, 122
    vWf = (40, 224)
    vQD = (24, 112)
    vRing = 128
    DPPF = 'row_mask:0xf bank_mask:0x%x'
    nst = [0]
    names = []

    def stamp(name):
        if stamps:
            names.append(name)
            a('s_memrealtime s[%d:%d]' % (4 + 2 * nst[0], 5 + 2 * nst[0]))
            nst[0] += 1

    def write_stamps(n):
        a('s_waitcnt vmcnt(0) lgkmcnt(0)')
        a('s_mov_b64 exec, -1')
        a('s_getreg_b32 s99, hwreg(HW_REG_XCC_ID)')
        a('v_mov_b32 v%d, s99' % vT2)
        a('v_writelane_b32 v%d, s98, 0' % vT2)
        for i in range(n):
            a('v_writelane_b32 v%d, s%d, %d' % (vT2, 4 + 2 * i, i + 1))
        a('s_mul_i32 s%d, s2, 5' % sT0)
        a('s_add_u32 s%d, s%d, s3' % (sT0, sT0))
        a('s_lshl_b32 s%d, s%d, 8' % (sT0, sT0))
        a('s_add_u32 s%d, s%d, 0x%x' % (sT0, sT0, WS_STAMP))
        a('v_lshl_add_u32 v%d, v%d, 2, s%d' % (vT3, vLane, sT0))
        a('buffer_store_dword v%d, v%d, s[%d:%d], 0 offen' % (vT2, vT3, sWS, sWS + 3))

    def srd(d, p, size):
        a('s_mov_b32 s%d, s%d' % (d, p))
        a('s_mov_b32 s%d, s%d' % (d + 1, p + 1))
        a('s_mov_b32 s%d, 0x%x' % (d + 2, size))
        a('s_mov_b32 s%d, 0x20000' % (d + 3))

    def make_tag():
        c('tag = next value of a full-period generator: differs from the old word, also in its low byte')
        a('s_waitcnt lgkmcnt(0)')
        a('s_mul_i32 s%d, s%d, 0x19660d' % (sTag, sTag))
        a('s_add_u32 s%d, s%d, 0x3c6ef35f' % (sTag, sTag))

    def weight_voffsets(shift):
        c('16-byte chunk k of row r lands in slot k ^ (2*(r&3) + 8*((r>>3)&1)): conflict-free transposed reads')
        a('v_lshlrev_b32 v%d, 1, v%d' % (vW, vT1))
        a('v_xor_b32 v%d, v%d, v%d' % (vW, vW, vT0))
        a('v_lshlrev_b32 v%d, 4, v%d' % (vW, vW))
        a('v_lshl_add_u32 v%d, v%d, %d, v%d' % (vW, vT1, shift, vW))
        a('v_xor_b32 v%d, 128, v%d' % (vW1, vW))

    K1 = NAME + '_kernel'
    g.L += ['.amdgcn_target "amdgcn-amd-amdhsa--gfx950"', '.text', '.globl %s' % K1, '.p2align 8', '.type %s,@function' % K1]
    g.label(K1)
    a('s_cmp_ge_u32 s2, 256')
    a('s_cbranch_scc1 L_exit')
    if stamps:
        a('s_memrealtime s[98:99]')
    a('s_load_dwordx16 s[4:19], s[0:1], 0')
    a('s_load_dwordx8 s[20:27], s[0:1], 64')
    a('s_load_dwordx2 s[28:29], s[0:1], 96')
    a('v_lshrrev_b32 v%d, 6, v0' % vT0)
    a('v_and_b32 v%d, 63, v0' % vLane)
    a('v_readfirstlane_b32 s3, v%d' % vT0)
    c('h = (id & 7) + 8*(id >> 6), j = (id >> 3) & 7')
    a('s_lshr_b32 s%d, s2, 6' % sH)
    a('s_lshl_b32 s%d, s%d, 3' % (sH, sH))
    a('s_and_b32 s%d, s2, 7' % sT0)
    a('s_add_u32 s%d, s%d, s%d' % (sH, sH, sT0))
    a('s_bfe_u32 s%d, s2, 0x30003' % sJ)
    a('s_mov_b32 s%d, 0x%x' % (sH1, WS_EPOCH))
    a('v_and_b32 v%d, 15, v%d' % (vT0, vLane))
    a('v_lshrrev_b32 v%d, 4, v%d' % (vT1, vLane))
    a('v_lshlrev_b32 v%d, 4, v%d' % (vNat, vLane))
    a('s_cmp_eq_u32 s3, 4')
    a('s_waitcnt lgkmcnt(0)')
    a('s_load_dword s%d, s[28:29], s%d' % (sTag, sH1))
    srd(sWS, 28, (WS_STAMP + (1 << 20)) if stamps else WS_END)
    a('s_cbranch_scc1 L_comm')

    c('================ waves 0-3')
    srd(sWQ[0], 10, 1 << 23)
    srd(sX[0], 4, 16384)
    c('wq rows 128j + 32w .. + 31, columns of head h -> LDS [128 rows][256 B], four rows per instruction')
    weight_voffsets(13)
    a('s_lshl_b32 s%d, s%d, 20' % (sT0, sJ))
    a('s_lshl_b32 s%d, s%d, 8' % (sT1, sH))
    a('s_add_u32 s%d, s%d, s%d' % (sT0, sT0, sT1))
    a('s_lshl_b32 s%d, s3, 18' % sT1)
    a('s_add_u32 s%d, s%d, s%d' % (sWOff, sT0, sT1))
    a('s_lshl_b32 s%d, s3, 13' % sLdsW)
    c('x fragments: lane (n, g) holds x[n & 7][128j + 32kb + 8g ..]')
    vXa = vAcc
    a('v_and_b32 v%d, 7, v%d' % (vXa, vLane))
    a('v_lshlrev_b32 v%d, 11, v%d' % (vXa, vXa))
    a('v_lshl_add_u32 v%d, v%d, 4, v%d' % (vXa, vT1, vXa))
    a('s_lshl_b32 s%d, s%d, 8' % (sT1, sJ))
    srd(sX[1], 14, 16384)
    for mod in range(2):
        for kb in range(4):
            r = vXf[mod] + 4 * kb
            g.vm('w', 'buffer_load_dwordx4 v[%d:%d], v%d, s[%d:%d], s%d offen offset:%d' % (r, r + 3, vXa, sX[mod], sX[mod] + 3, sT1, 64 * kb))
    for mod in range(2):
        if mod:
            srd(sWQ[1], 20, 1 << 23)
        for i in range(8):
            a('s_add_u32 m0, s%d, %d' % (sLdsW, L_W + mod * 32768 + i * 1024))
            a('s_add_u32 s%d, s%d, %d' % (sT0, sWOff, i * 4 * 8192))
            g.vm('w', 'buffer_load_dwordx4 v%d, s[%d:%d], s%d offen nt lds' % (vW1 if i & 2 else vW, sWQ[mod], sWQ[mod] + 3, sT0))
    srd(sK[0], 6, 1 << 28)
    c('K/V of (batch j, head h): the four waves take tiles of %d KiB in turn' % T)
    a('s_lshl_b32 s%d, s%d, 5' % (sBase, sJ))
    a('s_add_u32 s%d, s%d, s%d' % (sBase, sBase, sH))
    a('s_lshl_b32 s%d, s%d, 20' % (sBase, sBase))
    a('s_mul_i32 s%d, s3, %d' % (sT0, T * 1024))
    a('s_add_u32 s%d, s%d, s%d' % (sBase, sBase, sT0))
    a('s_mov_b32 s%d, s%d' % (sOff, sBase))

    def ring_load(srd_, j):
        r = vRing + 4 * (j & 31)
        g.vm('R%d' % (j & 31), 'buffer_load_dwordx4 v[%d:%d], v%d, s[%d:%d], s%d offen offset:%d nt' % (r, r + 3, vNat, srd_, srd_ + 3, sOff, 1024 * (j & 3)))
        if j & 3 == 3:
            a('s_add_u32 s%d, s%d, %d' % (sOff, sOff, 4096 if (j + 1) % T else 3 * T * 1024 + 4096))

    for j in range(early):
        ring_load(sK[0], j)
    srd(sV[0], 8, 1 << 28)
    srd(sK[1], 16, 1 << 28)
    srd(sV[1], 18, 1 << 28)
    c('transposed-read address: (8g + r)*256 + ((4w + 2cb) ^ (2r + 8(g&1)))*16 + (l&3)*8,  r = (l>>2)&3')
    a('v_lshrrev_b32 v%d, 2, v%d' % (vTmp, vT0))
    a('v_and_b32 v%d, 1, v%d' % (vTr, vT1))
    a('v_lshl_add_u32 v%d, v%d, 2, v%d' % (vTr, vTr, vTmp))
    a('s_lshl_b32 s%d, s3, 1' % sT0)
    a('v_xor_b32 v%d, s%d, v%d' % (vTr, sT0, vTr))
    a('v_lshlrev_b32 v%d, 5, v%d' % (vTr, vTr))
    a('v_lshl_add_u32 v%d, v%d, 11, v%d' % (vTr, vT1, vTr))
    a('v_lshl_add_u32 v%d, v%d, 8, v%d' % (vTr, vTmp, vTr))
    a('v_and_b32 v%d, 3, v%d' % (vT3, vLane))
    a('v_lshl_add_u32 v%d, v%d, 3, v%d' % (vTr, vT3, vTr))
    a('v_xor_b32 v%d, 32, v%d' % (vTr1, vTr))
    a('v_add_u32 v%d, %d, v%d' % (vTr, L_W, vTr))
    a('v_add_u32 v%d, %d, v%d' % (vTr1, L_W, vTr1))
    a('s_mov_b32 s%d, 0x%08x' % (sC, f32bits(CSCALE)))
    for reg, val in ((sB1, 0xcccccccc), (sB0, 0xaaaaaaaa), (sN8, 0xff00ff00)):
        a('s_mov_b32 s%d, 0x%08x' % (reg, val))
        a('s_mov_b32 s%d, 0x%08x' % (reg + 1, val))
    c('masks that put p on the diagonal of the A operand')
    a('v_mov_b32 v%d, 0xffff' % vNeg)
    a('v_mov_b32 v%d, 0xffff0000' % vTmp)
    a('v_cndmask_b32 v%d, v%d, v%d, s[%d:%d]' % (vNeg, vNeg, vTmp, sB0, sB0 + 1))
    a('v_bfe_u32 v%d, v%d, 1, 2' % (vTmp, vLane))
    for rr in range(4):
        a('v_cmp_eq_u32 vcc, %d, v%d' % (rr, vTmp))
        a('s_nop 1')
        a('v_cndmask_b32 v%d, 0, v%d, vcc' % (vMask + rr, vNeg))
    c('staging address of the q partials: (n&7)*1040 + w*128 + (n>>3)*64 + g*16')
    a('v_and_b32 v%d, 7, v%d' % (vTmp, vLane))
    a('v_mul_u32_u24 v%d, 1040, v%d' % (vH1, vTmp))
    a('v_bfe_u32 v%d, v%d, 3, 1' % (vTmp, vLane))
    a('v_lshl_add_u32 v%d, v%d, 6, v%d' % (vH1, vTmp, vH1))
    a('v_lshl_add_u32 v%d, v%d, 4, v%d' % (vH1, vT1, vH1))
    a('s_lshl_b32 s%d, s3, 7' % sT0)
    a('v_add_u32 v%d, s%d, v%d' % (vH1, sT0, vH1))

    def tr_reads(dst, mod):
        for cb in range(2):
            for kb in range(4):
                for hh in range(2):
                    r = dst + (cb * 4 + kb) * 4 + 2 * hh
                    a('ds_read_b64_tr_b16 v[%d:%d], v%d offset:%d' % (r, r + 1, vTr1 if cb else vTr, mod * 32768 + kb * 8192 + hh * 1024))

    def proj_mfma(d, wf, xf):
        for kb in range(4):
            for cb in range(2):
                w = wf + (cb * 4 + kb) * 4
                dd = d + 4 * cb
                a('v_mfma_f32_16x16x32_bf16 v[%d:%d], v[%d:%d], v[%d:%d], %s' % (dd, dd + 3, w, w + 3, xf + 4 * kb, xf + 4 * kb + 3, '0' if kb == 0 else 'v[%d:%d]' % (dd, dd + 3)))

    def select_tag(dst, d):
        for r in range(4):
            a('v_cndmask_b32 v%d, v%d, v%d, s[%d:%d]' % (dst + r, d + r, d + 4 + r, sN8, sN8 + 1))
        for r in range(4):
            a('v_bfi_b32 v%d, v%d, v%d, v%d' % (dst + r, vTmp, vNeg, dst + r))

    a('v_mov_b32 v%d, 0xff' % vTmp)
    a('v_mov_b32 v%d, 0' % vCtl)
    a('v_mov_b32 v%d, 1' % vOne)
    a('s_mov_b32 s%d, 0' % sU)
    if wg:
        a('s_mov_b32 s%d, -4' % sRk)
    c('wave 0 shares its SIMD with wave 4 and would fall behind while that one works: a head start')
    assert early % 4 == 0 and 0 < x0 <= 4 and early + x0 <= 24
    a('s_cmp_lg_u32 s3, 0')
    a('s_cbranch_scc1 L_x0a')
    q0 = list(g.q)
    for j in range(early, early + x0):
        ring_load(sK[0], j)
    g.wait_tag('w')
    a('s_branch L_x0b')
    g.label('L_x0a')
    g.q = q0
    g.wait_tag('w')
    g.label('L_x0b')
    a('s_barrier')
    c('B0: all rows of wq_A and wq_B have landed')
    stamp('B0')
    for mod in range(2):
        tr_reads(vWf[mod], mod)
    for mod in range(2):
        a('s_waitcnt lgkmcnt(%d)' % (15 if mod == 0 else 0))
        proj_mfma(vQD[mod], vWf[mod], vXf[mod])
    make_tag()
    a('v_mov_b32 v%d, s%d' % (vNeg, sTag))
    for mod in range(2):
        a('s_nop 0')
        select_tag(vA[mod], vQD[mod])
        a('ds_write_b128 v%d, v[%d:%d] offset:%d' % (vH1, vA[mod], vA[mod] + 3, L_STG + mod * 512))
    a('s_waitcnt lgkmcnt(0)')
    a('s_barrier')
    c('B0b: wave 4 sends the partials out; fill the ring with K meanwhile')
    stamp('stg')
    a('s_cmp_eq_u32 s3, 0')
    a('s_cbranch_scc1 L_x0c')
    for j in range(early, 32):
        if j == early + x0:
            g.label('L_x0c')
            a('s_waitcnt vmcnt(%d)' % (win - 1))
            g.q = g.q[-(win - 1):]
        else:
            g.limit(win - 1)
        ring_load(sK[0], j)
    stamp('ring')
    a('s_barrier')
    c('B1: q is in LDS')
    if sprio:
        a('s_setprio %d' % sprio)
    stamp('B1')

    def pos(tau, r):
        return 8 * (r & 1) + 4 * (r >> 1) + 2 * (tau & 1) + (tau >> 1)

    def rotate():
        for i in range(14):
            a('v_mov_b32 v%d, v%d' % (vZ + i, vZ + i + 2))

    def k_group(refill):
        rotate()
        p, cc = vPa, vCc
        for i in range(32):
            k, r = divmod(i, 4)
            g.wait_tag('R%d' % i)
            for e in range(4):
                a('v_dot2_f32_bf16 v%d, v%d, v%d, %s' % (p + r, vRing + 4 * i + e, vQn + e, '0' if e == 0 else 'v%d' % (p + r)))
            refill(i)
            if r == 3:
                a('v_add_f32_dpp v%d, v%d, v%d row_mirror %s' % (p, p, p, DPPF % 3))
                a('v_add_f32_dpp v%d, v%d, v%d row_mirror %s' % (p, p + 1, p + 1, DPPF % 12))
                a('v_add_f32_dpp v%d, v%d, v%d row_mirror %s' % (p + 2, p + 2, p + 2, DPPF % 3))
                a('v_add_f32_dpp v%d, v%d, v%d row_mirror %s' % (p + 2, p + 3, p + 3, DPPF % 12))
                a('s_nop 0')
                a('v_add_f32_dpp v%d, v%d, v%d row_half_mirror %s' % (cc + (k & 3), p, p, DPPF % 5))
                a('v_add_f32_dpp v%d, v%d, v%d row_half_mirror %s' % (cc + (k & 3), p + 2, p + 2, DPPF % 10))
            if i & 15 == 15:
                for t in range(4):
                    a('v_add_f32_dpp v%d, v%d, v%d quad_perm:[2,3,0,1] %s' % (cc + t, cc + t, cc + t, DPPF % 15))
                a('v_cndmask_b32 v%d, v%d, v%d, s[%d:%d]' % (cc, cc, cc + 1, sB1, sB1 + 1))
                a('v_cndmask_b32 v%d, v%d, v%d, s[%d:%d]' % (cc + 2, cc + 2, cc + 3, sB1, sB1 + 1))
                a('s_nop 0')
                a('v_add_f32_dpp v%d, v%d, v%d quad_perm:[1,0,3,2] %s' % (cc, cc, cc, DPPF % 15))
                a('v_add_f32_dpp v%d, v%d, v%d quad_perm:[1,0,3,2] %s' % (cc + 2, cc + 2, cc + 2, DPPF % 15))
                a('v_cndmask_b32 v%d, v%d, v%d, s[%d:%d]' % (vZ + 14 + (i >> 4), cc, cc + 2, sB0, sB0 + 1))

    def v_group(refill):
        def build(i):
            for rr in range(4):
                a('v_and_b32_dpp v%d, v%d, v%d row_newbcast:%d %s' % (vA[i & 1] + rr, vZ + (i >> 4), vMask + rr, pos((i >> 2) & 3, i & 3), DPPF % 15))
        build(0)
        for i in range(32):
            if i < 31:
                build(i + 1)
            else:
                a('s_nop 1')
            g.wait_tag('R%d' % i)
            b = vRing + 4 * i
            a('v_mfma_f32_16x16x32_bf16 v[%d:%d], v[%d:%d], v[%d:%d], v[%d:%d]' % (vAcc, vAcc + 3, vA[i & 1], vA[i & 1] + 3, b, b + 3, vAcc, vAcc + 3))
            refill(i)
        rotate()

    uid = [0]

    def signal(word, rtn=False):
        a('s_mov_b64 exec, 1')
        if rtn:
            a('ds_add_rtn_u32 v%d, v%d, v%d offset:%d' % (vRk, vCtl, vOne, L_CTL + 4 * word))
        else:
            a('ds_add_u32 v%d, v%d offset:%d' % (vCtl, vOne, L_CTL + 4 * word))
        a('s_mov_b64 exec, -1')

    def paced(srd_, i, j):
        r = int('{:04b}'.format(i >> 1)[::-1], 2)
        if i % 2 == 0 and len(g.q) >= W - 1 and r < uflex:
            uid[0] += 1
            g.limit(W)
            a('s_cmp_gt_i32 s%d, %d' % (sU, r))
            a('s_cbranch_scc1 L_u%d' % uid[0])
            a('s_waitcnt vmcnt(%d)' % (W - 1))
            a('s_cmp_ge_i32 s%d, %d' % (sU, -r))
            a('s_cbranch_scc1 L_u%d' % uid[0])
            a('s_waitcnt vmcnt(%d)' % (W - 2))
            g.label('L_u%d' % uid[0])
        else:
            g.limit(W - 1)
        ring_load(srd_, j)

    def group(body, refill, upto=32):
        def take():
            a('s_waitcnt lgkmcnt(0)')
            a('v_readfirstlane_b32 s%d, v%d' % (sU, vU))
            if wg:
                a('v_readfirstlane_b32 s%d, v%d' % (sT0, vRk))
                a('s_add_u32 s%d, s%d, 4' % (sRk, sRk))
                a('s_nop 0')
                a('s_sub_i32 s%d, s%d, s%d' % (sT0, sT0, sRk))
                a('s_mul_i32 s%d, s%d, %d' % (sT0, sT0, 2 * wg))
                a('s_add_i32 s%d, s%d, %d' % (sT0, sT0, 2 - 3 * wg))
                a('s_ashr_i32 s%d, s%d, 2' % (sT0, sT0))
                a('s_add_i32 s%d, s%d, s%d' % (sU, sU, sT0))

        def rf(i):
            refill(i)
            for sa, sr, sx in chk:
                if sx < upto:
                    if i == sa:
                        signal(0, wg)
                    if i == sr:
                        a('ds_read_b32 v%d, v%d offset:%d' % (vU, vCtl, L_CTL + 4))
                    if i == sx and sx < 31:
                        take()
        body(rf)
        if chk[-1][2] == 31 and upto == 32:
            take()

    def phase(name, body, srd_, srd_next, trips):
        g.limit(W)
        steady = ['R%d' % j for j in range(D - W, D)]
        assert g.q == steady[len(steady) - len(g.q):]
        g.q = list(steady)
        a('s_mov_b32 s%d, %d' % (sCnt, trips))
        g.label(name)
        group(body, lambda i: paced(srd_, i, i + D))
        assert g.q == steady
        a('s_sub_u32 s%d, s%d, 1' % (sCnt, sCnt))
        a('s_cmp_lg_u32 s%d, 0' % sCnt)
        a('s_cbranch_scc1 %s' % name)

        def last(i):
            if i + D < 32:
                paced(srd_, i, i + D)
            elif srd_next is not None:
                if i + D == 32:
                    a('s_mov_b32 s%d, s%d' % (sOff, sBase))
                paced(srd_next, i, i + D)
            if srd_next is None and i == b2at:
                signal(3)
        c('last group of the phase: the look-ahead crosses into the next buffer')
        group(body, last, 32 if srd_next is not None else (24 if lastchk else 0))

    def wave_reduce(op, v):
        for ctl in ('row_mirror', 'row_half_mirror', 'quad_perm:[2,3,0,1]', 'quad_perm:[1,0,3,2]'):
            a('s_nop 1')
            a('%s_dpp v%d, v%d, v%d %s %s' % (op, v, v, v, ctl, DPPF % 15))
        a('s_nop 1')
        a('%s_dpp v%d, v%d, v%d row_bcast:15 row_mask:0xa bank_mask:0xf' % (op, v, v, v))
        a('s_nop 1')
        a('%s_dpp v%d, v%d, v%d row_bcast:31 row_mask:0xc bank_mask:0xf' % (op, v, v, v))
        a('s_nop 0')

    def softmax():
        c('softmax of this wave\'s 1024 scores: m = max, p = 2^(c*s - c*m), l = sum p')
        a('v_max3_f32 v%d, v%d, v%d, v%d' % (vTmp, vZ, vZ + 1, vZ + 2))
        for i in range(3, 15, 2):
            a('v_max3_f32 v%d, v%d, v%d, v%d' % (vTmp, vTmp, vZ + i, vZ + i + 1))
        a('v_max_f32 v%d, v%d, v%d' % (vTmp, vTmp, vZ + 15))
        wave_reduce('v_max_f32', vTmp)
        a('v_readlane_b32 s%d, v%d, 63' % (sMt, vTmp))
        a('v_mov_b32 v%d, s%d' % (vNeg, sC))
        a('s_nop 0')
        a('v_mul_f32 v%d, s%d, v%d' % (vNeg, sMt, vNeg))
        for i in range(16):
            a('v_fma_f32 v%d, v%d, s%d, -v%d' % (vZ + i, vZ + i, sC, vNeg))
        for i in range(16):
            a('v_exp_f32 v%d, v%d' % (vZ + i, vZ + i))
        for r in range(4):
            a('v_mov_b32 v%d, 0' % (vAcc + r))
        a('v_add_f32 v%d, v%d, v%d' % (vS, vZ, vZ + 1))
        for i in range(2, 16):
            a('v_add_f32 v%d, v%d, v%d' % (vS, vS, vZ + i))
        for i in range(16):
            a('v_cvt_pk_bf16_f32 v%d, v%d, v%d' % (vZ + i, vZ + i, vZ + i))
        wave_reduce('v_add_f32', vS)
        a('v_readlane_b32 s%d, v%d, 63' % (sL, vS))
        a('v_lshlrev_b32 v%d, 5, v%d' % (vT2, vT0))
        a('v_lshl_add_u32 v%d, v%d, 4, v%d' % (vT2, vT1, vT2))
        a('s_lshl_b32 s%d, s3, 9' % sT0)
        a('v_add_u32 v%d, s%d, v%d' % (vT2, sT0, vT2))
        a('s_lshl_b32 s%d, s3, 3' % sT0)
        a('v_mov_b32 v%d, s%d' % (vT3, sT0))
        a('v_mov_b32 v%d, s%d' % (vPa, sMt))
        a('v_mov_b32 v%d, s%d' % (vPa + 1, sL))

    for mod in range(2):
        c('---------------- K pass, module %s' % 'AB'[mod])
        a('v_lshlrev_b32 v%d, 4, v%d' % (vNeg, vT0))
        a('ds_read_b128 v[%d:%d], v%d offset:%d' % (vQn, vQn + 3, vNeg, L_Q + 256 * mod))
        a('s_waitcnt lgkmcnt(0)')
        if mod == 0:
            c('the ring was filled 32 deep while q was on its way: the look-ahead shrinks to %d over this group' % D)
            nxt = [32]

            def shrink(i):
                while nxt[0] < 32 + (i + 1) * D // 32:
                    paced(sK[0], i, nxt[0])
                    nxt[0] += 1
            group(k_group, shrink)
        phase('L_k%d' % mod, k_group, sK[mod], sV[mod], 6 if mod == 0 else 7)
        stamp('K%d' % mod)
        softmax()
        c('---------------- V pass, module %s' % 'AB'[mod])
        phase('L_v%d' % mod, v_group, sV[mod], sK[1] if mod == 0 else None, 7)
        stamp('V%d' % mod)
        c('leave (acc, m, l) in LDS')
        a('s_mov_b32 exec_hi, 0')
        a('ds_write_b128 v%d, v[%d:%d] offset:%d' % (vT2, vAcc, vAcc + 3, L_ACC + 2048 * mod))
        a('s_mov_b32 exec_lo, 1')
        a('ds_write_b64 v%d, v[%d:%d] offset:%d' % (vT3, vPa, vPa + 1, L_ML + 32 * mod))
        a('s_mov_b64 exec, -1')
    c('---------------- combine the four waves: thread t -> module t>>7, d = t&127')
    a('v_lshrrev_b32 v%d, 7, v0' % vT2)
    a('v_lshlrev_b32 v%d, 5, v%d' % (vT3, vT2))
    a('v_lshlrev_b32 v%d, 11, v%d' % (vT2, vT2))
    a('v_and_b32 v%d, 127, v0' % vNeg)
    a('v_lshl_add_u32 v%d, v%d, 2, v%d' % (vT2, vNeg, vT2))
    a('s_lshl_b32 s%d, s%d, 3' % (sT0, sH))
    a('s_add_u32 s%d, s%d, s%d' % (sT0, sT0, sJ))
    a('s_lshl_b32 s%d, s%d, 10' % (sT0, sT0))
    a('s_add_u32 s%d, s%d, 0x%x' % (sCnt, sT0, WS_H2))
    a('s_waitcnt lgkmcnt(0)')
    c('waves 0-3 meet on an LDS counter (wave 4 is busy)')
    signal(2)
    g.label('L_meet')
    a('ds_read_b32 v%d, v%d offset:%d' % (vU, vCtl, L_CTL + 8))
    a('s_waitcnt lgkmcnt(0)')
    a('v_cmp_gt_u32 vcc, 4, v%d' % vU)
    a('s_cbranch_vccnz L_meet')
    R = vS
    a('ds_read_b128 v[%d:%d], v%d offset:%d' % (R, R + 3, vT3, L_ML))
    a('ds_read_b128 v[%d:%d], v%d offset:%d' % (R + 4, R + 7, vT3, L_ML + 16))
    for w in range(4):
        a('ds_read_b32 v%d, v%d offset:%d' % (vA[0] + w, vT2, L_ACC + 512 * w))
    a('s_waitcnt lgkmcnt(4)')
    a('v_max3_f32 v%d, v%d, v%d, v%d' % (vT2, R, R + 2, R + 4))
    a('v_max_f32 v%d, v%d, v%d' % (vT2, vT2, R + 6))
    a('v_mul_f32 v%d, s%d, v%d' % (vNeg, sC, vT2))
    for w in range(4):
        a('v_fma_f32 v%d, v%d, s%d, -v%d' % (R + 2 * w, R + 2 * w, sC, vNeg))
    for w in range(4):
        a('v_exp_f32 v%d, v%d' % (R + 2 * w, R + 2 * w))
    a('s_nop 0')
    a('v_mul_f32 v%d, v%d, v%d' % (vT2, R, R + 1))
    for w in range(1, 4):
        a('v_fma_f32 v%d, v%d, v%d, v%d' % (vT2, R + 2 * w, R + 2 * w + 1, vT2))
    a('v_rcp_f32 v%d, v%d' % (vT2, vT2))
    a('s_waitcnt lgkmcnt(0)')
    a('v_mul_f32 v%d, v%d, v%d' % (vT3, R, vA[0]))
    for w in range(1, 4):
        a('v_fma_f32 v%d, v%d, v%d, v%d' % (vT3, R + 2 * w, vA[0] + w, vT3))
    a('v_mul_f32 v%d, v%d, v%d' % (vT3, vT3, vT2))
    c('H2: publish o as {two bf16, tag}')
    a('v_mov_b32 v%d, s%d' % (vA[1] + 1, sTag))
    a('v_lshlrev_b32 v%d, 2, v0' % vNeg)
    a('v_mov_b32_dpp v%d, v%d quad_perm:[1,0,3,2] %s' % (vT2, vT3, DPPF % 15))
    a('v_cvt_pk_bf16_f32 v%d, v%d, v%d' % (vA[1], vT3, vT2))
    a('s_mov_b32 exec_lo, 0x55555555')
    a('s_mov_b32 exec_hi, 0x55555555')
    a('buffer_store_dwordx2 v[%d:%d], v%d, s[%d:%d], s%d offen sc1' % (vA[1], vA[1] + 1, vNeg, sWS, sWS + 3, sCnt))
    a('s_mov_b64 exec, -1')
    stamp('pubo')
    vWO, vOf, vD = vRing, vRing + 64, vRing + 96
    c('o fragment address: (n&7)*272 + g*16')
    a('v_and_b32 v%d, 7, v%d' % (vT2, vLane))
    a('v_mul_u32_u24 v%d, 272, v%d' % (vT3, vT2))
    a('v_lshl_add_u32 v%d, v%d, 4, v%d' % (vT3, vT1, vT3))
    a('v_bfe_u32 v%d, v%d, 3, 1' % (vNeg, vLane))
    c('H3 address: (j*32 + h)*8192 + mod*4096 + b*512 + w*128 + (n>>3)*64 + g*16')
    a('v_lshlrev_b32 v%d, 9, v%d' % (vT2, vT2))
    a('s_lshl_b32 s%d, s%d, 5' % (sT0, sJ))
    a('s_add_u32 s%d, s%d, s%d' % (sT0, sT0, sH))
    a('s_lshl_b32 s%d, s%d, 13' % (sT0, sT0))
    a('s_lshl_b32 s%d, s3, 7' % sT1)
    a('s_add_u32 s%d, s%d, s%d' % (sT0, sT0, sT1))
    a('s_add_u32 s%d, s%d, 4096' % (sT1, sT0))
    a('v_lshl_add_u32 v%d, v%d, 6, v%d' % (vT2, vNeg, vT2))
    a('v_lshl_add_u32 v%d, v%d, 4, v%d' % (vT2, vT1, vT2))
    a('v_mov_b32 v%d, 0xff' % vTmp)
    a('v_mov_b32 v%d, s%d' % (vNeg, sTag))
    if og:
        c('H2: wave w gathers o of batches 2w and 2w+1 -> LDS (l>>5)*8*272 + (l&31)*8 + b*272')
        vP2, vB2, vL2 = vZ, vZ + 8, vZ + 9
        a('s_lshl_b32 s%d, s%d, 13' % (sOff, sH))
        a('s_lshl_b32 s%d, s3, 11' % sMt)
        a('s_add_u32 s%d, s%d, s%d' % (sOff, sOff, sMt))
        a('s_add_u32 s%d, s%d, 0x%x' % (sOff, sOff, WS_H2))
        a('v_lshrrev_b32 v%d, 5, v%d' % (vL2, vLane))
        a('v_mul_u32_u24 v%d, %d, v%d' % (vL2, 8 * 272, vL2))
        a('v_and_b32 v%d, 31, v%d' % (vB2, vLane))
        a('v_lshl_add_u32 v%d, v%d, 3, v%d' % (vL2, vB2, vL2))
        a('s_mul_i32 s%d, s3, %d' % (sMt, 2 * 272))
        a('s_add_u32 s%d, s%d, %d' % (sMt, sMt, L_O))
        a('v_add_u32 v%d, s%d, v%d' % (vL2, sMt, vL2))
        a('s_mov_b32 s%d, 0x%x' % (sCnt, tmo))
        g.label('L_po')
        for p in range(2):
            a('buffer_load_dwordx4 v[%d:%d], v%d, s[%d:%d], s%d offen offset:%d sc1' % (vP2 + 4 * p, vP2 + 4 * p + 3, vNat, sWS, sWS + 3, sOff, 1024 * p))
        a('s_waitcnt vmcnt(1)')
        a('v_xor_b32 v%d, s%d, v%d' % (vP2 + 1, sTag, vP2 + 1))
        a('v_xor_b32 v%d, s%d, v%d' % (vP2 + 3, sTag, vP2 + 3))
        a('s_waitcnt vmcnt(0)')
        a('v_xor_b32 v%d, s%d, v%d' % (vP2 + 5, sTag, vP2 + 5))
        a('v_xor_b32 v%d, s%d, v%d' % (vP2 + 7, sTag, vP2 + 7))
        a('v_or3_b32 v%d, v%d, v%d, v%d' % (vB2, vP2 + 1, vP2 + 3, vP2 + 5))
        a('v_or_b32 v%d, v%d, v%d' % (vB2, vB2, vP2 + 7))
        a('v_cmp_ne_u32 vcc, 0, v%d' % vB2)
        a('s_cbranch_vccz L_po_ok')
        a('s_sleep %d' % sleep)
        a('s_sub_u32 s%d, s%d, 1' % (sCnt, sCnt))
        a('s_cmp_lg_u32 s%d, 0' % sCnt)
        a('s_cbranch_scc1 L_po')
        g.label('L_po_ok')
        for p in range(2):
            a('ds_write2_b32 v%d, v%d, v%d offset0:%d offset1:%d' % (vL2, vP2 + 4 * p, vP2 + 4 * p + 2, 68 * p, 68 * p + 1))
        a('s_waitcnt lgkmcnt(0)')
        a('s_barrier')
        c('B4: wo and o of the 8 batches are in LDS')
    else:
        a('s_barrier')
        c('B3: wo is in LDS')
        for mod in range(2):
            tr_reads(vWO + 32 * mod, mod)
        a('s_barrier')
        c('B4: o of the 8 batches is in LDS')
    stamp('B4')
    for mod in range(2):
        for kb in range(4):
            r = vOf + 16 * mod + 4 * kb
            a('ds_read_b128 v[%d:%d], v%d offset:%d' % (r, r + 3, vT3, L_O + mod * 8 * 272 + kb * 64))
        if og:
            tr_reads(vWO + 32 * mod, mod)
    for mod in range(2):
        a('s_waitcnt lgkmcnt(%d)' % ((15 if og else 4) if mod == 0 else 0))
        proj_mfma(vD + 8 * mod, vWO + 32 * mod, vOf + 16 * mod)
    for mod in range(2):
        a('s_nop 0')
        select_tag(vD + 8 * mod, vD + 8 * mod)
        a('buffer_store_dwordx4 v[%d:%d], v%d, s[%d:%d], s%d offen sc1' % (vD + 8 * mod, vD + 8 * mod + 3, vT2, sWS, sWS + 3, (sT0, sT1)[mod]))
    if b5:
        a('s_waitcnt vmcnt(0)')
        a('s_barrier')
        c('B5: wave 4 starts to look for the other heads only now (lines it has read cost their writers a probe)')
    if stamps:
        a('s_waitcnt vmcnt(0)')
        stamp('end')
        write_stamps(nst[0])
    nst_stream = nst[0]
    a('s_endpgm')

    g.label('L_comm')
    c('================ wave 4')
    nst[0] = 0
    names.append('|')
    vG = 16
    vBad, vWa, vWx = 80, 82, 83
    a('s_setprio 3')
    if touch:
        c('one scalar load per page that comes up later: the address translations are fetched ahead of the stream')
        a('s_lshl_b32 s%d, s%d, 5' % (sT0, sJ))
        a('s_add_u32 s%d, s%d, s%d' % (sT0, sT0, sH))
        a('s_lshl_b32 s%d, s%d, 20' % (sT0, sT0))
        a('s_lshl_b32 s%d, s%d, 20' % (sT1, sJ))
        a('s_lshl_b32 s%d, s%d, 18' % (sL, sH))
        a('s_mov_b32 s%d, 0x%x' % (sMt, WS_H1))
        tl = []
        if touch & 1:
            tl += [(6, sT0), (20, sT1), (28, sMt)]
        if touch & 2:
            tl += [(8, sT0), (16, sT0), (18, sT0), (12, sL), (22, sL), (28, None), (24, None)]
        for n, (p, so) in enumerate(tl):
            a('s_load_dword s%d, s[%d:%d], %s' % (44 + n, p, p + 1, 's%d' % so if so else '0'))
    srd(sWO[0], 12, 1 << 23)
    srd(sWO[1], 22, 1 << 23)
    srd(sOut, 24, 32768)
    a('s_mov_b32 s%d, s%d' % (sBase, sH1))
    a('v_add_u32 v%d, 4096, v%d' % (vHi, vNat))
    a('s_lshl_b32 s%d, s%d, 16' % (sT0, sH))
    a('s_add_u32 s%d, s%d, 0x%x' % (sT0, sT0, WS_H1))
    a('s_lshl_b32 s%d, s%d, 13' % (sT1, sJ))
    a('s_add_u32 s%d, s%d, s%d' % (sOff, sT0, sT1))
    a('s_lshl_b32 s%d, s%d, 10' % (sT1, sJ))
    a('s_add_u32 s%d, s%d, s%d' % (sH1, sT0, sT1))
    a('v_lshlrev_b32 v%d, 3, v%d' % (vT3, vLane))
    npoll = [0]

    def poll(name, bytetag, slp, stride=0):
        a('s_mov_b32 s%d, 0x%x' % (sCnt, tmo))
        g.label(name)
        for p in range(8):
            if stride:
                a('s_add_u32 s%d, s%d, %d' % (sMt, sOff, p * stride))
                a('buffer_load_dwordx4 v[%d:%d], v%d, s[%d:%d], s%d offen sc1' % (vG + 4 * p, vG + 4 * p + 3, vHi, sWS, sWS + 3, sMt))
            else:
                a('buffer_load_dwordx4 v[%d:%d], v%d, s[%d:%d], s%d offen offset:%d sc1' % (vG + 4 * p, vG + 4 * p + 3, vHi if p & 4 else vNat, sWS, sWS + 3, sOff, 1024 * (p & 3)))
        a('v_mov_b32 v%d, 0' % vBad)
        for p in range(8):
            a('s_waitcnt vmcnt(%d)' % (7 - p))
            es = (0, 1, 2, 3) if bytetag else (1, 3)
            for e in es:
                a('v_xor_b32 v%d, s%d, v%d' % (vG + 4 * p + e, sT8 if bytetag else sTag, vG + 4 * p + e))
            for i in range(0, len(es), 2):
                a('v_or3_b32 v%d, v%d, v%d, v%d' % (vBad, vBad, vG + 4 * p + es[i], vG + 4 * p + es[i + 1]))
        if bytetag:
            a('v_and_b32 v%d, 0xff, v%d' % (vBad, vBad))
        a('v_cmp_ne_u32 vcc, 0, v%d' % vBad)
        a('s_cbranch_vccz %s_ok' % name)
        a('s_sleep %d' % slp)
        a('s_sub_u32 s%d, s%d, 1' % (sCnt, sCnt))
        a('s_cmp_lg_u32 s%d, 0' % sCnt)
        a('s_cbranch_scc1 %s' % name)
        g.label(name + '_ok')
        if stamps:
            a('s_sub_u32 s%d, 0x%x, s%d' % (20 + 2 * npoll[0], tmo, sCnt))
            npoll[0] += 1

    def sum8():
        b = vG
        for e in range(4):
            for p in range(0, 8, 2):
                a('v_add_f32 v%d, v%d, v%d' % (b + 4 * p + e, b + 4 * p + e, b + 4 * p + 4 + e))
            a('v_add_f32 v%d, v%d, v%d' % (b + e, b + e, b + 8 + e))
            a('v_add_f32 v%d, v%d, v%d' % (b + 16 + e, b + 16 + e, b + 24 + e))
            a('v_add_f32 v%d, v%d, v%d' % (b + e, b + e, b + 16 + e))

    def post(value_sgpr, soff, pol=''):
        a('v_mov_b32 v%d, s%d' % (vG + 1, value_sgpr))
        a('s_mov_b64 exec, 1')
        a(('buffer_store_dword v%d, v%d, s[%d:%d], s%d offen %s' % (vG + 1, vCtl, sWS, sWS + 3, soff, pol)).rstrip())

    a('v_mov_b32 v%d, 0' % vCtl)
    for r in range(4):
        a('v_mov_b32 v%d, 0' % (vG + r))
    a('ds_write_b128 v%d, v[%d:%d] offset:%d' % (vCtl, vG, vG + 3, L_CTL))
    a('s_barrier')
    make_tag()
    a('s_and_b32 s%d, s%d, 0xff' % (sT8, sTag))
    a('s_barrier')
    c('H1: send the partial sums for the 8 batches, gather the 8 partial sums for batch j')
    for p in range(8):
        a('ds_read_b128 v[%d:%d], v%d offset:%d' % (vG + 4 * p, vG + 4 * p + 3, vNat, L_STG + 1040 * p))
    for p in range(8):
        a('s_waitcnt lgkmcnt(%d)' % (7 - p))
        a('buffer_store_dwordx4 v[%d:%d], v%d, s[%d:%d], s%d offen sc1' % (vG + 4 * p, vG + 4 * p + 3, vNat, sWS, sWS + 3, sH1))
        a('s_add_u32 s%d, s%d, 8192' % (sH1, sH1))
    a('s_waitcnt vmcnt(0)')
    stamp('st')
    poll('L_pq', True, sleep)
    sum8()
    a('v_cvt_pk_bf16_f32 v%d, v%d, v%d' % (vG, vG, vG + 1))
    a('v_cvt_pk_bf16_f32 v%d, v%d, v%d' % (vG + 1, vG + 2, vG + 3))
    a('ds_write_b64 v%d, v[%d:%d] offset:%d' % (vT3, vG, vG + 1, L_Q))
    a('s_waitcnt lgkmcnt(0)')
    stamp('q')
    a('s_barrier')
    c('B1 passed.  wo rows 128h .. + 127, columns 128j .. + 127 will go where wq was')
    weight_voffsets(11)
    a('s_lshl_b32 s%d, s%d, 18' % (sT0, sH))
    a('s_lshl_b32 s%d, s%d, 8' % (sT1, sJ))
    a('s_add_u32 s%d, s%d, s%d' % (sWOff, sT0, sT1))
    a('s_lshl_b32 s%d, s%d, 13' % (sT0, sH))
    a('s_add_u32 s%d, s%d, 0x%x' % (sOff, sT0, WS_H2))
    c('LDS address of the gathered o: (l>>5)*8*272 + (l&31)*8')
    a('v_lshrrev_b32 v%d, 5, v%d' % (vT2, vLane))
    a('v_mul_u32_u24 v%d, %d, v%d' % (vT2, 8 * 272, vT2))
    a('v_and_b32 v%d, 31, v%d' % (vT3, vLane))
    a('v_lshl_add_u32 v%d, v%d, 3, v%d' % (vT2, vT3, vT2))
    a('v_add_u32 v%d, %d, v%d' % (vT2, L_O, vT2))
    a('v_add_u32 v%d, %d, v%d' % (vT3, 4 * 272, vT2))
    a('s_mov_b32 s%d, %d' % (sLdsW, L_W))
    c('Progress words (speed only): one per CU in a block per die, stored plainly and read through that die\'s L2.')
    c('The share of neighbours that are ahead trims the loads in flight; odd dies run a little faster by nature.')
    a('s_getreg_b32 s%d, hwreg(HW_REG_XCC_ID)' % sT0)
    a('s_and_b32 s%d, s%d, 15' % (sT0, sT0))
    a('s_bitcmp1_b32 s%d, 0' % sT0)
    a('s_cselect_b32 s%d, %d, %d' % (sC, 8 + lpar[1], 8 + lpar[0]))
    a('s_mul_i32 s%d, s%d, 4352' % (sT0, sT0))
    a('s_add_u32 s%d, s%d, 0x%x' % (sLine, sT0, WS_CTL))
    a('s_getreg_b32 s%d, hwreg(HW_REG_HW_ID, 13, 2)' % sT1)
    a('s_getreg_b32 s%d, hwreg(HW_REG_HW_ID, 8, 4)' % sT0)
    a('s_lshl_b32 s%d, s%d, 6' % (sT1, sT1))
    a('s_lshl_b32 s%d, s%d, 2' % (sT0, sT0))
    a('s_add_u32 s%d, s%d, s%d' % (sT1, sT1, sT0))
    a('s_add_u32 s%d, s%d, s%d' % (sOwn, sLine, sT1))
    a('v_lshlrev_b32 v%d, 2, v%d' % (vWa, vLane))
    c('Every %d groups one workgroup per die compares with the other dies; slot 63 passes the result on.' % xp)
    a('v_mul_u32_u24 v%d, 4352, v%d' % (vWx, vLane))
    a('s_add_u32 s%d, s%d, 0x10000' % (sXo, sLine))
    a('s_mov_b32 s%d, 0x%x' % (sXa, WS_CTL + 0x10000))
    a('s_add_u32 s%d, s%d, 252' % (sXb, sLine))
    a('s_lshr_b32 s%d, s2, 3' % sXr)
    a('s_and_b32 s%d, s%d, %d' % (sT0, sXr, xp - 1))
    a('s_cmp_eq_u32 s%d, 0' % sT0)
    a('s_cselect_b32 s%d, s%d, 0' % (sXr, sXr))
    a('s_cmp_le_u32 s%d, %d' % (sXr, xlast))
    a('s_cselect_b32 s%d, s%d, 0' % (sXr, sXr))
    if nchk > 1:
        a('s_mul_i32 s%d, s%d, %d' % (sXr, sXr, nchk))
    a('s_and_b32 s%d, s%d, 0xffffff00' % (sThi, sTag))
    a('s_mov_b32 s%d, %d' % (sL, per))
    if stamps:
        a('s_mov_b32 s18, 0')
        a('s_mov_b32 s16, 0')
    g.label('L_ctl')
    a('s_lshl_b32 s%d, s%d, 2' % (sT0, sL))
    a('s_sub_u32 s%d, s%d, 2' % (sT0, sT0))
    g.label('L_ctla')
    a('s_sleep 1')
    a('ds_read_b32 v%d, v%d offset:%d' % (vG, vCtl, L_CTL))
    a('s_waitcnt lgkmcnt(0)')
    a('v_cmp_gt_u32 vcc, s%d, v%d' % (sT0, vG))
    a('s_cbranch_vccnz L_ctla')
    a('s_or_b32 s%d, s%d, s%d' % (sMt, sThi, sL))
    a('s_cmp_lg_u32 s%d, s%d' % (sL, sXr))
    a('s_cbranch_scc1 L_ctlb')
    a('s_mov_b64 exec, 0xff')
    a('buffer_load_dword v%d, v%d, s[%d:%d], s%d offen sc1' % (vG + 3, vWx, sWS, sWS + 3, sXa))
    post(sMt, sXo, 'sc1')
    a('s_mov_b64 exec, -1')
    g.label('L_ctlb')
    post(sMt, sOwn)
    a('s_mov_b64 exec, -1')
    a('buffer_load_dword v%d, v%d, s[%d:%d], s%d offen sc1' % (vG + 2, vWa, sWS, sWS + 3, sLine))
    a('s_waitcnt vmcnt(0)')
    a('v_xor_b32 v%d, s%d, v%d' % (vG + 2, sThi, vG + 2))
    a('s_cmp_lg_u32 s%d, s%d' % (sL, sXr))
    a('s_cbranch_scc1 L_ctly')
    a('v_xor_b32 v%d, s%d, v%d' % (vG + 3, sThi, vG + 3))
    a('v_subrev_u32 v%d, s%d, v%d' % (vG + 3, sL, vG + 3))
    a('s_mov_b64 exec, 0xff')
    a('v_cmp_gt_u32 vcc, 64, v%d' % (vG + 3))
    a('s_nop 1')
    a('s_bcnt1_i32_b64 s%d, vcc' % sU)
    if stamps:
        a('s_add_u32 s16, s16, s%d' % sU)
    a('s_mul_i32 s%d, s%d, %d' % (sU, sU, xg))
    a('s_min_u32 s%d, s%d, 63' % (sU, sU))
    a('s_or_b32 s%d, s%d, 128' % (sU, sU))
    a('s_or_b32 s%d, s%d, s%d' % (sU, sU, sThi))
    post(sU, sXb)
    a('s_mov_b64 exec, -1')
    g.label('L_ctly')
    a('s_nop 0')
    a('v_readlane_b32 s%d, v%d, 63' % (sMt, vG + 2))
    a('v_subrev_u32 v%d, s%d, v%d' % (vG + 2, sL, vG + 2))
    a('v_cmp_gt_u32 vcc, 64, v%d' % (vG + 2))
    a('s_nop 1')
    a('s_bcnt1_i32_b64 s%d, vcc' % sU)
    if stamps:
        a('s_add_u32 s18, s18, s%d' % sU)
    a('s_sub_i32 s%d, s%d, 16' % (sU, sU))
    a('s_mul_i32 s%d, s%d, %d' % (sU, sU, umax))
    a('s_sub_u32 s%d, s%d, 128' % (sMt, sMt))
    a('s_cmp_lt_u32 s%d, 64' % sMt)
    a('s_cselect_b32 s%d, s%d, %d' % (sMt, sMt, xoff))
    a('s_sub_i32 s%d, s%d, %d' % (sMt, sMt, xoff))
    a('s_add_i32 s%d, s%d, s%d' % (sU, sU, sMt))
    a('s_add_i32 s%d, s%d, s%d' % (sU, sU, sC))
    a('s_ashr_i32 s%d, s%d, 4' % (sU, sU))
    a('s_max_i32 s%d, s%d, %d' % (sU, sU, umin))
    a('v_mov_b32 v%d, s%d' % (vG, sU))
    a('ds_write_b32 v%d, v%d offset:%d' % (vCtl, vG, L_CTL + 4))
    a('s_add_u32 s%d, s%d, %d' % (sL, sL, per))
    nlast = 31 * nchk + (sum(1 for x in chk if x[2] < 24) if lastchk else 0)
    assert nlast < 64
    a('s_cmp_le_u32 s%d, %d' % (sL, nlast))
    a('s_cbranch_scc1 L_ctl')
    c('fetch wo once this workgroup\'s stream is all but over, or as soon as %d neighbours are there' % ltrig)
    DONE = 100
    g.label('L_tr')
    a('ds_read_b32 v%d, v%d offset:%d' % (vG, vCtl, L_CTL + 12))
    a('buffer_load_dword v%d, v%d, s[%d:%d], s%d offen sc1' % (vG + 2, vWa, sWS, sWS + 3, sLine))
    a('s_waitcnt lgkmcnt(0)')
    a('v_cmp_le_u32 vcc, 2, v%d' % vG)
    a('s_cbranch_vccnz L_trown')
    a('s_waitcnt vmcnt(0)')
    a('v_xor_b32 v%d, s%d, v%d' % (vG + 2, sThi, vG + 2))
    a('v_cmp_eq_u32 vcc, %d, v%d' % (DONE, vG + 2))
    a('s_nop 1')
    a('s_bcnt1_i32_b64 s%d, vcc' % sU)
    a('s_cmp_ge_u32 s%d, %d' % (sU, ltrig))
    a('s_cbranch_scc1 L_trgo')
    a('s_sleep 2')
    a('s_branch L_tr')
    g.label('L_trown')
    a('s_or_b32 s%d, s%d, %d' % (sMt, sThi, DONE))
    post(sMt, sOwn)
    g.label('L_trgo')
    a('s_mov_b64 exec, -1')
    if woprio != 3:
        a('s_setprio %d' % woprio)
    for mod in range(2):
        a('s_mov_b32 s%d, s%d' % (sT0, sWOff))
        a('s_mov_b32 s%d, 8' % sCnt)
        g.label('L_wo%d' % mod)
        for i in range(4):
            if wowin:
                a('s_waitcnt vmcnt(%d)' % (wowin - 1))
            a('s_mov_b32 m0, s%d' % sLdsW)
            a('s_add_u32 s%d, s%d, 1024' % (sLdsW, sLdsW))
            a('buffer_load_dwordx4 v%d, s[%d:%d], s%d offen nt lds' % (vW1 if i & 2 else vW, sWO[mod], sWO[mod] + 3, sT0))
            a('s_add_u32 s%d, s%d, 8192' % (sT0, sT0))
        a('s_sub_u32 s%d, s%d, 1' % (sCnt, sCnt))
        a('s_cmp_lg_u32 s%d, 0' % sCnt)
        a('s_cbranch_scc1 L_wo%d' % mod)
    if woprio != 3:
        a('s_setprio 3')
    a('s_waitcnt vmcnt(0)')
    if og:
        stamp('wo')
        stamp('o')
        if stamps:
            a('s_mov_b32 s22, 0')
            npoll[0] += 1
    else:
        a('s_barrier')
        c('B3 passed.  H2: gather o of the 8 batches')
        stamp('wo')
        poll('L_po', False, sleep)
        for p in range(8):
            a('ds_write2_b32 v%d, v%d, v%d offset0:%d offset1:%d' % (vT2 if p < 4 else vT3, vG + 4 * p, vG + 4 * p + 2, 68 * (p & 3), 68 * (p & 3) + 1))
        a('s_waitcnt lgkmcnt(0)')
        stamp('o')
    a('s_barrier')
    c('B4 passed.  H3: row h of the 32 blocks of slice j = outputs (mod, b, half) with h = mod*16 + b*2 + half')
    a('s_lshl_b32 s%d, s%d, 18' % (sT0, sJ))
    a('s_lshl_b32 s%d, s%d, 8' % (sT1, sH))
    a('s_add_u32 s%d, s%d, s%d' % (sOff, sT0, sT1))
    a('v_lshlrev_b32 v%d, 4, v%d' % (vHi, vT0))
    a('v_lshl_add_u32 v%d, v%d, 13, v%d' % (vHi, vT1, vHi))
    c('out byte offset: b*4096 + mod*2048 + j*256 + half*128 + (l&15)*8')
    a('s_bfe_u32 s%d, s%d, 0x30001' % (sT0, sH))
    a('s_lshl_b32 s%d, s%d, 12' % (sT0, sT0))
    a('s_lshr_b32 s%d, s%d, 4' % (sT1, sH))
    a('s_lshl_b32 s%d, s%d, 11' % (sT1, sT1))
    a('s_add_u32 s%d, s%d, s%d' % (sT0, sT0, sT1))
    a('s_lshl_b32 s%d, s%d, 8' % (sT1, sJ))
    a('s_add_u32 s%d, s%d, s%d' % (sT0, sT0, sT1))
    a('s_and_b32 s%d, s%d, 1' % (sT1, sH))
    a('s_lshl_b32 s%d, s%d, 7' % (sT1, sT1))
    a('s_add_u32 s%d, s%d, s%d' % (sWOff, sT0, sT1))
    a('v_lshlrev_b32 v%d, 3, v%d' % (vT2, vT0))
    if b5:
        a('s_barrier')
    if thr2:
        c('and not before most neighbours have written theirs (bounded)')
        a('s_or_b32 s%d, s%d, 110' % (sMt, sThi))
        post(sMt, sOwn)
        a('s_mov_b64 exec, -1')
        a('s_mov_b32 s%d, 64' % sCnt)
        g.label('L_d2')
        a('buffer_load_dword v%d, v%d, s[%d:%d], s%d offen sc1' % (vG + 2, vWa, sWS, sWS + 3, sLine))
        a('s_sub_u32 s%d, s%d, 1' % (sCnt, sCnt))
        a('s_waitcnt vmcnt(0)')
        a('v_cmp_eq_u32 vcc, s%d, v%d' % (sMt, vG + 2))
        a('s_cmp_eq_u32 s%d, 0' % sCnt)
        a('s_cbranch_scc1 L_d2x')
        a('s_bcnt1_i32_b64 s%d, vcc' % sU)
        a('s_cmp_lt_u32 s%d, %d' % (sU, thr2))
        a('s_cbranch_scc1 L_d2')
        g.label('L_d2x')
    poll('L_pp', True, sleep3, 32768)
    sum8()
    for swap in ('v_permlane32_swap_b32', 'v_permlane16_swap_b32'):
        for r in range(4):
            a('v_mov_b32 v%d, v%d' % (vG + 4 + r, vG + r))
        a('s_nop 1')
        for r in range(4):
            a('%s v%d, v%d' % (swap, vG + r, vG + 4 + r))
        a('s_nop 1')
        for r in range(4):
            a('v_add_f32 v%d, v%d, v%d' % (vG + r, vG + r, vG + 4 + r))
    a('v_cvt_pk_bf16_f32 v%d, v%d, v%d' % (vG, vG, vG + 1))
    a('v_cvt_pk_bf16_f32 v%d, v%d, v%d' % (vG + 1, vG + 2, vG + 3))
    a('s_mov_b32 exec_lo, 0xffff')
    a('s_mov_b32 exec_hi, 0')
    a('buffer_store_dwordx2 v[%d:%d], v%d, s[%d:%d], s%d offen' % (vG, vG + 1, vT2, sOut, sOut + 3, sWOff))
    c('H3 has arrived, so every workgroup has read the epoch word: workgroup 0 moves it on')
    a('s_cmp_lg_u32 s2, 0')
    a('s_cbranch_scc1 L_comm_end')
    a('v_mov_b32 v%d, s%d' % (vT2, sTag))
    a('v_mov_b32 v%d, 0' % vT3)
    a('s_mov_b64 exec, 1')
    a('buffer_store_dword v%d, v%d, s[%d:%d], s%d offen' % (vT2, vT3, sWS, sWS + 3, sBase))
    g.label('L_comm_end')
    if stamps:
        a('s_waitcnt vmcnt(0)')
        stamp('fin')
        write_stamps(11)
    g.label('L_exit')
    a('s_endpgm')

    tail = '''.section .rodata,"a"
.p2align 6
.amdhsa_kernel %s
  .amdhsa_next_free_vgpr 256
  .amdhsa_next_free_sgpr 100
  .amdhsa_accum_offset 256
  .amdhsa_group_segment_fixed_size 0
  .amdhsa_kernarg_size 104
  .amdhsa_user_sgpr_count 2
  .amdhsa_user_sgpr_kernarg_segment_ptr 1
  .amdhsa_system_sgpr_workgroup_id_x 1
  .amdhsa_float_denorm_mode_32 3
.end_amdhsa_kernel
''' % K1
    head = HEADER + '; @launch grid=(256,1,1) block=(320,1,1) lds=%d\n' % L_END
    if stamps:
        head += '; nst3=%d names: start %s\n' % (nst_stream + 1, ' '.join(names))
    head += ''.join(('; ' + l).rstrip() + '\n' for l in DESIGN.split('\n'))
    return head + '\n'.join(g.L) + '\n' + tail


if __name__ == '__main__':
    import json
    kw = json.loads(sys.argv[2]) if len(sys.argv) > 2 else {}
    src = gen(**kw)
    open(sys.argv[1], 'w').write(src)
```

```python
import sys, math, struct

NAME = 'concat_heads__mha_block_cached__mha_block_cached__decode'
HEADER = open('cdna_kernels/' + NAME + '.s.ref').read().split('; Override launch')[0]

DESIGN = """
One launch, 256 workgroups (one per CU), 5 waves each.  Workgroup (h, j): head h, batch j of both modules.
The 1 GiB of K/V is streamed in four chip-wide phases K_A, V_A, K_B, V_B (one large buffer at a time: reading
several at once costs up to 13 % of the HBM rate, depending on where they were allocated).
 waves 0-3  stream with five 1 KiB loads in flight each (enough to fill HBM, few enough to share it evenly).
            K pass: v_dot2 + DPP reduction -> 1024 scores per wave in 16 registers; exact softmax per wave
            (true maximum); V pass: p on the diagonal of the MFMA A operand, V rows as the B operand.
 wave 4     hand-offs through d_ws.  Every word carries a tag derived from a word at WS_EPOCH that the launch
            moves on at its end, so words of an earlier launch are never taken for this launch's.
   H1  x @ wq: (h, j) multiplies rows 128j..128j+127 for all batches, the 8 workgroups of a head swap partial sums
   H2  the 8 workgroups of a head swap their attention outputs; (h, j) multiplies with columns 128j..128j+127 of wo
   H3  the 32 workgroups of a column slice swap partial outputs; each sums 64 outputs over the heads
            While the stream runs it also trims the loads in flight by a few percent from the progress words of
            the neighbours, so that all workgroups finish together.  That affects speed only.
"""


def f32bits(x):
    return struct.unpack('<I', struct.pack('<f', x))[0]


CSCALE = (128 ** -0.5) * math.log2(math.e)
WS_H3 = 0
WS_H1 = 2 << 20
WS_H2 = 4 << 20
WS_EPOCH = 5 << 20
WS_CTL = (5 << 20) + 65536
WS_END = 6 << 20
WS_STAMP = 8 << 20
L_Q = 0
L_ACC = 512
L_ML = 4608
L_O = 4672
L_CTL = 9152
L_STG = 9216
L_W = 17664
L_END = L_W + 65536


class Asm:
    def __init__(self):
        self.L = []
        self.q = []

    def a(self, s):
        self.L.append('    ' + s)

    def c(self, s):
        self.L.append('    ; ' + s)

    def label(self, s):
        self.L.append(s + ':')

    def vm(self, tag, s):
        self.a(s)
        self.q.append(tag)
        assert len(self.q) <= 63

    def wait_tag(self, tag):
        idx = [i for i, t in enumerate(self.q) if t == tag]
        if idx:
            self.a('s_waitcnt vmcnt(%d)' % (len(self.q) - 1 - idx[-1]))
            self.q = self.q[idx[-1] + 1:]

    def limit(self, n):
        if len(self.q) > n:
            self.a('s_waitcnt vmcnt(%d)' % n)
            self.q = self.q[len(self.q) - n:] if n else []


def gen(W=5, D=8, T=8, early=8, x0=4, win=10, sleep=2, sleep3=2, tmo=1 << 20, stamps=False,
        chk=((18, 29, 31),), umax=4, uflex=12, umin=-12, lpar=(8, -24), xg=8, xp=2, xoff=8, xlast=26,
        ltrig=4, b2at=20, lastchk=False, touch=0, woprio=3, sprio=0, wowin=24, wg=6, og=False, b5=True, thr2=20, per=1, win1=0, n1=0):
    g = Asm()
    a, c = g.a, g.c
    nchk = len(chk)
    assert W + 1 < D <= 32
    sX, sWQ, sK, sV, sWO = (32, 36), (40, 44), (48, 56), (52, 60), (64, 68)
    sWS, sOut = 72, 32
    sTag, sH, sJ, sOff, sCnt, sT0, sT1, sC = 76, 77, 78, 79, 80, 81, 82, 83
    sB1, sB0, sN8 = 86, 88, 90
    sMt, sBase, sL, sLdsW, sWOff, sH1, sT8, sU = 92, 93, 94, 95, 96, 97, 84, 85
    sRk = 64
    sOwn, sLine, sThi = 36, 38, 39
    sXo, sXa, sXb, sXr = 40, 41, 42, 43
    vLane, vT0, vT1, vT2, vT3 = 1, 2, 3, 4, 5
    vHi, vNat = 6, 7
    vMask = 8
    vAcc = 12
    vA = (16, 20)
    vS, vPa, vCc = 24, 28, 32
    vNeg, vTmp, vTr, vW = 36, 37, 38, 39
    vZ = 40
    vQn = 72
    vXf = (76, 92)
    vTr1, vW1, vH1, vCtl, vOne, vU, vRk = 108, 109, 110, 111, 120, 121, 122
    vWf = (40, 224)
    vQD = (24, 112)
    vRing = 128
    DPPF = 'row_mask:0xf bank_mask:0x%x'
    nst = [0]
    names = []

    def stamp(name):
        if stamps:
            names.append(name)
            a('s_memrealtime s[%d:%d]' % (4 + 2 * nst[0], 5 + 2 * nst[0]))
            nst[0] += 1

    def write_stamps(n):
        a('s_waitcnt vmcnt(0) lgkmcnt(0)')
        a('s_mov_b64 exec, -1')
        a('s_getreg_b32 s99, hwreg(HW_REG_XCC_ID)')
        a('v_mov_b32 v%d, s99' % vT2)
        a('v_writelane_b32 v%d, s98, 0' % vT2)
        for i in range(n):
            a('v_writelane_b32 v%d, s%d, %d' % (vT2, 4 + 2 * i, i + 1))
        a('s_mul_i32 s%d, s2, 5' % sT0)
        a('s_add_u32 s%d, s%d, s3' % (sT0, sT0))
        a('s_lshl_b32 s%d, s%d, 8' % (sT0, sT0))
        a('s_add_u32 s%d, s%d, 0x%x' % (sT0, sT0, WS_STAMP))
        a('v_lshl_add_u32 v%d, v%d, 2, s%d' % (vT3, vLane, sT0))
        a('buffer_store_dword v%d, v%d, s[%d:%d], 0 offen' % (vT2, vT3, sWS, sWS + 3))

    def srd(d, p, size):
        a('s_mov_b32 s%d, s%d' % (d, p))
        a('s_mov_b32 s%d, s%d' % (d + 1, p + 1))
        a('s_mov_b32 s%d, 0x%x' % (d + 2, size))
        a('s_mov_b32 s%d, 0x20000' % (d + 3))

    def make_tag():
        c('tag = next value of a full-period generator: differs from the old word, also in its low byte')
        a('s_waitcnt lgkmcnt(0)')
        a('s_mul_i32 s%d, s%d, 0x19660d' % (sTag, sTag))
        a('s_add_u32 s%d, s%d, 0x3c6ef35f' % (sTag, sTag))

    def weight_voffsets(shift):
        c('16-byte chunk k of row r lands in slot k ^ (2*(r&3) + 8*((r>>3)&1)): conflict-free transposed reads')
        a('v_lshlrev_b32 v%d, 1, v%d' % (vW, vT1))
        a('v_xor_b32 v%d, v%d, v%d' % (vW, vW, vT0))
        a('v_lshlrev_b32 v%d, 4, v%d' % (vW, vW))
        a('v_lshl_add_u32 v%d, v%d, %d, v%d' % (vW, vT1, shift, vW))
        a('v_xor_b32 v%d, 128, v%d' % (vW1, vW))

    K1 = NAME + '_kernel'
    g.L += ['.amdgcn_target "amdgcn-amd-amdhsa--gfx950"', '.text', '.globl %s' % K1, '.p2align 8', '.type %s,@function' % K1]
    g.label(K1)
    a('s_cmp_ge_u32 s2, 256')
    a('s_cbranch_scc1 L_exit')
    if stamps:
        a('s_memrealtime s[98:99]')
    a('s_load_dwordx16 s[4:19], s[0:1], 0')
    a('s_load_dwordx8 s[20:27], s[0:1], 64')
    a('s_load_dwordx2 s[28:29], s[0:1], 96')
    a('v_lshrrev_b32 v%d, 6, v0' % vT0)
    a('v_and_b32 v%d, 63, v0' % vLane)
    a('v_readfirstlane_b32 s3, v%d' % vT0)
    c('h = (id & 7) + 8*(id >> 6), j = (id >> 3) & 7')
    a('s_lshr_b32 s%d, s2, 6' % sH)
    a('s_lshl_b32 s%d, s%d, 3' % (sH, sH))
    a('s_and_b32 s%d, s2, 7' % sT0)
    a('s_add_u32 s%d, s%d, s%d' % (sH, sH, sT0))
    a('s_bfe_u32 s%d, s2, 0x30003' % sJ)
    a('s_mov_b32 s%d, 0x%x' % (sH1, WS_EPOCH))
    a('v_and_b32 v%d, 15, v%d' % (vT0, vLane))
    a('v_lshrrev_b32 v%d, 4, v%d' % (vT1, vLane))
    a('v_lshlrev_b32 v%d, 4, v%d' % (vNat, vLane))
    a('s_cmp_eq_u32 s3, 4')
    a('s_waitcnt lgkmcnt(0)')
    a('s_load_dword s%d, s[28:29], s%d' % (sTag, sH1))
    srd(sWS, 28, (WS_STAMP + (1 << 20)) if stamps else WS_END)
    a('s_cbranch_scc1 L_comm')

    c('================ waves 0-3')
    srd(sWQ[0], 10, 1 << 23)
    srd(sX[0], 4, 16384)
    c('wq rows 128j + 32w .. + 31, columns of head h -> LDS [128 rows][256 B], four rows per instruction')
    weight_voffsets(13)
    a('s_lshl_b32 s%d, s%d, 20' % (sT0, sJ))
    a('s_lshl_b32 s%d, s%d, 8' % (sT1, sH))
    a('s_add_u32 s%d, s%d, s%d' % (sT0, sT0, sT1))
    a('s_lshl_b32 s%d, s3, 18' % sT1)
    a('s_add_u32 s%d, s%d, s%d' % (sWOff, sT0, sT1))
    a('s_lshl_b32 s%d, s3, 13' % sLdsW)
    c('x fragments: lane (n, g) holds x[n & 7][128j + 32kb + 8g ..]')
    vXa = vAcc
    a('v_and_b32 v%d, 7, v%d' % (vXa, vLane))
    a('v_lshlrev_b32 v%d, 11, v%d' % (vXa, vXa))
    a('v_lshl_add_u32 v%d, v%d, 4, v%d' % (vXa, vT1, vXa))
    a('s_lshl_b32 s%d, s%d, 8' % (sT1, sJ))
    srd(sX[1], 14, 16384)
    for mod in range(2):
        for kb in range(4):
            r = vXf[mod] + 4 * kb
            g.vm('w', 'buffer_load_dwordx4 v[%d:%d], v%d, s[%d:%d], s%d offen offset:%d' % (r, r + 3, vXa, sX[mod], sX[mod] + 3, sT1, 64 * kb))
    for mod in range(2):
        if mod:
            srd(sWQ[1], 20, 1 << 23)
        for i in range(8):
            a('s_add_u32 m0, s%d, %d' % (sLdsW, L_W + mod * 32768 + i * 1024))
            a('s_add_u32 s%d, s%d, %d' % (sT0, sWOff, i * 4 * 8192))
            g.vm('w', 'buffer_load_dwordx4 v%d, s[%d:%d], s%d offen nt lds' % (vW1 if i & 2 else vW, sWQ[mod], sWQ[mod] + 3, sT0))
    srd(sK[0], 6, 1 << 28)
    c('K/V of (batch j, head h): the four waves take tiles of %d KiB in turn' % T)
    a('s_lshl_b32 s%d, s%d, 5' % (sBase, sJ))
    a('s_add_u32 s%d, s%d, s%d' % (sBase, sBase, sH))
    a('s_lshl_b32 s%d, s%d, 20' % (sBase, sBase))
    a('s_mul_i32 s%d, s3, %d' % (sT0, T * 1024))
    a('s_add_u32 s%d, s%d, s%d' % (sBase, sBase, sT0))
    a('s_mov_b32 s%d, s%d' % (sOff, sBase))

    def ring_load(srd_, j):
        r = vRing + 4 * (j & 31)
        g.vm('R%d' % (j & 31), 'buffer_load_dwordx4 v[%d:%d], v%d, s[%d:%d], s%d offen offset:%d nt' % (r, r + 3, vNat, srd_, srd_ + 3, sOff, 1024 * (j & 3)))
        if j & 3 == 3:
            a('s_add_u32 s%d, s%d, %d' % (sOff, sOff, 4096 if (j + 1) % T else 3 * T * 1024 + 4096))

    for j in range(early):
        ring_load(sK[0], j)
    srd(sV[0], 8, 1 << 28)
    srd(sK[1], 16, 1 << 28)
    srd(sV[1], 18, 1 << 28)
    c('transposed-read address: (8g + r)*256 + ((4w + 2cb) ^ (2r + 8(g&1)))*16 + (l&3)*8,  r = (l>>2)&3')
    a('v_lshrrev_b32 v%d, 2, v%d' % (vTmp, vT0))
    a('v_and_b32 v%d, 1, v%d' % (vTr, vT1))
    a('v_lshl_add_u32 v%d, v%d, 2, v%d' % (vTr, vTr, vTmp))
    a('s_lshl_b32 s%d, s3, 1' % sT0)
    a('v_xor_b32 v%d, s%d, v%d' % (vTr, sT0, vTr))
    a('v_lshlrev_b32 v%d, 5, v%d' % (vTr, vTr))
    a('v_lshl_add_u32 v%d, v%d, 11, v%d' % (vTr, vT1, vTr))
    a('v_lshl_add_u32 v%d, v%d, 8, v%d' % (vTr, vTmp, vTr))
    a('v_and_b32 v%d, 3, v%d' % (vT3, vLane))
    a('v_lshl_add_u32 v%d, v%d, 3, v%d' % (vTr, vT3, vTr))
    a('v_xor_b32 v%d, 32, v%d' % (vTr1, vTr))
    a('v_add_u32 v%d, %d, v%d' % (vTr, L_W, vTr))
    a('v_add_u32 v%d, %d, v%d' % (vTr1, L_W, vTr1))
    a('s_mov_b32 s%d, 0x%08x' % (sC, f32bits(CSCALE)))
    for reg, val in ((sB1, 0xcccccccc), (sB0, 0xaaaaaaaa), (sN8, 0xff00ff00)):
        a('s_mov_b32 s%d, 0x%08x' % (reg, val))
        a('s_mov_b32 s%d, 0x%08x' % (reg + 1, val))
    c('masks that put p on the diagonal of the A operand')
    a('v_mov_b32 v%d, 0xffff' % vNeg)
    a('v_mov_b32 v%d, 0xffff0000' % vTmp)
    a('v_cndmask_b32 v%d, v%d, v%d, s[%d:%d]' % (vNeg, vNeg, vTmp, sB0, sB0 + 1))
    a('v_bfe_u32 v%d, v%d, 1, 2' % (vTmp, vLane))
    for rr in range(4):
        a('v_cmp_eq_u32 vcc, %d, v%d' % (rr, vTmp))
        a('s_nop 1')
        a('v_cndmask_b32 v%d, 0, v%d, vcc' % (vMask + rr, vNeg))
    c('staging address of the q partials: (n&7)*1040 + w*128 + (n>>3)*64 + g*16')
    a('v_and_b32 v%d, 7, v%d' % (vTmp, vLane))
    a('v_mul_u32_u24 v%d, 1040, v%d' % (vH1, vTmp))
    a('v_bfe_u32 v%d, v%d, 3, 1' % (vTmp, vLane))
    a('v_lshl_add_u32 v%d, v%d, 6, v%d' % (vH1, vTmp, vH1))
    a('v_lshl_add_u32 v%d, v%d, 4, v%d' % (vH1, vT1, vH1))
    a('s_lshl_b32 s%d, s3, 7' % sT0)
    a('v_add_u32 v%d, s%d, v%d' % (vH1, sT0, vH1))

    def tr_reads(dst, mod):
        for cb in range(2):
            for kb in range(4):
                for hh in range(2):
                    r = dst + (cb * 4 + kb) * 4 + 2 * hh
                    a('ds_read_b64_tr_b16 v[%d:%d], v%d offset:%d' % (r, r + 1, vTr1 if cb else vTr, mod * 32768 + kb * 8192 + hh * 1024))

    def proj_mfma(d, wf, xf):
        for kb in range(4):
            for cb in range(2):
                w = wf + (cb * 4 + kb) * 4
                dd = d + 4 * cb
                a('v_mfma_f32_16x16x32_bf16 v[%d:%d], v[%d:%d], v[%d:%d], %s' % (dd, dd + 3, w, w + 3, xf + 4 * kb, xf + 4 * kb + 3, '0' if kb == 0 else 'v[%d:%d]' % (dd, dd + 3)))

    def select_tag(dst, d):
        for r in range(4):
            a('v_cndmask_b32 v%d, v%d, v%d, s[%d:%d]' % (dst + r, d + r, d + 4 + r, sN8, sN8 + 1))
        for r in range(4):
            a('v_bfi_b32 v%d, v%d, v%d, v%d' % (dst + r, vTmp, vNeg, dst + r))

    a('v_mov_b32 v%d, 0xff' % vTmp)
    a('v_mov_b32 v%d, 0' % vCtl)
    a('v_mov_b32 v%d, 1' % vOne)
    a('s_mov_b32 s%d, 0' % sU)
    if wg:
        a('s_mov_b32 s%d, -4' % sRk)
    c('wave 0 shares its SIMD with wave 4 and would fall behind while that one works: a head start')
    assert early % 4 == 0 and 0 < x0 <= 4 and early + x0 <= 24
    a('s_cmp_lg_u32 s3, 0')
    a('s_cbranch_scc1 L_x0a')
    q0 = list(g.q)
    for j in range(early, early + x0):
        ring_load(sK[0], j)
    g.wait_tag('w')
    a('s_branch L_x0b')
    g.label('L_x0a')
    g.q = q0
    g.wait_tag('w')
    g.label('L_x0b')
    a('s_barrier')
    c('B0: all rows of wq_A and wq_B have landed')
    stamp('B0')
    for mod in range(2):
        tr_reads(vWf[mod], mod)
    for mod in range(2):
        a('s_waitcnt lgkmcnt(%d)' % (15 if mod == 0 else 0))
        proj_mfma(vQD[mod], vWf[mod], vXf[mod])
    make_tag()
    a('v_mov_b32 v%d, s%d' % (vNeg, sTag))
    for mod in range(2):
        a('s_nop 0')
        select_tag(vA[mod], vQD[mod])
        a('ds_write_b128 v%d, v[%d:%d] offset:%d' % (vH1, vA[mod], vA[mod] + 3, L_STG + mod * 512))
    a('s_waitcnt lgkmcnt(0)')
    a('s_barrier')
    c('B0b: wave 4 sends the partials out; fill the ring with K meanwhile')
    stamp('stg')
    a('s_cmp_eq_u32 s3, 0')
    a('s_cbranch_scc1 L_x0c')
    for j in range(early, 32):
        w_ = win1 if j < early + n1 else win
        if j == early + x0:
            g.label('L_x0c')
            a('s_waitcnt vmcnt(%d)' % (w_ - 1))
            g.q = g.q[-(w_ - 1):]
        else:
            g.limit(w_ - 1)
        ring_load(sK[0], j)
    stamp('ring')
    a('s_barrier')
    c('B1: q is in LDS')
    if sprio:
        a('s_setprio %d' % sprio)
    stamp('B1')

    def pos(tau, r):
        return 8 * (r & 1) + 4 * (r >> 1) + 2 * (tau & 1) + (tau >> 1)

    def rotate():
        for i in range(14):
            a('v_mov_b32 v%d, v%d' % (vZ + i, vZ + i + 2))

    def k_group(refill):
        rotate()
        p, cc = vPa, vCc
        for i in range(32):
            k, r = divmod(i, 4)
            g.wait_tag('R%d' % i)
            for e in range(4):
                a('v_dot2_f32_bf16 v%d, v%d, v%d, %s' % (p + r, vRing + 4 * i + e, vQn + e, '0' if e == 0 else 'v%d' % (p + r)))
            refill(i)
            if r == 3:
                a('v_add_f32_dpp v%d, v%d, v%d row_mirror %s' % (p, p, p, DPPF % 3))
                a('v_add_f32_dpp v%d, v%d, v%d row_mirror %s' % (p, p + 1, p + 1, DPPF % 12))
                a('v_add_f32_dpp v%d, v%d, v%d row_mirror %s' % (p + 2, p + 2, p + 2, DPPF % 3))
                a('v_add_f32_dpp v%d, v%d, v%d row_mirror %s' % (p + 2, p + 3, p + 3, DPPF % 12))
                a('s_nop 0')
                a('v_add_f32_dpp v%d, v%d, v%d row_half_mirror %s' % (cc + (k & 3), p, p, DPPF % 5))
                a('v_add_f32_dpp v%d, v%d, v%d row_half_mirror %s' % (cc + (k & 3), p + 2, p + 2, DPPF % 10))
            if i & 15 == 15:
                for t in range(4):
                    a('v_add_f32_dpp v%d, v%d, v%d quad_perm:[2,3,0,1] %s' % (cc + t, cc + t, cc + t, DPPF % 15))
                a('v_cndmask_b32 v%d, v%d, v%d, s[%d:%d]' % (cc, cc, cc + 1, sB1, sB1 + 1))
                a('v_cndmask_b32 v%d, v%d, v%d, s[%d:%d]' % (cc + 2, cc + 2, cc + 3, sB1, sB1 + 1))
                a('s_nop 0')
                a('v_add_f32_dpp v%d, v%d, v%d quad_perm:[1,0,3,2] %s' % (cc, cc, cc, DPPF % 15))
                a('v_add_f32_dpp v%d, v%d, v%d quad_perm:[1,0,3,2] %s' % (cc + 2, cc + 2, cc + 2, DPPF % 15))
                a('v_cndmask_b32 v%d, v%d, v%d, s[%d:%d]' % (vZ + 14 + (i >> 4), cc, cc + 2, sB0, sB0 + 1))

    def v_group(refill):
        def build(i):
            for rr in range(4):
                a('v_and_b32_dpp v%d, v%d, v%d row_newbcast:%d %s' % (vA[i & 1] + rr, vZ + (i >> 4), vMask + rr, pos((i >> 2) & 3, i & 3), DPPF % 15))
        build(0)
        for i in range(32):
            if i < 31:
                build(i + 1)
            else:
                a('s_nop 1')
            g.wait_tag('R%d' % i)
            b = vRing + 4 * i
            a('v_mfma_f32_16x16x32_bf16 v[%d:%d], v[%d:%d], v[%d:%d], v[%d:%d]' % (vAcc, vAcc + 3, vA[i & 1], vA[i & 1] + 3, b, b + 3, vAcc, vAcc + 3))
            refill(i)
        rotate()

    uid = [0]

    def signal(word, rtn=False):
        a('s_mov_b64 exec, 1')
        if rtn:
            a('ds_add_rtn_u32 v%d, v%d, v%d offset:%d' % (vRk, vCtl, vOne, L_CTL + 4 * word))
        else:
            a('ds_add_u32 v%d, v%d offset:%d' % (vCtl, vOne, L_CTL + 4 * word))
        a('s_mov_b64 exec, -1')

    def paced(srd_, i, j):
        r = int('{:04b}'.format(i >> 1)[::-1], 2)
        if i % 2 == 0 and len(g.q) >= W - 1 and r < uflex:
            uid[0] += 1
            g.limit(W)
            a('s_cmp_gt_i32 s%d, %d' % (sU, r))
            a('s_cbranch_scc1 L_u%d' % uid[0])
            a('s_waitcnt vmcnt(%d)' % (W - 1))
            a('s_cmp_ge_i32 s%d, %d' % (sU, -r))
            a('s_cbranch_scc1 L_u%d' % uid[0])
            a('s_waitcnt vmcnt(%d)' % (W - 2))
            g.label('L_u%d' % uid[0])
        else:
            g.limit(W - 1)
        ring_load(srd_, j)

    def group(body, refill, upto=32):
        def take():
            a('s_waitcnt lgkmcnt(0)')
            a('v_readfirstlane_b32 s%d, v%d' % (sU, vU))
            if wg:
                a('v_readfirstlane_b32 s%d, v%d' % (sT0, vRk))
                a('s_add_u32 s%d, s%d, 4' % (sRk, sRk))
                a('s_nop 0')
                a('s_sub_i32 s%d, s%d, s%d' % (sT0, sT0, sRk))
                a('s_mul_i32 s%d, s%d, %d' % (sT0, sT0, 2 * wg))
                a('s_add_i32 s%d, s%d, %d' % (sT0, sT0, 2 - 3 * wg))
                a('s_ashr_i32 s%d, s%d, 2' % (sT0, sT0))
                a('s_add_i32 s%d, s%d, s%d' % (sU, sU, sT0))

        def rf(i):
            refill(i)
            for sa, sr, sx in chk:
                if sx < upto:
                    if i == sa:
                        signal(0, wg)
                    if i == sr:
                        a('ds_read_b32 v%d, v%d offset:%d' % (vU, vCtl, L_CTL + 4))
                    if i == sx and sx < 31:
                        take()
        body(rf)
        if chk[-1][2] == 31 and upto == 32:
            take()

    def phase(name, body, srd_, srd_next, trips):
        g.limit(W)
        steady = ['R%d' % j for j in range(D - W, D)]
        assert g.q == steady[len(steady) - len(g.q):]
        g.q = list(steady)
        a('s_mov_b32 s%d, %d' % (sCnt, trips))
        g.label(name)
        group(body, lambda i: paced(srd_, i, i + D))
        assert g.q == steady
        a('s_sub_u32 s%d, s%d, 1' % (sCnt, sCnt))
        a('s_cmp_lg_u32 s%d, 0' % sCnt)
        a('s_cbranch_scc1 %s' % name)

        def last(i):
            if i + D < 32:
                paced(srd_, i, i + D)
            elif srd_next is not None:
                if i + D == 32:
                    a('s_mov_b32 s%d, s%d' % (sOff, sBase))
                paced(srd_next, i, i + D)
            if srd_next is None and i == b2at:
                signal(3)
        c('last group of the phase: the look-ahead crosses into the next buffer')
        group(body, last, 32 if srd_next is not None else (24 if lastchk else 0))

    def wave_reduce(op, v):
        for ctl in ('row_mirror', 'row_half_mirror', 'quad_perm:[2,3,0,1]', 'quad_perm:[1,0,3,2]'):
            a('s_nop 1')
            a('%s_dpp v%d, v%d, v%d %s %s' % (op, v, v, v, ctl, DPPF % 15))
        a('s_nop 1')
        a('%s_dpp v%d, v%d, v%d row_bcast:15 row_mask:0xa bank_mask:0xf' % (op, v, v, v))
        a('s_nop 1')
        a('%s_dpp v%d, v%d, v%d row_bcast:31 row_mask:0xc bank_mask:0xf' % (op, v, v, v))
        a('s_nop 0')

    def softmax():
        c('softmax of this wave\'s 1024 scores: m = max, p = 2^(c*s - c*m), l = sum p')
        a('v_max3_f32 v%d, v%d, v%d, v%d' % (vTmp, vZ, vZ + 1, vZ + 2))
        for i in range(3, 15, 2):
            a('v_max3_f32 v%d, v%d, v%d, v%d' % (vTmp, vTmp, vZ + i, vZ + i + 1))
        a('v_max_f32 v%d, v%d, v%d' % (vTmp, vTmp, vZ + 15))
        wave_reduce('v_max_f32', vTmp)
        a('v_readlane_b32 s%d, v%d, 63' % (sMt, vTmp))
        a('v_mov_b32 v%d, s%d' % (vNeg, sC))
        a('s_nop 0')
        a('v_mul_f32 v%d, s%d, v%d' % (vNeg, sMt, vNeg))
        for i in range(16):
            a('v_fma_f32 v%d, v%d, s%d, -v%d' % (vZ + i, vZ + i, sC, vNeg))
        for i in range(16):
            a('v_exp_f32 v%d, v%d' % (vZ + i, vZ + i))
        for r in range(4):
            a('v_mov_b32 v%d, 0' % (vAcc + r))
        a('v_add_f32 v%d, v%d, v%d' % (vS, vZ, vZ + 1))
        for i in range(2, 16):
            a('v_add_f32 v%d, v%d, v%d' % (vS, vS, vZ + i))
        for i in range(16):
            a('v_cvt_pk_bf16_f32 v%d, v%d, v%d' % (vZ + i, vZ + i, vZ + i))
        wave_reduce('v_add_f32', vS)
        a('v_readlane_b32 s%d, v%d, 63' % (sL, vS))
        a('v_lshlrev_b32 v%d, 5, v%d' % (vT2, vT0))
        a('v_lshl_add_u32 v%d, v%d, 4, v%d' % (vT2, vT1, vT2))
        a('s_lshl_b32 s%d, s3, 9' % sT0)
        a('v_add_u32 v%d, s%d, v%d' % (vT2, sT0, vT2))
        a('s_lshl_b32 s%d, s3, 3' % sT0)
        a('v_mov_b32 v%d, s%d' % (vT3, sT0))
        a('v_mov_b32 v%d, s%d' % (vPa, sMt))
        a('v_mov_b32 v%d, s%d' % (vPa + 1, sL))

    for mod in range(2):
        c('---------------- K pass, module %s' % 'AB'[mod])
        a('v_lshlrev_b32 v%d, 4, v%d' % (vNeg, vT0))
        a('ds_read_b128 v[%d:%d], v%d offset:%d' % (vQn, vQn + 3, vNeg, L_Q + 256 * mod))
        a('s_waitcnt lgkmcnt(0)')
        if mod == 0:
            c('the ring was filled 32 deep while q was on its way: the look-ahead shrinks to %d over this group' % D)
            nxt = [32]

            def shrink(i):
                while nxt[0] < 32 + (i + 1) * D // 32:
                    paced(sK[0], i, nxt[0])
                    nxt[0] += 1
            group(k_group, shrink)
        phase('L_k%d' % mod, k_group, sK[mod], sV[mod], 6 if mod == 0 else 7)
        stamp('K%d' % mod)
        softmax()
        c('---------------- V pass, module %s' % 'AB'[mod])
        phase('L_v%d' % mod, v_group, sV[mod], sK[1] if mod == 0 else None, 7)
        stamp('V%d' % mod)
        c('leave (acc, m, l) in LDS')
        a('s_mov_b32 exec_hi, 0')
        a('ds_write_b128 v%d, v[%d:%d] offset:%d' % (vT2, vAcc, vAcc + 3, L_ACC + 2048 * mod))
        a('s_mov_b32 exec_lo, 1')
        a('ds_write_b64 v%d, v[%d:%d] offset:%d' % (vT3, vPa, vPa + 1, L_ML + 32 * mod))
        a('s_mov_b64 exec, -1')
    c('---------------- combine the four waves: thread t -> module t>>7, d = t&127')
    a('v_lshrrev_b32 v%d, 7, v0' % vT2)
    a('v_lshlrev_b32 v%d, 5, v%d' % (vT3, vT2))
    a('v_lshlrev_b32 v%d, 11, v%d' % (vT2, vT2))
    a('v_and_b32 v%d, 127, v0' % vNeg)
    a('v_lshl_add_u32 v%d, v%d, 2, v%d' % (vT2, vNeg, vT2))
    a('s_lshl_b32 s%d, s%d, 3' % (sT0, sH))
    a('s_add_u32 s%d, s%d, s%d' % (sT0, sT0, sJ))
    a('s_lshl_b32 s%d, s%d, 10' % (sT0, sT0))
    a('s_add_u32 s%d, s%d, 0x%x' % (sCnt, sT0, WS_H2))
    a('s_waitcnt lgkmcnt(0)')
    c('waves 0-3 meet on an LDS counter (wave 4 is busy)')
    signal(2)
    g.label('L_meet')
    a('ds_read_b32 v%d, v%d offset:%d' % (vU, vCtl, L_CTL + 8))
    a('s_waitcnt lgkmcnt(0)')
    a('v_cmp_gt_u32 vcc, 4, v%d' % vU)
    a('s_cbranch_vccnz L_meet')
    R = vS
    a('ds_read_b128 v[%d:%d], v%d offset:%d' % (R, R + 3, vT3, L_ML))
    a('ds_read_b128 v[%d:%d], v%d offset:%d' % (R + 4, R + 7, vT3, L_ML + 16))
    for w in range(4):
        a('ds_read_b32 v%d, v%d offset:%d' % (vA[0] + w, vT2, L_ACC + 512 * w))
    a('s_waitcnt lgkmcnt(4)')
    a('v_max3_f32 v%d, v%d, v%d, v%d' % (vT2, R, R + 2, R + 4))
    a('v_max_f32 v%d, v%d, v%d' % (vT2, vT2, R + 6))
    a('v_mul_f32 v%d, s%d, v%d' % (vNeg, sC, vT2))
    for w in range(4):
        a('v_fma_f32 v%d, v%d, s%d, -v%d' % (R + 2 * w, R + 2 * w, sC, vNeg))
    for w in range(4):
        a('v_exp_f32 v%d, v%d' % (R + 2 * w, R + 2 * w))
    a('s_nop 0')
    a('v_mul_f32 v%d, v%d, v%d' % (vT2, R, R + 1))
    for w in range(1, 4):
        a('v_fma_f32 v%d, v%d, v%d, v%d' % (vT2, R + 2 * w, R + 2 * w + 1, vT2))
    a('v_rcp_f32 v%d, v%d' % (vT2, vT2))
    a('s_waitcnt lgkmcnt(0)')
    a('v_mul_f32 v%d, v%d, v%d' % (vT3, R, vA[0]))
    for w in range(1, 4):
        a('v_fma_f32 v%d, v%d, v%d, v%d' % (vT3, R + 2 * w, vA[0] + w, vT3))
    a('v_mul_f32 v%d, v%d, v%d' % (vT3, vT3, vT2))
    c('H2: publish o as {two bf16, tag}')
    a('v_mov_b32 v%d, s%d' % (vA[1] + 1, sTag))
    a('v_lshlrev_b32 v%d, 2, v0' % vNeg)
    a('v_mov_b32_dpp v%d, v%d quad_perm:[1,0,3,2] %s' % (vT2, vT3, DPPF % 15))
    a('v_cvt_pk_bf16_f32 v%d, v%d, v%d' % (vA[1], vT3, vT2))
    a('s_mov_b32 exec_lo, 0x55555555')
    a('s_mov_b32 exec_hi, 0x55555555')
    a('buffer_store_dwordx2 v[%d:%d], v%d, s[%d:%d], s%d offen sc1' % (vA[1], vA[1] + 1, vNeg, sWS, sWS + 3, sCnt))
    a('s_mov_b64 exec, -1')
    stamp('pubo')
    vWO, vOf, vD = vRing, vRing + 64, vRing + 96
    c('o fragment address: (n&7)*272 + g*16')
    a('v_and_b32 v%d, 7, v%d' % (vT2, vLane))
    a('v_mul_u32_u24 v%d, 272, v%d' % (vT3, vT2))
    a('v_lshl_add_u32 v%d, v%d, 4, v%d' % (vT3, vT1, vT3))
    a('v_bfe_u32 v%d, v%d, 3, 1' % (vNeg, vLane))
    c('H3 address: (j*32 + h)*8192 + mod*4096 + b*512 + w*128 + (n>>3)*64 + g*16')
    a('v_lshlrev_b32 v%d, 9, v%d' % (vT2, vT2))
    a('s_lshl_b32 s%d, s%d, 5' % (sT0, sJ))
    a('s_add_u32 s%d, s%d, s%d' % (sT0, sT0, sH))
    a('s_lshl_b32 s%d, s%d, 13' % (sT0, sT0))
    a('s_lshl_b32 s%d, s3, 7' % sT1)
    a('s_add_u32 s%d, s%d, s%d' % (sT0, sT0, sT1))
    a('s_add_u32 s%d, s%d, 4096' % (sT1, sT0))
    a('v_lshl_add_u32 v%d, v%d, 6, v%d' % (vT2, vNeg, vT2))
    a('v_lshl_add_u32 v%d, v%d, 4, v%d' % (vT2, vT1, vT2))
    a('v_mov_b32 v%d, 0xff' % vTmp)
    a('v_mov_b32 v%d, s%d' % (vNeg, sTag))
    if og:
        c('H2: wave w gathers o of batches 2w and 2w+1 -> LDS (l>>5)*8*272 + (l&31)*8 + b*272')
        vP2, vB2, vL2 = vZ, vZ + 8, vZ + 9
        a('s_lshl_b32 s%d, s%d, 13' % (sOff, sH))
        a('s_lshl_b32 s%d, s3, 11' % sMt)
        a('s_add_u32 s%d, s%d, s%d' % (sOff, sOff, sMt))
        a('s_add_u32 s%d, s%d, 0x%x' % (sOff, sOff, WS_H2))
        a('v_lshrrev_b32 v%d, 5, v%d' % (vL2, vLane))
        a('v_mul_u32_u24 v%d, %d, v%d' % (vL2, 8 * 272, vL2))
        a('v_and_b32 v%d, 31, v%d' % (vB2, vLane))
        a('v_lshl_add_u32 v%d, v%d, 3, v%d' % (vL2, vB2, vL2))
        a('s_mul_i32 s%d, s3, %d' % (sMt, 2 * 272))
        a('s_add_u32 s%d, s%d, %d' % (sMt, sMt, L_O))
        a('v_add_u32 v%d, s%d, v%d' % (vL2, sMt, vL2))
        a('s_mov_b32 s%d, 0x%x' % (sCnt, tmo))
        g.label('L_po')
        for p in range(2):
            a('buffer_load_dwordx4 v[%d:%d], v%d, s[%d:%d], s%d offen offset:%d sc1' % (vP2 + 4 * p, vP2 + 4 * p + 3, vNat, sWS, sWS + 3, sOff, 1024 * p))
        a('s_waitcnt vmcnt(1)')
        a('v_xor_b32 v%d, s%d, v%d' % (vP2 + 1, sTag, vP2 + 1))
        a('v_xor_b32 v%d, s%d, v%d' % (vP2 + 3, sTag, vP2 + 3))
        a('s_waitcnt vmcnt(0)')
        a('v_xor_b32 v%d, s%d, v%d' % (vP2 + 5, sTag, vP2 + 5))
        a('v_xor_b32 v%d, s%d, v%d' % (vP2 + 7, sTag, vP2 + 7))
        a('v_or3_b32 v%d, v%d, v%d, v%d' % (vB2, vP2 + 1, vP2 + 3, vP2 + 5))
        a('v_or_b32 v%d, v%d, v%d' % (vB2, vB2, vP2 + 7))
        a('v_cmp_ne_u32 vcc, 0, v%d' % vB2)
        a('s_cbranch_vccz L_po_ok')
        a('s_sleep %d' % sleep)
        a('s_sub_u32 s%d, s%d, 1' % (sCnt, sCnt))
        a('s_cmp_lg_u32 s%d, 0' % sCnt)
        a('s_cbranch_scc1 L_po')
        g.label('L_po_ok')
        for p in range(2):
            a('ds_write2_b32 v%d, v%d, v%d offset0:%d offset1:%d' % (vL2, vP2 + 4 * p, vP2 + 4 * p + 2, 68 * p, 68 * p + 1))
        a('s_waitcnt lgkmcnt(0)')
        a('s_barrier')
        c('B4: wo and o of the 8 batches are in LDS')
    else:
        a('s_barrier')
        c('B3: wo is in LDS')
        for mod in range(2):
            tr_reads(vWO + 32 * mod, mod)
        a('s_barrier')
        c('B4: o of the 8 batches is in LDS')
    stamp('B4')
    for mod in range(2):
        for kb in range(4):
            r = vOf + 16 * mod + 4 * kb
            a('ds_read_b128 v[%d:%d], v%d offset:%d' % (r, r + 3, vT3, L_O + mod * 8 * 272 + kb * 64))
        if og:
            tr_reads(vWO + 32 * mod, mod)
    for mod in range(2):
        a('s_waitcnt lgkmcnt(%d)' % ((15 if og else 4) if mod == 0 else 0))
        proj_mfma(vD + 8 * mod, vWO + 32 * mod, vOf + 16 * mod)
    for mod in range(2):
        a('s_nop 0')
        select_tag(vD + 8 * mod, vD + 8 * mod)
        a('buffer_store_dwordx4 v[%d:%d], v%d, s[%d:%d], s%d offen sc1' % (vD + 8 * mod, vD + 8 * mod + 3, vT2, sWS, sWS + 3, (sT0, sT1)[mod]))
    if b5:
        a('s_waitcnt vmcnt(0)')
        a('s_barrier')
        c('B5: wave 4 starts to look for the other heads only now (lines it has read cost their writers a probe)')
    if stamps:
        a('s_waitcnt vmcnt(0)')
        stamp('end')
        write_stamps(nst[0])
    nst_stream = nst[0]
    a('s_endpgm')

    g.label('L_comm')
    c('================ wave 4')
    nst[0] = 0
    names.append('|')
    vG = 16
    vBad, vWa, vWx = 80, 82, 83
    a('s_setprio 3')
    if touch:
        c('one scalar load per page that comes up later: the address translations are fetched ahead of the stream')
        a('s_lshl_b32 s%d, s%d, 5' % (sT0, sJ))
        a('s_add_u32 s%d, s%d, s%d' % (sT0, sT0, sH))
        a('s_lshl_b32 s%d, s%d, 20' % (sT0, sT0))
        a('s_lshl_b32 s%d, s%d, 20' % (sT1, sJ))
        a('s_lshl_b32 s%d, s%d, 18' % (sL, sH))
        a('s_mov_b32 s%d, 0x%x' % (sMt, WS_H1))
        tl = []
        if touch & 1:
            tl += [(6, sT0), (20, sT1), (28, sMt)]
        if touch & 2:
            tl += [(8, sT0), (16, sT0), (18, sT0), (12, sL), (22, sL), (28, None), (24, None)]
        for n, (p, so) in enumerate(tl):
            a('s_load_dword s%d, s[%d:%d], %s' % (44 + n, p, p + 1, 's%d' % so if so else '0'))
    srd(sWO[0], 12, 1 << 23)
    srd(sWO[1], 22, 1 << 23)
    srd(sOut, 24, 32768)
    a('s_mov_b32 s%d, s%d' % (sBase, sH1))
    a('v_add_u32 v%d, 4096, v%d' % (vHi, vNat))
    a('s_lshl_b32 s%d, s%d, 16' % (sT0, sH))
    a('s_add_u32 s%d, s%d, 0x%x' % (sT0, sT0, WS_H1))
    a('s_lshl_b32 s%d, s%d, 13' % (sT1, sJ))
    a('s_add_u32 s%d, s%d, s%d' % (sOff, sT0, sT1))
    a('s_lshl_b32 s%d, s%d, 10' % (sT1, sJ))
    a('s_add_u32 s%d, s%d, s%d' % (sH1, sT0, sT1))
    a('v_lshlrev_b32 v%d, 3, v%d' % (vT3, vLane))
    npoll = [0]

    def poll(name, bytetag, slp, stride=0):
        a('s_mov_b32 s%d, 0x%x' % (sCnt, tmo))
        g.label(name)
        for p in range(8):
            if stride:
                a('s_add_u32 s%d, s%d, %d' % (sMt, sOff, p * stride))
                a('buffer_load_dwordx4 v[%d:%d], v%d, s[%d:%d], s%d offen sc1' % (vG + 4 * p, vG + 4 * p + 3, vHi, sWS, sWS + 3, sMt))
            else:
                a('buffer_load_dwordx4 v[%d:%d], v%d, s[%d:%d], s%d offen offset:%d sc1' % (vG + 4 * p, vG + 4 * p + 3, vHi if p & 4 else vNat, sWS, sWS + 3, sOff, 1024 * (p & 3)))
        a('v_mov_b32 v%d, 0' % vBad)
        for p in range(8):
            a('s_waitcnt vmcnt(%d)' % (7 - p))
            es = (0, 1, 2, 3) if bytetag else (1, 3)
            for e in es:
                a('v_xor_b32 v%d, s%d, v%d' % (vG + 4 * p + e, sT8 if bytetag else sTag, vG + 4 * p + e))
            for i in range(0, len(es), 2):
                a('v_or3_b32 v%d, v%d, v%d, v%d' % (vBad, vBad, vG + 4 * p + es[i], vG + 4 * p + es[i + 1]))
        if bytetag:
            a('v_and_b32 v%d, 0xff, v%d' % (vBad, vBad))
        a('v_cmp_ne_u32 vcc, 0, v%d' % vBad)
        a('s_cbranch_vccz %s_ok' % name)
        a('s_sleep %d' % slp)
        a('s_sub_u32 s%d, s%d, 1' % (sCnt, sCnt))
        a('s_cmp_lg_u32 s%d, 0' % sCnt)
        a('s_cbranch_scc1 %s' % name)
        g.label(name + '_ok')
        if stamps:
            a('s_sub_u32 s%d, 0x%x, s%d' % (20 + 2 * npoll[0], tmo, sCnt))
            npoll[0] += 1

    def sum8():
        b = vG
        for e in range(4):
            for p in range(0, 8, 2):
                a('v_add_f32 v%d, v%d, v%d' % (b + 4 * p + e, b + 4 * p + e, b + 4 * p + 4 + e))
            a('v_add_f32 v%d, v%d, v%d' % (b + e, b + e, b + 8 + e))
            a('v_add_f32 v%d, v%d, v%d' % (b + 16 + e, b + 16 + e, b + 24 + e))
            a('v_add_f32 v%d, v%d, v%d' % (b + e, b + e, b + 16 + e))

    def post(value_sgpr, soff, pol=''):
        a('v_mov_b32 v%d, s%d' % (vG + 1, value_sgpr))
        a('s_mov_b64 exec, 1')
        a(('buffer_store_dword v%d, v%d, s[%d:%d], s%d offen %s' % (vG + 1, vCtl, sWS, sWS + 3, soff, pol)).rstrip())

    a('v_mov_b32 v%d, 0' % vCtl)
    for r in range(4):
        a('v_mov_b32 v%d, 0' % (vG + r))
    a('ds_write_b128 v%d, v[%d:%d] offset:%d' % (vCtl, vG, vG + 3, L_CTL))
    a('s_barrier')
    make_tag()
    a('s_and_b32 s%d, s%d, 0xff' % (sT8, sTag))
    a('s_barrier')
    c('H1: send the partial sums for the 8 batches, gather the 8 partial sums for batch j')
    for p in range(8):
        a('ds_read_b128 v[%d:%d], v%d offset:%d' % (vG + 4 * p, vG + 4 * p + 3, vNat, L_STG + 1040 * p))
    for p in range(8):
        a('s_waitcnt lgkmcnt(%d)' % (7 - p))
        a('buffer_store_dwordx4 v[%d:%d], v%d, s[%d:%d], s%d offen sc1' % (vG + 4 * p, vG + 4 * p + 3, vNat, sWS, sWS + 3, sH1))
        a('s_add_u32 s%d, s%d, 8192' % (sH1, sH1))
    a('s_waitcnt vmcnt(0)')
    stamp('st')
    poll('L_pq', True, sleep)
    sum8()
    a('v_cvt_pk_bf16_f32 v%d, v%d, v%d' % (vG, vG, vG + 1))
    a('v_cvt_pk_bf16_f32 v%d, v%d, v%d' % (vG + 1, vG + 2, vG + 3))
    a('ds_write_b64 v%d, v[%d:%d] offset:%d' % (vT3, vG, vG + 1, L_Q))
    a('s_waitcnt lgkmcnt(0)')
    stamp('q')
    a('s_barrier')
    c('B1 passed.  wo rows 128h .. + 127, columns 128j .. + 127 will go where wq was')
    weight_voffsets(11)
    a('s_lshl_b32 s%d, s%d, 18' % (sT0, sH))
    a('s_lshl_b32 s%d, s%d, 8' % (sT1, sJ))
    a('s_add_u32 s%d, s%d, s%d' % (sWOff, sT0, sT1))
    a('s_lshl_b32 s%d, s%d, 13' % (sT0, sH))
    a('s_add_u32 s%d, s%d, 0x%x' % (sOff, sT0, WS_H2))
    c('LDS address of the gathered o: (l>>5)*8*272 + (l&31)*8')
    a('v_lshrrev_b32 v%d, 5, v%d' % (vT2, vLane))
    a('v_mul_u32_u24 v%d, %d, v%d' % (vT2, 8 * 272, vT2))
    a('v_and_b32 v%d, 31, v%d' % (vT3, vLane))
    a('v_lshl_add_u32 v%d, v%d, 3, v%d' % (vT2, vT3, vT2))
    a('v_add_u32 v%d, %d, v%d' % (vT2, L_O, vT2))
    a('v_add_u32 v%d, %d, v%d' % (vT3, 4 * 272, vT2))
    a('s_mov_b32 s%d, %d' % (sLdsW, L_W))
    c('Progress words (speed only): one per CU in a block per die, stored plainly and read through that die\'s L2.')
    c('The share of neighbours that are ahead trims the loads in flight; odd dies run a little faster by nature.')
    a('s_getreg_b32 s%d, hwreg(HW_REG_XCC_ID)' % sT0)
    a('s_and_b32 s%d, s%d, 15' % (sT0, sT0))
    a('s_bitcmp1_b32 s%d, 0' % sT0)
    a('s_cselect_b32 s%d, %d, %d' % (sC, 8 + lpar[1], 8 + lpar[0]))
    a('s_mul_i32 s%d, s%d, 4352' % (sT0, sT0))
    a('s_add_u32 s%d, s%d, 0x%x' % (sLine, sT0, WS_CTL))
    a('s_getreg_b32 s%d, hwreg(HW_REG_HW_ID, 13, 2)' % sT1)
    a('s_getreg_b32 s%d, hwreg(HW_REG_HW_ID, 8, 4)' % sT0)
    a('s_lshl_b32 s%d, s%d, 6' % (sT1, sT1))
    a('s_lshl_b32 s%d, s%d, 2' % (sT0, sT0))
    a('s_add_u32 s%d, s%d, s%d' % (sT1, sT1, sT0))
    a('s_add_u32 s%d, s%d, s%d' % (sOwn, sLine, sT1))
    a('v_lshlrev_b32 v%d, 2, v%d' % (vWa, vLane))
    c('Every %d groups one workgroup per die compares with the other dies; slot 63 passes the result on.' % xp)
    a('v_mul_u32_u24 v%d, 4352, v%d' % (vWx, vLane))
    a('s_add_u32 s%d, s%d, 0x10000' % (sXo, sLine))
    a('s_mov_b32 s%d, 0x%x' % (sXa, WS_CTL + 0x10000))
    a('s_add_u32 s%d, s%d, 252' % (sXb, sLine))
    a('s_lshr_b32 s%d, s2, 3' % sXr)
    a('s_and_b32 s%d, s%d, %d' % (sT0, sXr, xp - 1))
    a('s_cmp_eq_u32 s%d, 0' % sT0)
    a('s_cselect_b32 s%d, s%d, 0' % (sXr, sXr))
    a('s_cmp_le_u32 s%d, %d' % (sXr, xlast))
    a('s_cselect_b32 s%d, s%d, 0' % (sXr, sXr))
    if nchk > 1:
        a('s_mul_i32 s%d, s%d, %d' % (sXr, sXr, nchk))
    a('s_and_b32 s%d, s%d, 0xffffff00' % (sThi, sTag))
    a('s_mov_b32 s%d, %d' % (sL, per))
    if stamps:
        a('s_mov_b32 s18, 0')
        a('s_mov_b32 s16, 0')
    g.label('L_ctl')
    a('s_lshl_b32 s%d, s%d, 2' % (sT0, sL))
    a('s_sub_u32 s%d, s%d, 2' % (sT0, sT0))
    g.label('L_ctla')
    a('s_sleep 1')
    a('ds_read_b32 v%d, v%d offset:%d' % (vG, vCtl, L_CTL))
    a('s_waitcnt lgkmcnt(0)')
    a('v_cmp_gt_u32 vcc, s%d, v%d' % (sT0, vG))
    a('s_cbranch_vccnz L_ctla')
    a('s_or_b32 s%d, s%d, s%d' % (sMt, sThi, sL))
    a('s_cmp_lg_u32 s%d, s%d' % (sL, sXr))
    a('s_cbranch_scc1 L_ctlb')
    a('s_mov_b64 exec, 0xff')
    a('buffer_load_dword v%d, v%d, s[%d:%d], s%d offen sc1' % (vG + 3, vWx, sWS, sWS + 3, sXa))
    post(sMt, sXo, 'sc1')
    a('s_mov_b64 exec, -1')
    g.label('L_ctlb')
    post(sMt, sOwn)
    a('s_mov_b64 exec, -1')
    a('buffer_load_dword v%d, v%d, s[%d:%d], s%d offen sc1' % (vG + 2, vWa, sWS, sWS + 3, sLine))
    a('s_waitcnt vmcnt(0)')
    a('v_xor_b32 v%d, s%d, v%d' % (vG + 2, sThi, vG + 2))
    a('s_cmp_lg_u32 s%d, s%d' % (sL, sXr))
    a('s_cbranch_scc1 L_ctly')
    a('v_xor_b32 v%d, s%d, v%d' % (vG + 3, sThi, vG + 3))
    a('v_subrev_u32 v%d, s%d, v%d' % (vG + 3, sL, vG + 3))
    a('s_mov_b64 exec, 0xff')
    a('v_cmp_gt_u32 vcc, 64, v%d' % (vG + 3))
    a('s_nop 1')
    a('s_bcnt1_i32_b64 s%d, vcc' % sU)
    if stamps:
        a('s_add_u32 s16, s16, s%d' % sU)
    a('s_mul_i32 s%d, s%d, %d' % (sU, sU, xg))
    a('s_min_u32 s%d, s%d, 63' % (sU, sU))
    a('s_or_b32 s%d, s%d, 128' % (sU, sU))
    a('s_or_b32 s%d, s%d, s%d' % (sU, sU, sThi))
    post(sU, sXb)
    a('s_mov_b64 exec, -1')
    g.label('L_ctly')
    a('s_nop 0')
    a('v_readlane_b32 s%d, v%d, 63' % (sMt, vG + 2))
    a('v_subrev_u32 v%d, s%d, v%d' % (vG + 2, sL, vG + 2))
    a('v_cmp_gt_u32 vcc, 64, v%d' % (vG + 2))
    a('s_nop 1')
    a('s_bcnt1_i32_b64 s%d, vcc' % sU)
    if stamps:
        a('s_add_u32 s18, s18, s%d' % sU)
    a('s_sub_i32 s%d, s%d, 16' % (sU, sU))
    a('s_mul_i32 s%d, s%d, %d' % (sU, sU, umax))
    a('s_sub_u32 s%d, s%d, 128' % (sMt, sMt))
    a('s_cmp_lt_u32 s%d, 64' % sMt)
    a('s_cselect_b32 s%d, s%d, %d' % (sMt, sMt, xoff))
    a('s_sub_i32 s%d, s%d, %d' % (sMt, sMt, xoff))
    a('s_add_i32 s%d, s%d, s%d' % (sU, sU, sMt))
    a('s_add_i32 s%d, s%d, s%d' % (sU, sU, sC))
    a('s_ashr_i32 s%d, s%d, 4' % (sU, sU))
    a('s_max_i32 s%d, s%d, %d' % (sU, sU, umin))
    a('v_mov_b32 v%d, s%d' % (vG, sU))
    a('ds_write_b32 v%d, v%d offset:%d' % (vCtl, vG, L_CTL + 4))
    a('s_add_u32 s%d, s%d, %d' % (sL, sL, per))
    nlast = 31 * nchk + (sum(1 for x in chk if x[2] < 24) if lastchk else 0)
    assert nlast < 64
    a('s_cmp_le_u32 s%d, %d' % (sL, nlast))
    a('s_cbranch_scc1 L_ctl')
    c('fetch wo once this workgroup\'s stream is all but over, or as soon as %d neighbours are there' % ltrig)
    DONE = 60 if nlast < 40 else 100
    g.label('L_tr')
    a('ds_read_b32 v%d, v%d offset:%d' % (vG, vCtl, L_CTL + 12))
    a('buffer_load_dword v%d, v%d, s[%d:%d], s%d offen sc1' % (vG + 2, vWa, sWS, sWS + 3, sLine))
    a('s_waitcnt lgkmcnt(0)')
    a('v_cmp_le_u32 vcc, 2, v%d' % vG)
    a('s_cbranch_vccnz L_trown')
    a('s_waitcnt vmcnt(0)')
    a('v_xor_b32 v%d, s%d, v%d' % (vG + 2, sThi, vG + 2))
    a('v_cmp_eq_u32 vcc, %d, v%d' % (DONE, vG + 2))
    a('s_nop 1')
    a('s_bcnt1_i32_b64 s%d, vcc' % sU)
    a('s_cmp_ge_u32 s%d, %d' % (sU, ltrig))
    a('s_cbranch_scc1 L_trgo')
    a('s_sleep 2')
    a('s_branch L_tr')
    g.label('L_trown')
    a('s_or_b32 s%d, s%d, %d' % (sMt, sThi, DONE))
    post(sMt, sOwn)
    g.label('L_trgo')
    a('s_mov_b64 exec, -1')
    if woprio != 3:
        a('s_setprio %d' % woprio)
    for mod in range(2):
        a('s_mov_b32 s%d, s%d' % (sT0, sWOff))
        a('s_mov_b32 s%d, 8' % sCnt)
        g.label('L_wo%d' % mod)
        for i in range(4):
            if wowin:
                a('s_waitcnt vmcnt(%d)' % (wowin - 1))
            a('s_mov_b32 m0, s%d' % sLdsW)
            a('s_add_u32 s%d, s%d, 1024' % (sLdsW, sLdsW))
            a('buffer_load_dwordx4 v%d, s[%d:%d], s%d offen nt lds' % (vW1 if i & 2 else vW, sWO[mod], sWO[mod] + 3, sT0))
            a('s_add_u32 s%d, s%d, 8192' % (sT0, sT0))
        a('s_sub_u32 s%d, s%d, 1' % (sCnt, sCnt))
        a('s_cmp_lg_u32 s%d, 0' % sCnt)
        a('s_cbranch_scc1 L_wo%d' % mod)
    if woprio != 3:
        a('s_setprio 3')
    a('s_waitcnt vmcnt(0)')
    if og:
        stamp('wo')
        stamp('o')
        if stamps:
            a('s_mov_b32 s22, 0')
            npoll[0] += 1
    else:
        a('s_barrier')
        c('B3 passed.  H2: gather o of the 8 batches')
        stamp('wo')
        poll('L_po', False, sleep)
        for p in range(8):
            a('ds_write2_b32 v%d, v%d, v%d offset0:%d offset1:%d' % (vT2 if p < 4 else vT3, vG + 4 * p, vG + 4 * p + 2, 68 * (p & 3), 68 * (p & 3) + 1))
        a('s_waitcnt lgkmcnt(0)')
        stamp('o')
    a('s_barrier')
    c('B4 passed.  H3: row h of the 32 blocks of slice j = outputs (mod, b, half) with h = mod*16 + b*2 + half')
    a('s_lshl_b32 s%d, s%d, 18' % (sT0, sJ))
    a('s_lshl_b32 s%d, s%d, 8' % (sT1, sH))
    a('s_add_u32 s%d, s%d, s%d' % (sOff, sT0, sT1))
    a('v_lshlrev_b32 v%d, 4, v%d' % (vHi, vT0))
    a('v_lshl_add_u32 v%d, v%d, 13, v%d' % (vHi, vT1, vHi))
    c('out byte offset: b*4096 + mod*2048 + j*256 + half*128 + (l&15)*8')
    a('s_bfe_u32 s%d, s%d, 0x30001' % (sT0, sH))
    a('s_lshl_b32 s%d, s%d, 12' % (sT0, sT0))
    a('s_lshr_b32 s%d, s%d, 4' % (sT1, sH))
    a('s_lshl_b32 s%d, s%d, 11' % (sT1, sT1))
    a('s_add_u32 s%d, s%d, s%d' % (sT0, sT0, sT1))
    a('s_lshl_b32 s%d, s%d, 8' % (sT1, sJ))
    a('s_add_u32 s%d, s%d, s%d' % (sT0, sT0, sT1))
    a('s_and_b32 s%d, s%d, 1' % (sT1, sH))
    a('s_lshl_b32 s%d, s%d, 7' % (sT1, sT1))
    a('s_add_u32 s%d, s%d, s%d' % (sWOff, sT0, sT1))
    a('v_lshlrev_b32 v%d, 3, v%d' % (vT2, vT0))
    if b5:
        a('s_barrier')
    if thr2:
        c('and not before most neighbours have written theirs (bounded)')
        a('s_or_b32 s%d, s%d, 110' % (sMt, sThi))
        post(sMt, sOwn)
        a('s_mov_b64 exec, -1')
        a('s_mov_b32 s%d, 64' % sCnt)
        g.label('L_d2')
        a('buffer_load_dword v%d, v%d, s[%d:%d], s%d offen sc1' % (vG + 2, vWa, sWS, sWS + 3, sLine))
        a('s_sub_u32 s%d, s%d, 1' % (sCnt, sCnt))
        a('s_waitcnt vmcnt(0)')
        a('v_cmp_eq_u32 vcc, s%d, v%d' % (sMt, vG + 2))
        a('s_cmp_eq_u32 s%d, 0' % sCnt)
        a('s_cbranch_scc1 L_d2x')
        a('s_bcnt1_i32_b64 s%d, vcc' % sU)
        a('s_cmp_lt_u32 s%d, %d' % (sU, thr2))
        a('s_cbranch_scc1 L_d2')
        g.label('L_d2x')
    poll('L_pp', True, sleep3, 32768)
    sum8()
    for swap in ('v_permlane32_swap_b32', 'v_permlane16_swap_b32'):
        for r in range(4):
            a('v_mov_b32 v%d, v%d' % (vG + 4 + r, vG + r))
        a('s_nop 1')
        for r in range(4):
            a('%s v%d, v%d' % (swap, vG + r, vG + 4 + r))
        a('s_nop 1')
        for r in range(4):
            a('v_add_f32 v%d, v%d, v%d' % (vG + r, vG + r, vG + 4 + r))
    a('v_cvt_pk_bf16_f32 v%d, v%d, v%d' % (vG, vG, vG + 1))
    a('v_cvt_pk_bf16_f32 v%d, v%d, v%d' % (vG + 1, vG + 2, vG + 3))
    a('s_mov_b32 exec_lo, 0xffff')
    a('s_mov_b32 exec_hi, 0')
    a('buffer_store_dwordx2 v[%d:%d], v%d, s[%d:%d], s%d offen' % (vG, vG + 1, vT2, sOut, sOut + 3, sWOff))
    c('H3 has arrived, so every workgroup has read the epoch word: workgroup 0 moves it on')
    a('s_cmp_lg_u32 s2, 0')
    a('s_cbranch_scc1 L_comm_end')
    a('v_mov_b32 v%d, s%d' % (vT2, sTag))
    a('v_mov_b32 v%d, 0' % vT3)
    a('s_mov_b64 exec, 1')
    a('buffer_store_dword v%d, v%d, s[%d:%d], s%d offen' % (vT2, vT3, sWS, sWS + 3, sBase))
    g.label('L_comm_end')
    if stamps:
        a('s_waitcnt vmcnt(0)')
        stamp('fin')
        write_stamps(11)
    g.label('L_exit')
    a('s_endpgm')

    tail = '''.section .rodata,"a"
.p2align 6
.amdhsa_kernel %s
  .amdhsa_next_free_vgpr 256
  .amdhsa_next_free_sgpr 100
  .amdhsa_accum_offset 256
  .amdhsa_group_segment_fixed_size 0
  .amdhsa_kernarg_size 104
  .amdhsa_user_sgpr_count 2
  .amdhsa_user_sgpr_kernarg_segment_ptr 1
  .amdhsa_system_sgpr_workgroup_id_x 1
  .amdhsa_float_denorm_mode_32 3
.end_amdhsa_kernel
''' % K1
    head = HEADER + '; @launch grid=(256,1,1) block=(320,1,1) lds=%d\n' % L_END
    if stamps:
        head += '; nst3=%d names: start %s\n' % (nst_stream + 1, ' '.join(names))
    head += ''.join(('; ' + l).rstrip() + '\n' for l in DESIGN.split('\n'))
    return head + '\n'.join(g.L) + '\n' + tail


if __name__ == '__main__':
    import json
    kw = json.loads(sys.argv[2]) if len(sys.argv) > 2 else {}
    src = gen(**kw)
    open(sys.argv[1], 'w').write(src)
```

```python
import sys, math, struct

NAME = 'concat_heads__mha_block_cached__mha_block_cached__decode'
HEADER = open('cdna_kernels/' + NAME + '.s.ref').read().split('; Override launch')[0]

DESIGN = """
One launch, 256 workgroups (one per CU), 5 waves each.  Workgroup (h, j): head h, batch j of both modules.
The 1 GiB of K/V is streamed in four chip-wide phases K_A, V_A, K_B, V_B (one large buffer at a time: reading
several at once costs up to 13 % of the HBM rate, depending on where they were allocated).
 waves 0-3  stream with five 1 KiB loads in flight each (enough to fill HBM, few enough to share it evenly).
            K pass: v_dot2 + DPP reduction -> 1024 scores per wave in 16 registers; exact softmax per wave
            (true maximum); V pass: p on the diagonal of the MFMA A operand, V rows as the B operand.
 wave 4     hand-offs through d_ws.  Every word carries a tag derived from a word at WS_EPOCH that the launch
            moves on at its end, so words of an earlier launch are never taken for this launch's.
   H1  x @ wq: (h, j) multiplies rows 128j..128j+127 for all batches, the 8 workgroups of a head swap partial sums
   H2  the 8 workgroups of a head swap their attention outputs; (h, j) multiplies with columns 128j..128j+127 of wo
   H3  the 32 workgroups of a column slice swap partial outputs; each sums 64 outputs over the heads
            While the stream runs it also trims the loads in flight by a few percent from the progress words of
            the neighbours, so that all workgroups finish together.  That affects speed only.
"""


def f32bits(x):
    return struct.unpack('<I', struct.pack('<f', x))[0]


CSCALE = (128 ** -0.5) * math.log2(math.e)
WS_H3 = 0
WS_H1 = 2 << 20
WS_H2 = 4 << 20
WS_EPOCH = 5 << 20
WS_CTL = (5 << 20) + 65536
WS_END = 6 << 20
WS_STAMP = 8 << 20
L_Q = 0
L_ACC = 512
L_ML = 4608
L_O = 4672
L_CTL = 9152
L_STG = 9216
L_W = 17664
L_END = L_W + 65536


class Asm:
    def __init__(self):
        self.L = []
        self.q = []

    def a(self, s):
        self.L.append('    ' + s)

    def c(self, s):
        self.L.append('    ; ' + s)

    def label(self, s):
        self.L.append(s + ':')

    def vm(self, tag, s):
        self.a(s)
        self.q.append(tag)
        assert len(self.q) <= 63

    def wait_tag(self, tag):
        idx = [i for i, t in enumerate(self.q) if t == tag]
        if idx:
            self.a('s_waitcnt vmcnt(%d)' % (len(self.q) - 1 - idx[-1]))
            self.q = self.q[idx[-1] + 1:]

    def limit(self, n):
        if len(self.q) > n:
            self.a('s_waitcnt vmcnt(%d)' % n)
            self.q = self.q[len(self.q) - n:] if n else []


def gen(W=5, D=8, T=8, early=8, x0=4, win=10, sleep=2, sleep3=2, tmo=1 << 20, stamps=False,
        chk=((18, 29, 31),), umax=4, uflex=12, umin=-12, lpar=(8, -24), xg=8, xp=2, xoff=8, xlast=26,
        ltrig=4, b2at=20, lastchk=False, touch=0, woprio=3, sprio=0, wowin=24, wg=6, og=False, b5=True, thr2=20, per=1, win1=0, n1=0, spec=False, f5=False, trsleep=2, d2sleep=0):
    g = Asm()
    a, c = g.a, g.c
    nchk = len(chk)
    assert W + 1 < D <= 32
    sX, sWQ, sK, sV, sWO = (32, 36), (40, 44), (48, 56), (52, 60), (64, 68)
    sWS, sOut = 72, 32
    sTag, sH, sJ, sOff, sCnt, sT0, sT1, sC = 76, 77, 78, 79, 80, 81, 82, 83
    sB1, sB0, sN8 = 86, 88, 90
    sMt, sBase, sL, sLdsW, sWOff, sH1, sT8, sU = 92, 93, 94, 95, 96, 97, 84, 85
    sRk = 64
    sOwn, sLine, sThi = 36, 38, 39
    sXo, sXa, sXb, sXr = 40, 41, 42, 43
    vLane, vT0, vT1, vT2, vT3 = 1, 2, 3, 4, 5
    vHi, vNat = 6, 7
    vMask = 8
    vAcc = 12
    vA = (16, 20)
    vS, vPa, vCc = 24, 28, 32
    vNeg, vTmp, vTr, vW = 36, 37, 38, 39
    vZ = 40
    vQn = 72
    vXf = (76, 92)
    vTr1, vW1, vH1, vCtl, vOne, vU, vRk = 108, 109, 110, 111, 120, 121, 122
    vWf = (40, 224)
    vQD = (24, 112)
    vRing = 128
    DPPF = 'row_mask:0xf bank_mask:0x%x'
    nst = [0]
    names = []

    def stamp(name):
        if stamps:
            names.append(name)
            a('s_memrealtime s[%d:%d]' % (4 + 2 * nst[0], 5 + 2 * nst[0]))
            nst[0] += 1

    def write_stamps(n):
        a('s_waitcnt vmcnt(0) lgkmcnt(0)')
        a('s_mov_b64 exec, -1')
        a('s_getreg_b32 s99, hwreg(HW_REG_XCC_ID)')
        a('v_mov_b32 v%d, s99' % vT2)
        a('v_writelane_b32 v%d, s98, 0' % vT2)
        for i in range(n):
            a('v_writelane_b32 v%d, s%d, %d' % (vT2, 4 + 2 * i, i + 1))
        a('s_mul_i32 s%d, s2, 5' % sT0)
        a('s_add_u32 s%d, s%d, s3' % (sT0, sT0))
        a('s_lshl_b32 s%d, s%d, 8' % (sT0, sT0))
        a('s_add_u32 s%d, s%d, 0x%x' % (sT0, sT0, WS_STAMP))
        a('v_lshl_add_u32 v%d, v%d, 2, s%d' % (vT3, vLane, sT0))
        a('buffer_store_dword v%d, v%d, s[%d:%d], 0 offen' % (vT2, vT3, sWS, sWS + 3))

    def srd(d, p, size):
        a('s_mov_b32 s%d, s%d' % (d, p))
        a('s_mov_b32 s%d, s%d' % (d + 1, p + 1))
        a('s_mov_b32 s%d, 0x%x' % (d + 2, size))
        a('s_mov_b32 s%d, 0x20000' % (d + 3))

    def make_tag():
        c('tag = next value of a full-period generator: differs from the old word, also in its low byte')
        a('s_waitcnt lgkmcnt(0)')
        a('s_mul_i32 s%d, s%d, 0x19660d' % (sTag, sTag))
        a('s_add_u32 s%d, s%d, 0x3c6ef35f' % (sTag, sTag))

    def weight_voffsets(shift):
        c('16-byte chunk k of row r lands in slot k ^ (2*(r&3) + 8*((r>>3)&1)): conflict-free transposed reads')
        a('v_lshlrev_b32 v%d, 1, v%d' % (vW, vT1))
        a('v_xor_b32 v%d, v%d, v%d' % (vW, vW, vT0))
        a('v_lshlrev_b32 v%d, 4, v%d' % (vW, vW))
        a('v_lshl_add_u32 v%d, v%d, %d, v%d' % (vW, vT1, shift, vW))
        a('v_xor_b32 v%d, 128, v%d' % (vW1, vW))

    K1 = NAME + '_kernel'
    g.L += ['.amdgcn_target "amdgcn-amd-amdhsa--gfx950"', '.text', '.globl %s' % K1, '.p2align 8', '.type %s,@function' % K1]
    g.label(K1)
    a('s_cmp_ge_u32 s2, 256')
    a('s_cbranch_scc1 L_exit')
    if stamps:
        a('s_memrealtime s[98:99]')
    a('s_load_dwordx16 s[4:19], s[0:1], 0')
    a('s_load_dwordx8 s[20:27], s[0:1], 64')
    a('s_load_dwordx2 s[28:29], s[0:1], 96')
    a('v_lshrrev_b32 v%d, 6, v0' % vT0)
    a('v_and_b32 v%d, 63, v0' % vLane)
    a('v_readfirstlane_b32 s3, v%d' % vT0)
    c('h = (id & 7) + 8*(id >> 6), j = (id >> 3) & 7')
    a('s_lshr_b32 s%d, s2, 6' % sH)
    a('s_lshl_b32 s%d, s%d, 3' % (sH, sH))
    a('s_and_b32 s%d, s2, 7' % sT0)
    a('s_add_u32 s%d, s%d, s%d' % (sH, sH, sT0))
    a('s_bfe_u32 s%d, s2, 0x30003' % sJ)
    a('s_mov_b32 s%d, 0x%x' % (sH1, WS_EPOCH))
    a('v_and_b32 v%d, 15, v%d' % (vT0, vLane))
    a('v_lshrrev_b32 v%d, 4, v%d' % (vT1, vLane))
    a('v_lshlrev_b32 v%d, 4, v%d' % (vNat, vLane))
    a('s_cmp_eq_u32 s3, 4')
    a('s_waitcnt lgkmcnt(0)')
    a('s_load_dword s%d, s[28:29], s%d' % (sTag, sH1))
    srd(sWS, 28, (WS_STAMP + (1 << 20)) if stamps else WS_END)
    a('s_cbranch_scc1 L_comm')

    c('================ waves 0-3')
    srd(sWQ[0], 10, 1 << 23)
    srd(sX[0], 4, 16384)
    c('wq rows 128j + 32w .. + 31, columns of head h -> LDS [128 rows][256 B], four rows per instruction')
    weight_voffsets(13)
    a('s_lshl_b32 s%d, s%d, 20' % (sT0, sJ))
    a('s_lshl_b32 s%d, s%d, 8' % (sT1, sH))
    a('s_add_u32 s%d, s%d, s%d' % (sT0, sT0, sT1))
    a('s_lshl_b32 s%d, s3, 18' % sT1)
    a('s_add_u32 s%d, s%d, s%d' % (sWOff, sT0, sT1))
    a('s_lshl_b32 s%d, s3, 13' % sLdsW)
    c('x fragments: lane (n, g) holds x[n & 7][128j + 32kb + 8g ..]')
    vXa = vAcc
    a('v_and_b32 v%d, 7, v%d' % (vXa, vLane))
    a('v_lshlrev_b32 v%d, 11, v%d' % (vXa, vXa))
    a('v_lshl_add_u32 v%d, v%d, 4, v%d' % (vXa, vT1, vXa))
    a('s_lshl_b32 s%d, s%d, 8' % (sT1, sJ))
    srd(sX[1], 14, 16384)
    for mod in range(2):
        for kb in range(4):
            r = vXf[mod] + 4 * kb
            g.vm('w', 'buffer_load_dwordx4 v[%d:%d], v%d, s[%d:%d], s%d offen offset:%d' % (r, r + 3, vXa, sX[mod], sX[mod] + 3, sT1, 64 * kb))
    for mod in range(2):
        if mod:
            srd(sWQ[1], 20, 1 << 23)
        for i in range(8):
            a('s_add_u32 m0, s%d, %d' % (sLdsW, L_W + mod * 32768 + i * 1024))
            a('s_add_u32 s%d, s%d, %d' % (sT0, sWOff, i * 4 * 8192))
            g.vm('w', 'buffer_load_dwordx4 v%d, s[%d:%d], s%d offen nt lds' % (vW1 if i & 2 else vW, sWQ[mod], sWQ[mod] + 3, sT0))
    srd(sK[0], 6, 1 << 28)
    c('K/V of (batch j, head h): the four waves take tiles of %d KiB in turn' % T)
    a('s_lshl_b32 s%d, s%d, 5' % (sBase, sJ))
    a('s_add_u32 s%d, s%d, s%d' % (sBase, sBase, sH))
    a('s_lshl_b32 s%d, s%d, 20' % (sBase, sBase))
    a('s_mul_i32 s%d, s3, %d' % (sT0, T * 1024))
    a('s_add_u32 s%d, s%d, s%d' % (sBase, sBase, sT0))
    a('s_mov_b32 s%d, s%d' % (sOff, sBase))

    def ring_load(srd_, j):
        r = vRing + 4 * (j & 31)
        g.vm('R%d' % (j & 31), 'buffer_load_dwordx4 v[%d:%d], v%d, s[%d:%d], s%d offen offset:%d nt' % (r, r + 3, vNat, srd_, srd_ + 3, sOff, 1024 * (j & 3)))
        if j & 3 == 3:
            a('s_add_u32 s%d, s%d, %d' % (sOff, sOff, 4096 if (j + 1) % T else 3 * T * 1024 + 4096))

    for j in range(early):
        ring_load(sK[0], j)
    srd(sV[0], 8, 1 << 28)
    srd(sK[1], 16, 1 << 28)
    srd(sV[1], 18, 1 << 28)
    c('transposed-read address: (8g + r)*256 + ((4w + 2cb) ^ (2r + 8(g&1)))*16 + (l&3)*8,  r = (l>>2)&3')
    a('v_lshrrev_b32 v%d, 2, v%d' % (vTmp, vT0))
    a('v_and_b32 v%d, 1, v%d' % (vTr, vT1))
    a('v_lshl_add_u32 v%d, v%d, 2, v%d' % (vTr, vTr, vTmp))
    a('s_lshl_b32 s%d, s3, 1' % sT0)
    a('v_xor_b32 v%d, s%d, v%d' % (vTr, sT0, vTr))
    a('v_lshlrev_b32 v%d, 5, v%d' % (vTr, vTr))
    a('v_lshl_add_u32 v%d, v%d, 11, v%d' % (vTr, vT1, vTr))
    a('v_lshl_add_u32 v%d, v%d, 8, v%d' % (vTr, vTmp, vTr))
    a('v_and_b32 v%d, 3, v%d' % (vT3, vLane))
    a('v_lshl_add_u32 v%d, v%d, 3, v%d' % (vTr, vT3, vTr))
    a('v_xor_b32 v%d, 32, v%d' % (vTr1, vTr))
    a('v_add_u32 v%d, %d, v%d' % (vTr, L_W, vTr))
    a('v_add_u32 v%d, %d, v%d' % (vTr1, L_W, vTr1))
    a('s_mov_b32 s%d, 0x%08x' % (sC, f32bits(CSCALE)))
    for reg, val in ((sB1, 0xcccccccc), (sB0, 0xaaaaaaaa), (sN8, 0xff00ff00)):
        a('s_mov_b32 s%d, 0x%08x' % (reg, val))
        a('s_mov_b32 s%d, 0x%08x' % (reg + 1, val))
    c('masks that put p on the diagonal of the A operand')
    a('v_mov_b32 v%d, 0xffff' % vNeg)
    a('v_mov_b32 v%d, 0xffff0000' % vTmp)
    a('v_cndmask_b32 v%d, v%d, v%d, s[%d:%d]' % (vNeg, vNeg, vTmp, sB0, sB0 + 1))
    a('v_bfe_u32 v%d, v%d, 1, 2' % (vTmp, vLane))
    for rr in range(4):
        a('v_cmp_eq_u32 vcc, %d, v%d' % (rr, vTmp))
        a('s_nop 1')
        a('v_cndmask_b32 v%d, 0, v%d, vcc' % (vMask + rr, vNeg))
    c('staging address of the q partials: (n&7)*1040 + w*128 + (n>>3)*64 + g*16')
    a('v_and_b32 v%d, 7, v%d' % (vTmp, vLane))
    a('v_mul_u32_u24 v%d, 1040, v%d' % (vH1, vTmp))
    a('v_bfe_u32 v%d, v%d, 3, 1' % (vTmp, vLane))
    a('v_lshl_add_u32 v%d, v%d, 6, v%d' % (vH1, vTmp, vH1))
    a('v_lshl_add_u32 v%d, v%d, 4, v%d' % (vH1, vT1, vH1))
    a('s_lshl_b32 s%d, s3, 7' % sT0)
    a('v_add_u32 v%d, s%d, v%d' % (vH1, sT0, vH1))

    def tr_reads(dst, mod):
        for cb in range(2):
            for kb in range(4):
                for hh in range(2):
                    r = dst + (cb * 4 + kb) * 4 + 2 * hh
                    a('ds_read_b64_tr_b16 v[%d:%d], v%d offset:%d' % (r, r + 1, vTr1 if cb else vTr, mod * 32768 + kb * 8192 + hh * 1024))

    def proj_mfma(d, wf, xf):
        for kb in range(4):
            for cb in range(2):
                w = wf + (cb * 4 + kb) * 4
                dd = d + 4 * cb
                a('v_mfma_f32_16x16x32_bf16 v[%d:%d], v[%d:%d], v[%d:%d], %s' % (dd, dd + 3, w, w + 3, xf + 4 * kb, xf + 4 * kb + 3, '0' if kb == 0 else 'v[%d:%d]' % (dd, dd + 3)))

    def select_tag(dst, d):
        for r in range(4):
            a('v_cndmask_b32 v%d, v%d, v%d, s[%d:%d]' % (dst + r, d + r, d + 4 + r, sN8, sN8 + 1))
        for r in range(4):
            a('v_bfi_b32 v%d, v%d, v%d, v%d' % (dst + r, vTmp, vNeg, dst + r))

    a('v_mov_b32 v%d, 0xff' % vTmp)
    a('v_mov_b32 v%d, 0' % vCtl)
    a('v_mov_b32 v%d, 1' % vOne)
    a('s_mov_b32 s%d, 0' % sU)
    if wg:
        a('s_mov_b32 s%d, -4' % sRk)
    c('wave 0 shares its SIMD with wave 4 and would fall behind while that one works: a head start')
    assert early % 4 == 0 and 0 < x0 <= 4 and early + x0 <= 24
    a('s_cmp_lg_u32 s3, 0')
    a('s_cbranch_scc1 L_x0a')
    q0 = list(g.q)
    for j in range(early, early + x0):
        ring_load(sK[0], j)
    g.wait_tag('w')
    a('s_branch L_x0b')
    g.label('L_x0a')
    g.q = q0
    g.wait_tag('w')
    g.label('L_x0b')
    a('s_barrier')
    c('B0: all rows of wq_A and wq_B have landed')
    stamp('B0')
    for mod in range(2):
        tr_reads(vWf[mod], mod)
    for mod in range(2):
        a('s_waitcnt lgkmcnt(%d)' % (15 if mod == 0 else 0))
        proj_mfma(vQD[mod], vWf[mod], vXf[mod])
    make_tag()
    a('v_mov_b32 v%d, s%d' % (vNeg, sTag))
    for mod in range(2):
        a('s_nop 0')
        select_tag(vA[mod], vQD[mod])
        a('ds_write_b128 v%d, v[%d:%d] offset:%d' % (vH1, vA[mod], vA[mod] + 3, L_STG + mod * 512))
    a('s_waitcnt lgkmcnt(0)')
    a('s_barrier')
    c('B0b: wave 4 sends the partials out; fill the ring with K meanwhile')
    stamp('stg')
    a('s_cmp_eq_u32 s3, 0')
    a('s_cbranch_scc1 L_x0c')
    for j in range(early, 32):
        w_ = win1 if j < early + n1 else win
        if j == early + x0:
            g.label('L_x0c')
            a('s_waitcnt vmcnt(%d)' % (w_ - 1))
            g.q = g.q[-(w_ - 1):]
        else:
            g.limit(w_ - 1)
        ring_load(sK[0], j)
    stamp('ring')
    a('s_barrier')
    c('B1: q is in LDS')
    if sprio:
        a('s_setprio %d' % sprio)
    stamp('B1')

    def pos(tau, r):
        return 8 * (r & 1) + 4 * (r >> 1) + 2 * (tau & 1) + (tau >> 1)

    def rotate():
        for i in range(14):
            a('v_mov_b32 v%d, v%d' % (vZ + i, vZ + i + 2))

    def k_group(refill):
        rotate()
        p, cc = vPa, vCc
        for i in range(32):
            k, r = divmod(i, 4)
            g.wait_tag('R%d' % i)
            for e in range(4):
                a('v_dot2_f32_bf16 v%d, v%d, v%d, %s' % (p + r, vRing + 4 * i + e, vQn + e, '0' if e == 0 else 'v%d' % (p + r)))
            refill(i)
            if r == 3:
                a('v_add_f32_dpp v%d, v%d, v%d row_mirror %s' % (p, p, p, DPPF % 3))
                a('v_add_f32_dpp v%d, v%d, v%d row_mirror %s' % (p, p + 1, p + 1, DPPF % 12))
                a('v_add_f32_dpp v%d, v%d, v%d row_mirror %s' % (p + 2, p + 2, p + 2, DPPF % 3))
                a('v_add_f32_dpp v%d, v%d, v%d row_mirror %s' % (p + 2, p + 3, p + 3, DPPF % 12))
                a('s_nop 0')
                a('v_add_f32_dpp v%d, v%d, v%d row_half_mirror %s' % (cc + (k & 3), p, p, DPPF % 5))
                a('v_add_f32_dpp v%d, v%d, v%d row_half_mirror %s' % (cc + (k & 3), p + 2, p + 2, DPPF % 10))
            if i & 15 == 15:
                for t in range(4):
                    a('v_add_f32_dpp v%d, v%d, v%d quad_perm:[2,3,0,1] %s' % (cc + t, cc + t, cc + t, DPPF % 15))
                a('v_cndmask_b32 v%d, v%d, v%d, s[%d:%d]' % (cc, cc, cc + 1, sB1, sB1 + 1))
                a('v_cndmask_b32 v%d, v%d, v%d, s[%d:%d]' % (cc + 2, cc + 2, cc + 3, sB1, sB1 + 1))
                a('s_nop 0')
                a('v_add_f32_dpp v%d, v%d, v%d quad_perm:[1,0,3,2] %s' % (cc, cc, cc, DPPF % 15))
                a('v_add_f32_dpp v%d, v%d, v%d quad_perm:[1,0,3,2] %s' % (cc + 2, cc + 2, cc + 2, DPPF % 15))
                a('v_cndmask_b32 v%d, v%d, v%d, s[%d:%d]' % (vZ + 14 + (i >> 4), cc, cc + 2, sB0, sB0 + 1))

    def v_group(refill):
        def build(i):
            for rr in range(4):
                a('v_and_b32_dpp v%d, v%d, v%d row_newbcast:%d %s' % (vA[i & 1] + rr, vZ + (i >> 4), vMask + rr, pos((i >> 2) & 3, i & 3), DPPF % 15))
        build(0)
        for i in range(32):
            if i < 31:
                build(i + 1)
            else:
                a('s_nop 1')
            g.wait_tag('R%d' % i)
            b = vRing + 4 * i
            a('v_mfma_f32_16x16x32_bf16 v[%d:%d], v[%d:%d], v[%d:%d], v[%d:%d]' % (vAcc, vAcc + 3, vA[i & 1], vA[i & 1] + 3, b, b + 3, vAcc, vAcc + 3))
            refill(i)
        rotate()

    uid = [0]

    def signal(word, rtn=False):
        a('s_mov_b64 exec, 1')
        if rtn:
            a('ds_add_rtn_u32 v%d, v%d, v%d offset:%d' % (vRk, vCtl, vOne, L_CTL + 4 * word))
        else:
            a('ds_add_u32 v%d, v%d offset:%d' % (vCtl, vOne, L_CTL + 4 * word))
        a('s_mov_b64 exec, -1')

    def paced(srd_, i, j):
        r = int('{:04b}'.format(i >> 1)[::-1], 2)
        if i % 2 == 0 and len(g.q) >= W - 1 and r < uflex:
            uid[0] += 1
            g.limit(W)
            a('s_cmp_gt_i32 s%d, %d' % (sU, r))
            a('s_cbranch_scc1 L_u%d' % uid[0])
            a('s_waitcnt vmcnt(%d)' % (W - 1))
            a('s_cmp_ge_i32 s%d, %d' % (sU, -r))
            a('s_cbranch_scc1 L_u%d' % uid[0])
            a('s_waitcnt vmcnt(%d)' % (W - 2))
            g.label('L_u%d' % uid[0])
        else:
            g.limit(W - 1)
        ring_load(srd_, j)

    def group(body, refill, upto=32):
        def take():
            a('s_waitcnt lgkmcnt(0)')
            a('v_readfirstlane_b32 s%d, v%d' % (sU, vU))
            if wg:
                a('v_readfirstlane_b32 s%d, v%d' % (sT0, vRk))
                a('s_add_u32 s%d, s%d, 4' % (sRk, sRk))
                a('s_nop 0')
                a('s_sub_i32 s%d, s%d, s%d' % (sT0, sT0, sRk))
                a('s_mul_i32 s%d, s%d, %d' % (sT0, sT0, 2 * wg))
                a('s_add_i32 s%d, s%d, %d' % (sT0, sT0, 2 - 3 * wg))
                a('s_ashr_i32 s%d, s%d, 2' % (sT0, sT0))
                a('s_add_i32 s%d, s%d, s%d' % (sU, sU, sT0))

        def rf(i):
            refill(i)
            for sa, sr, sx in chk:
                if sx < upto:
                    if i == sa:
                        signal(0, wg)
                    if i == sr:
                        a('ds_read_b32 v%d, v%d offset:%d' % (vU, vCtl, L_CTL + 4))
                    if i == sx and sx < 31:
                        take()
        body(rf)
        if chk[-1][2] == 31 and upto == 32:
            take()

    def phase(name, body, srd_, srd_next, trips):
        g.limit(W)
        steady = ['R%d' % j for j in range(D - W, D)]
        assert g.q == steady[len(steady) - len(g.q):]
        g.q = list(steady)
        a('s_mov_b32 s%d, %d' % (sCnt, trips))
        g.label(name)
        group(body, lambda i: paced(srd_, i, i + D))
        assert g.q == steady
        a('s_sub_u32 s%d, s%d, 1' % (sCnt, sCnt))
        a('s_cmp_lg_u32 s%d, 0' % sCnt)
        a('s_cbranch_scc1 %s' % name)

        def last(i):
            if i + D < 32:
                paced(srd_, i, i + D)
            elif srd_next is not None:
                if i + D == 32:
                    a('s_mov_b32 s%d, s%d' % (sOff, sBase))
                paced(srd_next, i, i + D)
            if srd_next is None and i == b2at:
                signal(3)
        c('last group of the phase: the look-ahead crosses into the next buffer')
        group(body, last, 32 if srd_next is not None else (24 if lastchk else 0))

    def wave_reduce(op, v):
        for ctl in ('row_mirror', 'row_half_mirror', 'quad_perm:[2,3,0,1]', 'quad_perm:[1,0,3,2]'):
            a('s_nop 1')
            a('%s_dpp v%d, v%d, v%d %s %s' % (op, v, v, v, ctl, DPPF % 15))
        a('s_nop 1')
        a('%s_dpp v%d, v%d, v%d row_bcast:15 row_mask:0xa bank_mask:0xf' % (op, v, v, v))
        a('s_nop 1')
        a('%s_dpp v%d, v%d, v%d row_bcast:31 row_mask:0xc bank_mask:0xf' % (op, v, v, v))
        a('s_nop 0')

    def softmax():
        c('softmax of this wave\'s 1024 scores: m = max, p = 2^(c*s - c*m), l = sum p')
        a('v_max3_f32 v%d, v%d, v%d, v%d' % (vTmp, vZ, vZ + 1, vZ + 2))
        for i in range(3, 15, 2):
            a('v_max3_f32 v%d, v%d, v%d, v%d' % (vTmp, vTmp, vZ + i, vZ + i + 1))
        a('v_max_f32 v%d, v%d, v%d' % (vTmp, vTmp, vZ + 15))
        wave_reduce('v_max_f32', vTmp)
        a('v_readlane_b32 s%d, v%d, 63' % (sMt, vTmp))
        a('v_mov_b32 v%d, s%d' % (vNeg, sC))
        a('s_nop 0')
        a('v_mul_f32 v%d, s%d, v%d' % (vNeg, sMt, vNeg))
        for i in range(16):
            a('v_fma_f32 v%d, v%d, s%d, -v%d' % (vZ + i, vZ + i, sC, vNeg))
        for i in range(16):
            a('v_exp_f32 v%d, v%d' % (vZ + i, vZ + i))
        for r in range(4):
            a('v_mov_b32 v%d, 0' % (vAcc + r))
        a('v_add_f32 v%d, v%d, v%d' % (vS, vZ, vZ + 1))
        for i in range(2, 16):
            a('v_add_f32 v%d, v%d, v%d' % (vS, vS, vZ + i))
        for i in range(16):
            a('v_cvt_pk_bf16_f32 v%d, v%d, v%d' % (vZ + i, vZ + i, vZ + i))
        wave_reduce('v_add_f32', vS)
        a('v_readlane_b32 s%d, v%d, 63' % (sL, vS))
        a('v_lshlrev_b32 v%d, 5, v%d' % (vT2, vT0))
        a('v_lshl_add_u32 v%d, v%d, 4, v%d' % (vT2, vT1, vT2))
        a('s_lshl_b32 s%d, s3, 9' % sT0)
        a('v_add_u32 v%d, s%d, v%d' % (vT2, sT0, vT2))
        a('s_lshl_b32 s%d, s3, 3' % sT0)
        a('v_mov_b32 v%d, s%d' % (vT3, sT0))
        a('v_mov_b32 v%d, s%d' % (vPa, sMt))
        a('v_mov_b32 v%d, s%d' % (vPa + 1, sL))

    for mod in range(2):
        c('---------------- K pass, module %s' % 'AB'[mod])
        a('v_lshlrev_b32 v%d, 4, v%d' % (vNeg, vT0))
        a('ds_read_b128 v[%d:%d], v%d offset:%d' % (vQn, vQn + 3, vNeg, L_Q + 256 * mod))
        a('s_waitcnt lgkmcnt(0)')
        if mod == 0:
            c('the ring was filled 32 deep while q was on its way: the look-ahead shrinks to %d over this group' % D)
            nxt = [32]

            def shrink(i):
                while nxt[0] < 32 + (i + 1) * D // 32:
                    paced(sK[0], i, nxt[0])
                    nxt[0] += 1
            group(k_group, shrink)
        phase('L_k%d' % mod, k_group, sK[mod], sV[mod], 6 if mod == 0 else 7)
        stamp('K%d' % mod)
        softmax()
        c('---------------- V pass, module %s' % 'AB'[mod])
        phase('L_v%d' % mod, v_group, sV[mod], sK[1] if mod == 0 else None, 7)
        stamp('V%d' % mod)
        c('leave (acc, m, l) in LDS')
        a('s_mov_b32 exec_hi, 0')
        a('ds_write_b128 v%d, v[%d:%d] offset:%d' % (vT2, vAcc, vAcc + 3, L_ACC + 2048 * mod))
        a('s_mov_b32 exec_lo, 1')
        a('ds_write_b64 v%d, v[%d:%d] offset:%d' % (vT3, vPa, vPa + 1, L_ML + 32 * mod))
        a('s_mov_b64 exec, -1')
    c('---------------- combine the four waves: thread t -> module t>>7, d = t&127')
    a('v_lshrrev_b32 v%d, 7, v0' % vT2)
    a('v_lshlrev_b32 v%d, 5, v%d' % (vT3, vT2))
    a('v_lshlrev_b32 v%d, 11, v%d' % (vT2, vT2))
    a('v_and_b32 v%d, 127, v0' % vNeg)
    a('v_lshl_add_u32 v%d, v%d, 2, v%d' % (vT2, vNeg, vT2))
    a('s_lshl_b32 s%d, s%d, 3' % (sT0, sH))
    a('s_add_u32 s%d, s%d, s%d' % (sT0, sT0, sJ))
    a('s_lshl_b32 s%d, s%d, 10' % (sT0, sT0))
    a('s_add_u32 s%d, s%d, 0x%x' % (sCnt, sT0, WS_H2))
    a('s_waitcnt lgkmcnt(0)')
    c('waves 0-3 meet on an LDS counter (wave 4 is busy)')
    signal(2)
    g.label('L_meet')
    a('ds_read_b32 v%d, v%d offset:%d' % (vU, vCtl, L_CTL + 8))
    a('s_waitcnt lgkmcnt(0)')
    a('v_cmp_gt_u32 vcc, 4, v%d' % vU)
    a('s_cbranch_vccnz L_meet')
    R = vS
    a('ds_read_b128 v[%d:%d], v%d offset:%d' % (R, R + 3, vT3, L_ML))
    a('ds_read_b128 v[%d:%d], v%d offset:%d' % (R + 4, R + 7, vT3, L_ML + 16))
    for w in range(4):
        a('ds_read_b32 v%d, v%d offset:%d' % (vA[0] + w, vT2, L_ACC + 512 * w))
    a('s_waitcnt lgkmcnt(4)')
    a('v_max3_f32 v%d, v%d, v%d, v%d' % (vT2, R, R + 2, R + 4))
    a('v_max_f32 v%d, v%d, v%d' % (vT2, vT2, R + 6))
    a('v_mul_f32 v%d, s%d, v%d' % (vNeg, sC, vT2))
    for w in range(4):
        a('v_fma_f32 v%d, v%d, s%d, -v%d' % (R + 2 * w, R + 2 * w, sC, vNeg))
    for w in range(4):
        a('v_exp_f32 v%d, v%d' % (R + 2 * w, R + 2 * w))
    a('s_nop 0')
    a('v_mul_f32 v%d, v%d, v%d' % (vT2, R, R + 1))
    for w in range(1, 4):
        a('v_fma_f32 v%d, v%d, v%d, v%d' % (vT2, R + 2 * w, R + 2 * w + 1, vT2))
    a('v_rcp_f32 v%d, v%d' % (vT2, vT2))
    a('s_waitcnt lgkmcnt(0)')
    a('v_mul_f32 v%d, v%d, v%d' % (vT3, R, vA[0]))
    for w in range(1, 4):
        a('v_fma_f32 v%d, v%d, v%d, v%d' % (vT3, R + 2 * w, vA[0] + w, vT3))
    a('v_mul_f32 v%d, v%d, v%d' % (vT3, vT3, vT2))
    c('H2: publish o as {two bf16, tag}')
    a('v_mov_b32 v%d, s%d' % (vA[1] + 1, sTag))
    a('v_lshlrev_b32 v%d, 2, v0' % vNeg)
    a('v_mov_b32_dpp v%d, v%d quad_perm:[1,0,3,2] %s' % (vT2, vT3, DPPF % 15))
    a('v_cvt_pk_bf16_f32 v%d, v%d, v%d' % (vA[1], vT3, vT2))
    a('s_mov_b32 exec_lo, 0x55555555')
    a('s_mov_b32 exec_hi, 0x55555555')
    a('buffer_store_dwordx2 v[%d:%d], v%d, s[%d:%d], s%d offen sc1' % (vA[1], vA[1] + 1, vNeg, sWS, sWS + 3, sCnt))
    a('s_mov_b64 exec, -1')
    stamp('pubo')
    vWO, vOf, vD = vRing, vRing + 64, vRing + 96
    c('o fragment address: (n&7)*272 + g*16')
    a('v_and_b32 v%d, 7, v%d' % (vT2, vLane))
    a('v_mul_u32_u24 v%d, 272, v%d' % (vT3, vT2))
    a('v_lshl_add_u32 v%d, v%d, 4, v%d' % (vT3, vT1, vT3))
    a('v_bfe_u32 v%d, v%d, 3, 1' % (vNeg, vLane))
    c('H3 address: (j*32 + h)*8192 + mod*4096 + b*512 + w*128 + (n>>3)*64 + g*16')
    a('v_lshlrev_b32 v%d, 9, v%d' % (vT2, vT2))
    a('s_lshl_b32 s%d, s%d, 5' % (sT0, sJ))
    a('s_add_u32 s%d, s%d, s%d' % (sT0, sT0, sH))
    a('s_lshl_b32 s%d, s%d, 13' % (sT0, sT0))
    a('s_lshl_b32 s%d, s3, 7' % sT1)
    a('s_add_u32 s%d, s%d, s%d' % (sT0, sT0, sT1))
    a('s_add_u32 s%d, s%d, 4096' % (sT1, sT0))
    a('v_lshl_add_u32 v%d, v%d, 6, v%d' % (vT2, vNeg, vT2))
    a('v_lshl_add_u32 v%d, v%d, 4, v%d' % (vT2, vT1, vT2))
    a('v_mov_b32 v%d, 0xff' % vTmp)
    a('v_mov_b32 v%d, s%d' % (vNeg, sTag))
    if og:
        c('H2: wave w gathers o of batches 2w and 2w+1 -> LDS (l>>5)*8*272 + (l&31)*8 + b*272')
        vP2, vB2, vL2 = vZ, vZ + 8, vZ + 9
        a('s_lshl_b32 s%d, s%d, 13' % (sOff, sH))
        a('s_lshl_b32 s%d, s3, 11' % sMt)
        a('s_add_u32 s%d, s%d, s%d' % (sOff, sOff, sMt))
        a('s_add_u32 s%d, s%d, 0x%x' % (sOff, sOff, WS_H2))
        a('v_lshrrev_b32 v%d, 5, v%d' % (vL2, vLane))
        a('v_mul_u32_u24 v%d, %d, v%d' % (vL2, 8 * 272, vL2))
        a('v_and_b32 v%d, 31, v%d' % (vB2, vLane))
        a('v_lshl_add_u32 v%d, v%d, 3, v%d' % (vL2, vB2, vL2))
        a('s_mul_i32 s%d, s3, %d' % (sMt, 2 * 272))
        a('s_add_u32 s%d, s%d, %d' % (sMt, sMt, L_O))
        a('v_add_u32 v%d, s%d, v%d' % (vL2, sMt, vL2))
        a('s_mov_b32 s%d, 0x%x' % (sCnt, tmo))
        g.label('L_po')
        for p in range(2):
            a('buffer_load_dwordx4 v[%d:%d], v%d, s[%d:%d], s%d offen offset:%d sc1' % (vP2 + 4 * p, vP2 + 4 * p + 3, vNat, sWS, sWS + 3, sOff, 1024 * p))
        a('s_waitcnt vmcnt(1)')
        a('v_xor_b32 v%d, s%d, v%d' % (vP2 + 1, sTag, vP2 + 1))
        a('v_xor_b32 v%d, s%d, v%d' % (vP2 + 3, sTag, vP2 + 3))
        a('s_waitcnt vmcnt(0)')
        a('v_xor_b32 v%d, s%d, v%d' % (vP2 + 5, sTag, vP2 + 5))
        a('v_xor_b32 v%d, s%d, v%d' % (vP2 + 7, sTag, vP2 + 7))
        a('v_or3_b32 v%d, v%d, v%d, v%d' % (vB2, vP2 + 1, vP2 + 3, vP2 + 5))
        a('v_or_b32 v%d, v%d, v%d' % (vB2, vB2, vP2 + 7))
        a('v_cmp_ne_u32 vcc, 0, v%d' % vB2)
        a('s_cbranch_vccz L_po_ok')
        a('s_sleep %d' % sleep)
        a('s_sub_u32 s%d, s%d, 1' % (sCnt, sCnt))
        a('s_cmp_lg_u32 s%d, 0' % sCnt)
        a('s_cbranch_scc1 L_po')
        g.label('L_po_ok')
        for p in range(2):
            a('ds_write2_b32 v%d, v%d, v%d offset0:%d offset1:%d' % (vL2, vP2 + 4 * p, vP2 + 4 * p + 2, 68 * p, 68 * p + 1))
        a('s_waitcnt lgkmcnt(0)')
        a('s_barrier')
        c('B4: wo and o of the 8 batches are in LDS')
    else:
        a('s_barrier')
        c('B3: wo is in LDS')
        for mod in range(2):
            tr_reads(vWO + 32 * mod, mod)
        a('s_barrier')
        c('B4: o of the 8 batches is in LDS')
    stamp('B4')
    for mod in range(2):
        for kb in range(4):
            r = vOf + 16 * mod + 4 * kb
            a('ds_read_b128 v[%d:%d], v%d offset:%d' % (r, r + 3, vT3, L_O + mod * 8 * 272 + kb * 64))
        if og:
            tr_reads(vWO + 32 * mod, mod)
    for mod in range(2):
        a('s_waitcnt lgkmcnt(%d)' % ((15 if og else 4) if mod == 0 else 0))
        proj_mfma(vD + 8 * mod, vWO + 32 * mod, vOf + 16 * mod)
    for mod in range(2):
        a('s_nop 0')
        select_tag(vD + 8 * mod, vD + 8 * mod)
        a('buffer_store_dwordx4 v[%d:%d], v%d, s[%d:%d], s%d offen sc1' % (vD + 8 * mod, vD + 8 * mod + 3, vT2, sWS, sWS + 3, (sT0, sT1)[mod]))
    if f5:
        a('s_waitcnt vmcnt(0)')
        signal(1)
    elif b5:
        a('s_waitcnt vmcnt(0)')
        a('s_barrier')
        c('B5: wave 4 starts to look for the other heads only now (lines it has read cost their writers a probe)')
    if stamps:
        a('s_waitcnt vmcnt(0)')
        stamp('end')
        write_stamps(nst[0])
    nst_stream = nst[0]
    a('s_endpgm')

    g.label('L_comm')
    c('================ wave 4')
    nst[0] = 0
    names.append('|')
    vG = 16
    vBad, vWa, vWx = 80, 82, 83
    a('s_setprio 3')
    if touch:
        c('one scalar load per page that comes up later: the address translations are fetched ahead of the stream')
        a('s_lshl_b32 s%d, s%d, 5' % (sT0, sJ))
        a('s_add_u32 s%d, s%d, s%d' % (sT0, sT0, sH))
        a('s_lshl_b32 s%d, s%d, 20' % (sT0, sT0))
        a('s_lshl_b32 s%d, s%d, 20' % (sT1, sJ))
        a('s_lshl_b32 s%d, s%d, 18' % (sL, sH))
        a('s_mov_b32 s%d, 0x%x' % (sMt, WS_H1))
        tl = []
        if touch & 1:
            tl += [(6, sT0), (20, sT1), (28, sMt)]
        if touch & 2:
            tl += [(8, sT0), (16, sT0), (18, sT0), (12, sL), (22, sL), (28, None), (24, None)]
        for n, (p, so) in enumerate(tl):
            a('s_load_dword s%d, s[%d:%d], %s' % (44 + n, p, p + 1, 's%d' % so if so else '0'))
    srd(sWO[0], 12, 1 << 23)
    srd(sWO[1], 22, 1 << 23)
    srd(sOut, 24, 32768)
    a('s_mov_b32 s%d, s%d' % (sBase, sH1))
    a('v_add_u32 v%d, 4096, v%d' % (vHi, vNat))
    a('s_lshl_b32 s%d, s%d, 16' % (sT0, sH))
    a('s_add_u32 s%d, s%d, 0x%x' % (sT0, sT0, WS_H1))
    a('s_lshl_b32 s%d, s%d, 13' % (sT1, sJ))
    a('s_add_u32 s%d, s%d, s%d' % (sOff, sT0, sT1))
    a('s_lshl_b32 s%d, s%d, 10' % (sT1, sJ))
    a('s_add_u32 s%d, s%d, s%d' % (sH1, sT0, sT1))
    a('v_lshlrev_b32 v%d, 3, v%d' % (vT3, vLane))
    npoll = [0]

    def one_round(bytetag, stride):
        for p in range(8):
            if stride:
                a('s_add_u32 s%d, s%d, %d' % (sMt, sOff, p * stride))
                a('buffer_load_dwordx4 v[%d:%d], v%d, s[%d:%d], s%d offen sc1' % (vG + 4 * p, vG + 4 * p + 3, vHi, sWS, sWS + 3, sMt))
            else:
                a('buffer_load_dwordx4 v[%d:%d], v%d, s[%d:%d], s%d offen offset:%d sc1' % (vG + 4 * p, vG + 4 * p + 3, vHi if p & 4 else vNat, sWS, sWS + 3, sOff, 1024 * (p & 3)))
        a('v_mov_b32 v%d, 0' % vBad)
        for p in range(8):
            a('s_waitcnt vmcnt(%d)' % (7 - p))
            es = (0, 1, 2, 3) if bytetag else (1, 3)
            for e in es:
                a('v_xor_b32 v%d, s%d, v%d' % (vG + 4 * p + e, sT8 if bytetag else sTag, vG + 4 * p + e))
            for i in range(0, len(es), 2):
                a('v_or3_b32 v%d, v%d, v%d, v%d' % (vBad, vBad, vG + 4 * p + es[i], vG + 4 * p + es[i + 1]))
        if bytetag:
            a('v_and_b32 v%d, 0xff, v%d' % (vBad, vBad))
        a('v_cmp_ne_u32 vcc, 0, v%d' % vBad)

    def poll(name, bytetag, slp, stride=0):
        a('s_mov_b32 s%d, 0x%x' % (sCnt, tmo))
        g.label(name)
        one_round(bytetag, stride)
        a('s_cbranch_vccz %s_ok' % name)
        a('s_sleep %d' % slp)
        a('s_sub_u32 s%d, s%d, 1' % (sCnt, sCnt))
        a('s_cmp_lg_u32 s%d, 0' % sCnt)
        a('s_cbranch_scc1 %s' % name)
        g.label(name + '_ok')
        if stamps:
            a('s_sub_u32 s%d, 0x%x, s%d' % (20 + 2 * npoll[0], tmo, sCnt))
            npoll[0] += 1

    def sum8():
        b = vG
        for e in range(4):
            for p in range(0, 8, 2):
                a('v_add_f32 v%d, v%d, v%d' % (b + 4 * p + e, b + 4 * p + e, b + 4 * p + 4 + e))
            a('v_add_f32 v%d, v%d, v%d' % (b + e, b + e, b + 8 + e))
            a('v_add_f32 v%d, v%d, v%d' % (b + 16 + e, b + 16 + e, b + 24 + e))
            a('v_add_f32 v%d, v%d, v%d' % (b + e, b + e, b + 16 + e))

    def post(value_sgpr, soff, pol=''):
        a('v_mov_b32 v%d, s%d' % (vG + 1, value_sgpr))
        a('s_mov_b64 exec, 1')
        a(('buffer_store_dword v%d, v%d, s[%d:%d], s%d offen %s' % (vG + 1, vCtl, sWS, sWS + 3, soff, pol)).rstrip())

    a('v_mov_b32 v%d, 0' % vCtl)
    for r in range(4):
        a('v_mov_b32 v%d, 0' % (vG + r))
    a('ds_write_b128 v%d, v[%d:%d] offset:%d' % (vCtl, vG, vG + 3, L_CTL))
    a('s_barrier')
    make_tag()
    a('s_and_b32 s%d, s%d, 0xff' % (sT8, sTag))
    a('s_barrier')
    c('H1: send the partial sums for the 8 batches, gather the 8 partial sums for batch j')
    for p in range(8):
        a('ds_read_b128 v[%d:%d], v%d offset:%d' % (vG + 4 * p, vG + 4 * p + 3, vNat, L_STG + 1040 * p))
    for p in range(8):
        a('s_waitcnt lgkmcnt(%d)' % (7 - p))
        a('buffer_store_dwordx4 v[%d:%d], v%d, s[%d:%d], s%d offen sc1' % (vG + 4 * p, vG + 4 * p + 3, vNat, sWS, sWS + 3, sH1))
        a('s_add_u32 s%d, s%d, 8192' % (sH1, sH1))
    a('s_waitcnt vmcnt(0)')
    stamp('st')
    poll('L_pq', True, sleep)
    sum8()
    a('v_cvt_pk_bf16_f32 v%d, v%d, v%d' % (vG, vG, vG + 1))
    a('v_cvt_pk_bf16_f32 v%d, v%d, v%d' % (vG + 1, vG + 2, vG + 3))
    a('ds_write_b64 v%d, v[%d:%d] offset:%d' % (vT3, vG, vG + 1, L_Q))
    a('s_waitcnt lgkmcnt(0)')
    stamp('q')
    a('s_barrier')
    c('B1 passed.  wo rows 128h .. + 127, columns 128j .. + 127 will go where wq was')
    weight_voffsets(11)
    a('s_lshl_b32 s%d, s%d, 18' % (sT0, sH))
    a('s_lshl_b32 s%d, s%d, 8' % (sT1, sJ))
    a('s_add_u32 s%d, s%d, s%d' % (sWOff, sT0, sT1))
    a('s_lshl_b32 s%d, s%d, 13' % (sT0, sH))
    a('s_add_u32 s%d, s%d, 0x%x' % (sOff, sT0, WS_H2))
    c('LDS address of the gathered o: (l>>5)*8*272 + (l&31)*8')
    a('v_lshrrev_b32 v%d, 5, v%d' % (vT2, vLane))
    a('v_mul_u32_u24 v%d, %d, v%d' % (vT2, 8 * 272, vT2))
    a('v_and_b32 v%d, 31, v%d' % (vT3, vLane))
    a('v_lshl_add_u32 v%d, v%d, 3, v%d' % (vT2, vT3, vT2))
    a('v_add_u32 v%d, %d, v%d' % (vT2, L_O, vT2))
    a('v_add_u32 v%d, %d, v%d' % (vT3, 4 * 272, vT2))
    a('s_mov_b32 s%d, %d' % (sLdsW, L_W))
    c('Progress words (speed only): one per CU in a block per die, stored plainly and read through that die\'s L2.')
    c('The share of neighbours that are ahead trims the loads in flight' + ('; odd dies run a little faster by nature.' if lpar[0] != lpar[1] else '.'))
    a('s_getreg_b32 s%d, hwreg(HW_REG_XCC_ID)' % sT0)
    a('s_and_b32 s%d, s%d, 15' % (sT0, sT0))
    if lpar[0] != lpar[1]:
        a('s_bitcmp1_b32 s%d, 0' % sT0)
        a('s_cselect_b32 s%d, %d, %d' % (sC, 8 + lpar[1], 8 + lpar[0]))
    else:
        a('s_mov_b32 s%d, %d' % (sC, 8 + lpar[0]))
    a('s_mul_i32 s%d, s%d, 4352' % (sT0, sT0))
    a('s_add_u32 s%d, s%d, 0x%x' % (sLine, sT0, WS_CTL))
    a('s_getreg_b32 s%d, hwreg(HW_REG_HW_ID, 13, 2)' % sT1)
    a('s_getreg_b32 s%d, hwreg(HW_REG_HW_ID, 8, 4)' % sT0)
    a('s_lshl_b32 s%d, s%d, 6' % (sT1, sT1))
    a('s_lshl_b32 s%d, s%d, 2' % (sT0, sT0))
    a('s_add_u32 s%d, s%d, s%d' % (sT1, sT1, sT0))
    a('s_add_u32 s%d, s%d, s%d' % (sOwn, sLine, sT1))
    a('v_lshlrev_b32 v%d, 2, v%d' % (vWa, vLane))
    c('Every %d groups one workgroup per die compares with the other dies; slot 63 passes the result on.' % xp)
    a('v_mul_u32_u24 v%d, 4352, v%d' % (vWx, vLane))
    a('s_add_u32 s%d, s%d, 0x10000' % (sXo, sLine))
    a('s_mov_b32 s%d, 0x%x' % (sXa, WS_CTL + 0x10000))
    a('s_add_u32 s%d, s%d, 252' % (sXb, sLine))
    a('s_lshr_b32 s%d, s2, 3' % sXr)
    a('s_and_b32 s%d, s%d, %d' % (sT0, sXr, xp - 1))
    a('s_cmp_eq_u32 s%d, 0' % sT0)
    a('s_cselect_b32 s%d, s%d, 0' % (sXr, sXr))
    a('s_cmp_le_u32 s%d, %d' % (sXr, xlast))
    a('s_cselect_b32 s%d, s%d, 0' % (sXr, sXr))
    if nchk > 1:
        a('s_mul_i32 s%d, s%d, %d' % (sXr, sXr, nchk))
    a('s_and_b32 s%d, s%d, 0xffffff00' % (sThi, sTag))
    a('s_mov_b32 s%d, %d' % (sL, per))
    if stamps:
        a('s_mov_b32 s18, 0')
        a('s_mov_b32 s16, 0')
    g.label('L_ctl')
    a('s_lshl_b32 s%d, s%d, 2' % (sT0, sL))
    a('s_sub_u32 s%d, s%d, 2' % (sT0, sT0))
    g.label('L_ctla')
    a('s_sleep 1')
    a('ds_read_b32 v%d, v%d offset:%d' % (vG, vCtl, L_CTL))
    a('s_waitcnt lgkmcnt(0)')
    a('v_cmp_gt_u32 vcc, s%d, v%d' % (sT0, vG))
    a('s_cbranch_vccnz L_ctla')
    a('s_or_b32 s%d, s%d, s%d' % (sMt, sThi, sL))
    a('s_cmp_lg_u32 s%d, s%d' % (sL, sXr))
    a('s_cbranch_scc1 L_ctlb')
    a('s_mov_b64 exec, 0xff')
    a('buffer_load_dword v%d, v%d, s[%d:%d], s%d offen sc1' % (vG + 3, vWx, sWS, sWS + 3, sXa))
    post(sMt, sXo, 'sc1')
    a('s_mov_b64 exec, -1')
    g.label('L_ctlb')
    post(sMt, sOwn)
    a('s_mov_b64 exec, -1')
    a('buffer_load_dword v%d, v%d, s[%d:%d], s%d offen sc1' % (vG + 2, vWa, sWS, sWS + 3, sLine))
    a('s_waitcnt vmcnt(0)')
    a('v_xor_b32 v%d, s%d, v%d' % (vG + 2, sThi, vG + 2))
    a('s_cmp_lg_u32 s%d, s%d' % (sL, sXr))
    a('s_cbranch_scc1 L_ctly')
    a('v_xor_b32 v%d, s%d, v%d' % (vG + 3, sThi, vG + 3))
    a('v_subrev_u32 v%d, s%d, v%d' % (vG + 3, sL, vG + 3))
    a('s_mov_b64 exec, 0xff')
    a('v_cmp_gt_u32 vcc, 64, v%d' % (vG + 3))
    a('s_nop 1')
    a('s_bcnt1_i32_b64 s%d, vcc' % sU)
    if stamps:
        a('s_add_u32 s16, s16, s%d' % sU)
    a('s_mul_i32 s%d, s%d, %d' % (sU, sU, xg))
    a('s_min_u32 s%d, s%d, 63' % (sU, sU))
    a('s_or_b32 s%d, s%d, 128' % (sU, sU))
    a('s_or_b32 s%d, s%d, s%d' % (sU, sU, sThi))
    post(sU, sXb)
    a('s_mov_b64 exec, -1')
    g.label('L_ctly')
    a('s_nop 0')
    a('v_readlane_b32 s%d, v%d, 63' % (sMt, vG + 2))
    a('v_subrev_u32 v%d, s%d, v%d' % (vG + 2, sL, vG + 2))
    a('v_cmp_gt_u32 vcc, 64, v%d' % (vG + 2))
    a('s_nop 1')
    a('s_bcnt1_i32_b64 s%d, vcc' % sU)
    if stamps:
        a('s_add_u32 s18, s18, s%d' % sU)
    a('s_sub_i32 s%d, s%d, 16' % (sU, sU))
    a('s_mul_i32 s%d, s%d, %d' % (sU, sU, umax))
    a('s_sub_u32 s%d, s%d, 128' % (sMt, sMt))
    a('s_cmp_lt_u32 s%d, 64' % sMt)
    a('s_cselect_b32 s%d, s%d, %d' % (sMt, sMt, xoff))
    a('s_sub_i32 s%d, s%d, %d' % (sMt, sMt, xoff))
    a('s_add_i32 s%d, s%d, s%d' % (sU, sU, sMt))
    a('s_add_i32 s%d, s%d, s%d' % (sU, sU, sC))
    a('s_ashr_i32 s%d, s%d, 4' % (sU, sU))
    a('s_max_i32 s%d, s%d, %d' % (sU, sU, umin))
    a('v_mov_b32 v%d, s%d' % (vG, sU))
    a('ds_write_b32 v%d, v%d offset:%d' % (vCtl, vG, L_CTL + 4))
    a('s_add_u32 s%d, s%d, %d' % (sL, sL, per))
    nlast = 31 * nchk + (sum(1 for x in chk if x[2] < 24) if lastchk else 0)
    assert nlast < 64
    a('s_cmp_le_u32 s%d, %d' % (sL, nlast))
    a('s_cbranch_scc1 L_ctl')
    if ltrig:
        c('fetch wo once this workgroup\'s stream is all but over, or as soon as %d neighbours are there' % ltrig)
        DONE = 60 if nlast < 40 else 100
        g.label('L_tr')
        a('ds_read_b32 v%d, v%d offset:%d' % (vG, vCtl, L_CTL + 12))
        a('buffer_load_dword v%d, v%d, s[%d:%d], s%d offen sc1' % (vG + 2, vWa, sWS, sWS + 3, sLine))
        a('s_waitcnt lgkmcnt(0)')
        a('v_cmp_le_u32 vcc, 2, v%d' % vG)
        a('s_cbranch_vccnz L_trown')
        a('s_waitcnt vmcnt(0)')
        a('v_xor_b32 v%d, s%d, v%d' % (vG + 2, sThi, vG + 2))
        a('v_cmp_eq_u32 vcc, %d, v%d' % (DONE, vG + 2))
        a('s_nop 1')
        a('s_bcnt1_i32_b64 s%d, vcc' % sU)
        a('s_cmp_ge_u32 s%d, %d' % (sU, ltrig))
        a('s_cbranch_scc1 L_trgo')
        a('s_sleep %d' % trsleep)
        a('s_branch L_tr')
        g.label('L_trown')
        a('s_or_b32 s%d, s%d, %d' % (sMt, sThi, DONE))
        post(sMt, sOwn)
    else:
        c('fetch wo once this workgroup\'s stream is all but over')
        g.label('L_tr')
        a('s_sleep 1')
        a('ds_read_b32 v%d, v%d offset:%d' % (vG, vCtl, L_CTL + 12))
        a('s_waitcnt lgkmcnt(0)')
        a('v_cmp_gt_u32 vcc, 2, v%d' % vG)
        a('s_cbranch_vccnz L_tr')
    if ltrig:
        g.label('L_trgo')
        a('s_mov_b64 exec, -1')
    if woprio != 3:
        a('s_setprio %d' % woprio)
    for mod in range(2):
        a('s_mov_b32 s%d, s%d' % (sT0, sWOff))
        a('s_mov_b32 s%d, 8' % sCnt)
        g.label('L_wo%d' % mod)
        for i in range(4):
            if wowin:
                a('s_waitcnt vmcnt(%d)' % (wowin - 1))
            a('s_mov_b32 m0, s%d' % sLdsW)
            a('s_add_u32 s%d, s%d, 1024' % (sLdsW, sLdsW))
            a('buffer_load_dwordx4 v%d, s[%d:%d], s%d offen nt lds' % (vW1 if i & 2 else vW, sWO[mod], sWO[mod] + 3, sT0))
            a('s_add_u32 s%d, s%d, 8192' % (sT0, sT0))
        a('s_sub_u32 s%d, s%d, 1' % (sCnt, sCnt))
        a('s_cmp_lg_u32 s%d, 0' % sCnt)
        a('s_cbranch_scc1 L_wo%d' % mod)
    if woprio != 3:
        a('s_setprio 3')
    def o_to_lds():
        if f5:
            a('ds_write_b32 v%d, v%d offset:%d' % (vCtl, vCtl, L_CTL + 4))
        for p in range(8):
            a('ds_write2_b32 v%d, v%d, v%d offset0:%d offset1:%d' % (vT2 if p < 4 else vT3, vG + 4 * p, vG + 4 * p + 2, 68 * (p & 3), 68 * (p & 3) + 1))
        a('s_waitcnt lgkmcnt(0)')

    if spec:
        c('H2: a first look right behind the wo loads (returns when they have landed)')
        one_round(False, 0)
        a('s_cbranch_vccnz L_po_late')
        o_to_lds()
        if stamps:
            a('s_memrealtime s[8:9]')
            a('s_memrealtime s[10:11]')
            a('s_mov_b32 s22, 0')
        a('s_barrier')
        a('s_branch L_po_done')
        g.label('L_po_late')
    else:
        a('s_waitcnt vmcnt(0)')
    a('s_barrier')
    c('B3 passed.  H2: gather o of the 8 batches')
    stamp('wo')
    poll('L_po', False, sleep)
    o_to_lds()
    stamp('o')
    g.label('L_po_done')
    a('s_barrier')
    c('B4 passed.  H3: row h of the 32 blocks of slice j = outputs (mod, b, half) with h = mod*16 + b*2 + half')
    a('s_lshl_b32 s%d, s%d, 18' % (sT0, sJ))
    a('s_lshl_b32 s%d, s%d, 8' % (sT1, sH))
    a('s_add_u32 s%d, s%d, s%d' % (sOff, sT0, sT1))
    a('v_lshlrev_b32 v%d, 4, v%d' % (vHi, vT0))
    a('v_lshl_add_u32 v%d, v%d, 13, v%d' % (vHi, vT1, vHi))
    c('out byte offset: b*4096 + mod*2048 + j*256 + half*128 + (l&15)*8')
    a('s_bfe_u32 s%d, s%d, 0x30001' % (sT0, sH))
    a('s_lshl_b32 s%d, s%d, 12' % (sT0, sT0))
    a('s_lshr_b32 s%d, s%d, 4' % (sT1, sH))
    a('s_lshl_b32 s%d, s%d, 11' % (sT1, sT1))
    a('s_add_u32 s%d, s%d, s%d' % (sT0, sT0, sT1))
    a('s_lshl_b32 s%d, s%d, 8' % (sT1, sJ))
    a('s_add_u32 s%d, s%d, s%d' % (sT0, sT0, sT1))
    a('s_and_b32 s%d, s%d, 1' % (sT1, sH))
    a('s_lshl_b32 s%d, s%d, 7' % (sT1, sT1))
    a('s_add_u32 s%d, s%d, s%d' % (sWOff, sT0, sT1))
    a('v_lshlrev_b32 v%d, 3, v%d' % (vT2, vT0))
    if f5:
        c('look for the other heads once this workgroup\'s stores are done and most neighbours have written theirs')
        c('(bounded; lines read too early cost their writers a probe)')
        a('s_or_b32 s%d, s%d, 110' % (sMt, sThi))
        g.label('L_d1')
        a('buffer_load_dword v%d, v%d, s[%d:%d], s%d offen sc1' % (vG + 2, vWa, sWS, sWS + 3, sLine))
        a('s_waitcnt vmcnt(0)')
        a('ds_read_b32 v%d, v%d offset:%d' % (vG, vCtl, L_CTL + 4))
        a('s_waitcnt lgkmcnt(0)')
        a('v_cmp_gt_u32 vcc, 4, v%d' % vG)
        a('s_cbranch_vccnz L_d1')
        post(sMt, sOwn)
        a('s_mov_b64 exec, -1')
        a('s_mov_b32 s%d, 64' % sCnt)
        a('s_branch L_d2b')
        g.label('L_d2')
        a('buffer_load_dword v%d, v%d, s[%d:%d], s%d offen sc1' % (vG + 2, vWa, sWS, sWS + 3, sLine))
        a('s_waitcnt vmcnt(0)')
        g.label('L_d2b')
        a('v_cmp_eq_u32 vcc, s%d, v%d' % (sMt, vG + 2))
        a('s_sub_u32 s%d, s%d, 1' % (sCnt, sCnt))
        a('s_cmp_eq_u32 s%d, 0' % sCnt)
        a('s_cbranch_scc1 L_d2x')
        a('s_bcnt1_i32_b64 s%d, vcc' % sU)
        a('s_cmp_lt_u32 s%d, %d' % (sU, thr2))
        a('s_cbranch_scc1 L_d2')
        g.label('L_d2x')
    elif b5:
        a('s_barrier')
    if thr2 and not f5:
        c('and not before most neighbours have written theirs (bounded)')
        a('s_or_b32 s%d, s%d, 110' % (sMt, sThi))
        post(sMt, sOwn)
        a('s_mov_b64 exec, -1')
        a('s_mov_b32 s%d, 64' % sCnt)
        g.label('L_d2')
        if d2sleep:
            a('s_sleep %d' % d2sleep)
        a('buffer_load_dword v%d, v%d, s[%d:%d], s%d offen sc1' % (vG + 2, vWa, sWS, sWS + 3, sLine))
        a('s_sub_u32 s%d, s%d, 1' % (sCnt, sCnt))
        a('s_waitcnt vmcnt(0)')
        a('v_cmp_eq_u32 vcc, s%d, v%d' % (sMt, vG + 2))
        a('s_cmp_eq_u32 s%d, 0' % sCnt)
        a('s_cbranch_scc1 L_d2x')
        a('s_bcnt1_i32_b64 s%d, vcc' % sU)
        a('s_cmp_lt_u32 s%d, %d' % (sU, thr2))
        a('s_cbranch_scc1 L_d2')
        g.label('L_d2x')
    poll('L_pp', True, sleep3, 32768)
    sum8()
    for swap in ('v_permlane32_swap_b32', 'v_permlane16_swap_b32'):
        for r in range(4):
            a('v_mov_b32 v%d, v%d' % (vG + 4 + r, vG + r))
        a('s_nop 1')
        for r in range(4):
            a('%s v%d, v%d' % (swap, vG + r, vG + 4 + r))
        a('s_nop 1')
        for r in range(4):
            a('v_add_f32 v%d, v%d, v%d' % (vG + r, vG + r, vG + 4 + r))
    a('v_cvt_pk_bf16_f32 v%d, v%d, v%d' % (vG, vG, vG + 1))
    a('v_cvt_pk_bf16_f32 v%d, v%d, v%d' % (vG + 1, vG + 2, vG + 3))
    a('s_mov_b32 exec_lo, 0xffff')
    a('s_mov_b32 exec_hi, 0')
    a('buffer_store_dwordx2 v[%d:%d], v%d, s[%d:%d], s%d offen' % (vG, vG + 1, vT2, sOut, sOut + 3, sWOff))
    c('H3 has arrived, so every workgroup has read the epoch word: workgroup 0 moves it on')
    a('s_cmp_lg_u32 s2, 0')
    a('s_cbranch_scc1 L_comm_end')
    a('v_mov_b32 v%d, s%d' % (vT2, sTag))
    a('v_mov_b32 v%d, 0' % vT3)
    a('s_mov_b64 exec, 1')
    a('buffer_store_dword v%d, v%d, s[%d:%d], s%d offen' % (vT2, vT3, sWS, sWS + 3, sBase))
    g.label('L_comm_end')
    if stamps:
        a('s_waitcnt vmcnt(0)')
        stamp('fin')
        write_stamps(11)
    g.label('L_exit')
    a('s_endpgm')

    tail = '''.section .rodata,"a"
.p2align 6
.amdhsa_kernel %s
  .amdhsa_next_free_vgpr 256
  .amdhsa_next_free_sgpr 100
  .amdhsa_accum_offset 256
  .amdhsa_group_segment_fixed_size 0
  .amdhsa_kernarg_size 104
  .amdhsa_user_sgpr_count 2
  .amdhsa_user_sgpr_kernarg_segment_ptr 1
  .amdhsa_system_sgpr_workgroup_id_x 1
  .amdhsa_float_denorm_mode_32 3
.end_amdhsa_kernel
''' % K1
    head = HEADER + '; @launch grid=(256,1,1) block=(320,1,1) lds=%d\n' % L_END
    if stamps:
        head += '; nst3=%d names: start %s\n' % (nst_stream + 1, ' '.join(names))
    head += ''.join(('; ' + l).rstrip() + '\n' for l in DESIGN.split('\n'))
    return head + '\n'.join(g.L) + '\n' + tail


if __name__ == '__main__':
    import json
    kw = json.loads(sys.argv[2]) if len(sys.argv) > 2 else {}
    src = gen(**kw)
    open(sys.argv[1], 'w').write(src)
```

```python
import sys, math, struct

NAME = 'concat_heads__mha_block_cached__mha_block_cached__decode'
HEADER = open('cdna_kernels/' + NAME + '.s.ref').read().split('; Override launch')[0]

DESIGN = """
One launch, 256 workgroups (one per CU), 5 waves each.  Workgroup (h, j): head h, batch j of both modules.
The 1 GiB of K/V is streamed in four chip-wide phases K_A, V_A, K_B, V_B (one large buffer at a time: reading
several at once costs up to 13 % of the HBM rate, depending on where they were allocated).
 waves 0-3  stream with five 1 KiB loads in flight each (enough to fill HBM, few enough to share it evenly).
            K pass: v_dot2 + DPP reduction -> 1024 scores per wave in 16 registers; exact softmax per wave
            (true maximum); V pass: p on the diagonal of the MFMA A operand, V rows as the B operand.
 wave 4     hand-offs through d_ws.  Every word carries a tag derived from a word at WS_EPOCH that the launch
            moves on at its end, so words of an earlier launch are never taken for this launch's.
   H1  x @ wq: (h, j) multiplies rows 128j..128j+127 for all batches, the 8 workgroups of a head swap partial sums
   H2  the 8 workgroups of a head swap their attention outputs; (h, j) multiplies with columns 128j..128j+127 of wo
   H3  the 32 workgroups of a column slice swap partial outputs; each sums 64 outputs over the heads
            While the stream runs it also trims the loads in flight by a few percent from the progress words of
            the neighbours, so that all workgroups finish together.  That affects speed only.
"""


def f32bits(x):
    return struct.unpack('<I', struct.pack('<f', x))[0]


CSCALE = (128 ** -0.5) * math.log2(math.e)
WS_H3 = 0
WS_H1 = 2 << 20
WS_H2 = 4 << 20
WS_EPOCH = 5 << 20
WS_CTL = (5 << 20) + 65536
WS_END = 6 << 20
WS_STAMP = 8 << 20
L_Q = 0
L_ACC = 512
L_ML = 4608
L_O = 4672
L_CTL = 9152
L_STG = 9216
L_W = 17664
L_END = L_W + 65536


class Asm:
    def __init__(self):
        self.L = []
        self.q = []

    def a(self, s):
        self.L.append('    ' + s)

    def c(self, s):
        self.L.append('    ; ' + s)

    def label(self, s):
        self.L.append(s + ':')

    def vm(self, tag, s):
        self.a(s)
        self.q.append(tag)
        assert len(self.q) <= 63

    def wait_tag(self, tag):
        idx = [i for i, t in enumerate(self.q) if t == tag]
        if idx:
            self.a('s_waitcnt vmcnt(%d)' % (len(self.q) - 1 - idx[-1]))
            self.q = self.q[idx[-1] + 1:]

    def limit(self, n):
        if len(self.q) > n:
            self.a('s_waitcnt vmcnt(%d)' % n)
            self.q = self.q[len(self.q) - n:] if n else []


def gen(W=5, D=8, T=8, early=8, x0=4, win=10, sleep=2, sleep3=2, tmo=1 << 20, stamps=False,
        chk=((18, 29, 31),), umax=4, uflex=12, umin=-12, lpar=(8, -24), xg=8, xp=2, xoff=8, xlast=26,
        ltrig=4, b2at=20, lastchk=False, touch=0, woprio=3, sprio=0, wowin=24, wg=6, og=False, b5=True, thr2=20, per=1, win1=0, n1=0, spec=False, f5=False, trsleep=2, d2sleep=0, rot=None):
    g = Asm()
    a, c = g.a, g.c
    nchk = len(chk)
    assert W + 1 < D <= 32
    sX, sWQ, sK, sV, sWO = (32, 36), (40, 44), (48, 56), (52, 60), (64, 68)
    sWS, sOut = 72, 32
    sTag, sH, sJ, sOff, sCnt, sT0, sT1, sC = 76, 77, 78, 79, 80, 81, 82, 83
    sB1, sB0, sN8 = 86, 88, 90
    sMt, sBase, sL, sLdsW, sWOff, sH1, sT8, sU = 92, 93, 94, 95, 96, 97, 84, 85
    sRk = 64
    sOwn, sLine, sThi = 36, 38, 39
    sXo, sXa, sXb, sXr = 40, 41, 42, 43
    vLane, vT0, vT1, vT2, vT3 = 1, 2, 3, 4, 5
    vHi, vNat = 6, 7
    vMask = 8
    vAcc = 12
    vA = (16, 20)
    vS, vPa, vCc = 24, 28, 32
    vNeg, vTmp, vTr, vW = 36, 37, 38, 39
    vZ = 40
    vQn = 72
    vXf = (76, 92)
    vTr1, vW1, vH1, vCtl, vOne, vU, vRk = 108, 109, 110, 111, 120, 121, 122
    vWf = (40, 224)
    vQD = (24, 112)
    vRing = 128
    DPPF = 'row_mask:0xf bank_mask:0x%x'
    nst = [0]
    names = []

    def stamp(name):
        if stamps:
            names.append(name)
            a('s_memrealtime s[%d:%d]' % (4 + 2 * nst[0], 5 + 2 * nst[0]))
            nst[0] += 1

    def write_stamps(n):
        a('s_waitcnt vmcnt(0) lgkmcnt(0)')
        a('s_mov_b64 exec, -1')
        a('s_getreg_b32 s99, hwreg(HW_REG_XCC_ID)')
        a('v_mov_b32 v%d, s99' % vT2)
        a('v_writelane_b32 v%d, s98, 0' % vT2)
        for i in range(n):
            a('v_writelane_b32 v%d, s%d, %d' % (vT2, 4 + 2 * i, i + 1))
        a('s_mul_i32 s%d, s2, 5' % sT0)
        a('s_add_u32 s%d, s%d, s3' % (sT0, sT0))
        a('s_lshl_b32 s%d, s%d, 8' % (sT0, sT0))
        a('s_add_u32 s%d, s%d, 0x%x' % (sT0, sT0, WS_STAMP))
        a('v_lshl_add_u32 v%d, v%d, 2, s%d' % (vT3, vLane, sT0))
        a('buffer_store_dword v%d, v%d, s[%d:%d], 0 offen' % (vT2, vT3, sWS, sWS + 3))

    def srd(d, p, size):
        if rot and size == 1 << 28:
            a('s_add_u32 s%d, s%d, s%d' % (d, p, sH1))
            a('s_addc_u32 s%d, s%d, 0' % (d + 1, p + 1))
            size = 1 << 20
        else:
            a('s_mov_b32 s%d, s%d' % (d, p))
            a('s_mov_b32 s%d, s%d' % (d + 1, p + 1))
        a('s_mov_b32 s%d, 0x%x' % (d + 2, size))
        a('s_mov_b32 s%d, 0x20000' % (d + 3))

    def make_tag():
        c('tag = next value of a full-period generator: differs from the old word, also in its low byte')
        a('s_waitcnt lgkmcnt(0)')
        a('s_mul_i32 s%d, s%d, 0x19660d' % (sTag, sTag))
        a('s_add_u32 s%d, s%d, 0x3c6ef35f' % (sTag, sTag))

    def weight_voffsets(shift):
        c('16-byte chunk k of row r lands in slot k ^ (2*(r&3) + 8*((r>>3)&1)): conflict-free transposed reads')
        a('v_lshlrev_b32 v%d, 1, v%d' % (vW, vT1))
        a('v_xor_b32 v%d, v%d, v%d' % (vW, vW, vT0))
        a('v_lshlrev_b32 v%d, 4, v%d' % (vW, vW))
        a('v_lshl_add_u32 v%d, v%d, %d, v%d' % (vW, vT1, shift, vW))
        a('v_xor_b32 v%d, 128, v%d' % (vW1, vW))

    K1 = NAME + '_kernel'
    g.L += ['.amdgcn_target "amdgcn-amd-amdhsa--gfx950"', '.text', '.globl %s' % K1, '.p2align 8', '.type %s,@function' % K1]
    g.label(K1)
    a('s_cmp_ge_u32 s2, 256')
    a('s_cbranch_scc1 L_exit')
    if stamps:
        a('s_memrealtime s[98:99]')
    a('s_load_dwordx16 s[4:19], s[0:1], 0')
    a('s_load_dwordx8 s[20:27], s[0:1], 64')
    a('s_load_dwordx2 s[28:29], s[0:1], 96')
    a('v_lshrrev_b32 v%d, 6, v0' % vT0)
    a('v_and_b32 v%d, 63, v0' % vLane)
    a('v_readfirstlane_b32 s3, v%d' % vT0)
    c('h = (id & 7) + 8*(id >> 6), j = (id >> 3) & 7')
    a('s_lshr_b32 s%d, s2, 6' % sH)
    a('s_lshl_b32 s%d, s%d, 3' % (sH, sH))
    a('s_and_b32 s%d, s2, 7' % sT0)
    a('s_add_u32 s%d, s%d, s%d' % (sH, sH, sT0))
    a('s_bfe_u32 s%d, s2, 0x30003' % sJ)
    a('s_mov_b32 s%d, 0x%x' % (sH1, WS_EPOCH))
    a('v_and_b32 v%d, 15, v%d' % (vT0, vLane))
    a('v_lshrrev_b32 v%d, 4, v%d' % (vT1, vLane))
    a('v_lshlrev_b32 v%d, 4, v%d' % (vNat, vLane))
    a('s_cmp_eq_u32 s3, 4')
    a('s_waitcnt lgkmcnt(0)')
    a('s_load_dword s%d, s[28:29], s%d' % (sTag, sH1))
    srd(sWS, 28, (WS_STAMP + (1 << 20)) if stamps else WS_END)
    a('s_cbranch_scc1 L_comm')

    c('================ waves 0-3')
    srd(sWQ[0], 10, 1 << 23)
    srd(sX[0], 4, 16384)
    c('wq rows 128j + 32w .. + 31, columns of head h -> LDS [128 rows][256 B], four rows per instruction')
    weight_voffsets(13)
    a('s_lshl_b32 s%d, s%d, 20' % (sT0, sJ))
    a('s_lshl_b32 s%d, s%d, 8' % (sT1, sH))
    a('s_add_u32 s%d, s%d, s%d' % (sT0, sT0, sT1))
    a('s_lshl_b32 s%d, s3, 18' % sT1)
    a('s_add_u32 s%d, s%d, s%d' % (sWOff, sT0, sT1))
    a('s_lshl_b32 s%d, s3, 13' % sLdsW)
    c('x fragments: lane (n, g) holds x[n & 7][128j + 32kb + 8g ..]')
    vXa = vAcc
    a('v_and_b32 v%d, 7, v%d' % (vXa, vLane))
    a('v_lshlrev_b32 v%d, 11, v%d' % (vXa, vXa))
    a('v_lshl_add_u32 v%d, v%d, 4, v%d' % (vXa, vT1, vXa))
    a('s_lshl_b32 s%d, s%d, 8' % (sT1, sJ))
    srd(sX[1], 14, 16384)
    for mod in range(2):
        for kb in range(4):
            r = vXf[mod] + 4 * kb
            g.vm('w', 'buffer_load_dwordx4 v[%d:%d], v%d, s[%d:%d], s%d offen offset:%d' % (r, r + 3, vXa, sX[mod], sX[mod] + 3, sT1, 64 * kb))
    for mod in range(2):
        if mod:
            srd(sWQ[1], 20, 1 << 23)
        for i in range(8):
            a('s_add_u32 m0, s%d, %d' % (sLdsW, L_W + mod * 32768 + i * 1024))
            a('s_add_u32 s%d, s%d, %d' % (sT0, sWOff, i * 4 * 8192))
            g.vm('w', 'buffer_load_dwordx4 v%d, s[%d:%d], s%d offen nt lds' % (vW1 if i & 2 else vW, sWQ[mod], sWQ[mod] + 3, sT0))
    if not rot:
        srd(sK[0], 6, 1 << 28)
    c('K/V of (batch j, head h): the four waves take tiles of %d KiB in turn' % T)
    a('s_lshl_b32 s%d, s%d, 5' % (sBase, sJ))
    a('s_add_u32 s%d, s%d, s%d' % (sBase, sBase, sH))
    a('s_lshl_b32 s%d, s%d, 20' % (sBase, sBase))
    if rot:
        a('s_mov_b32 s%d, s%d' % (sH1, sBase))
        srd(sK[0], 6, 1 << 28)
        a('s_lshr_b32 s%d, s2, %d' % (sBase, rot[0]))
        a('s_mul_i32 s%d, s%d, %d' % (sBase, sBase, rot[1]))
        a('s_and_b32 s%d, s%d, 31' % (sBase, sBase))
        a('s_lshl_b32 s%d, s%d, 15' % (sBase, sBase))
    a('s_mul_i32 s%d, s3, %d' % (sT0, T * 1024))
    a('s_add_u32 s%d, s%d, s%d' % (sBase, sBase, sT0))
    a('s_mov_b32 s%d, s%d' % (sOff, sBase))

    def ring_load(srd_, j):
        r = vRing + 4 * (j & 31)
        g.vm('R%d' % (j & 31), 'buffer_load_dwordx4 v[%d:%d], v%d, s[%d:%d], s%d offen offset:%d nt' % (r, r + 3, vNat, srd_, srd_ + 3, sOff, 1024 * (j & 3)))
        if j & 3 == 3:
            a('s_add_u32 s%d, s%d, %d' % (sOff, sOff, 4096 if (j + 1) % T else 3 * T * 1024 + 4096))
            if rot and (j + 1) % T == 0:
                a('s_and_b32 s%d, s%d, 0xfffff' % (sOff, sOff))

    for j in range(early):
        ring_load(sK[0], j)
    srd(sV[0], 8, 1 << 28)
    srd(sK[1], 16, 1 << 28)
    srd(sV[1], 18, 1 << 28)
    c('transposed-read address: (8g + r)*256 + ((4w + 2cb) ^ (2r + 8(g&1)))*16 + (l&3)*8,  r = (l>>2)&3')
    a('v_lshrrev_b32 v%d, 2, v%d' % (vTmp, vT0))
    a('v_and_b32 v%d, 1, v%d' % (vTr, vT1))
    a('v_lshl_add_u32 v%d, v%d, 2, v%d' % (vTr, vTr, vTmp))
    a('s_lshl_b32 s%d, s3, 1' % sT0)
    a('v_xor_b32 v%d, s%d, v%d' % (vTr, sT0, vTr))
    a('v_lshlrev_b32 v%d, 5, v%d' % (vTr, vTr))
    a('v_lshl_add_u32 v%d, v%d, 11, v%d' % (vTr, vT1, vTr))
    a('v_lshl_add_u32 v%d, v%d, 8, v%d' % (vTr, vTmp, vTr))
    a('v_and_b32 v%d, 3, v%d' % (vT3, vLane))
    a('v_lshl_add_u32 v%d, v%d, 3, v%d' % (vTr, vT3, vTr))
    a('v_xor_b32 v%d, 32, v%d' % (vTr1, vTr))
    a('v_add_u32 v%d, %d, v%d' % (vTr, L_W, vTr))
    a('v_add_u32 v%d, %d, v%d' % (vTr1, L_W, vTr1))
    a('s_mov_b32 s%d, 0x%08x' % (sC, f32bits(CSCALE)))
    for reg, val in ((sB1, 0xcccccccc), (sB0, 0xaaaaaaaa), (sN8, 0xff00ff00)):
        a('s_mov_b32 s%d, 0x%08x' % (reg, val))
        a('s_mov_b32 s%d, 0x%08x' % (reg + 1, val))
    c('masks that put p on the diagonal of the A operand')
    a('v_mov_b32 v%d, 0xffff' % vNeg)
    a('v_mov_b32 v%d, 0xffff0000' % vTmp)
    a('v_cndmask_b32 v%d, v%d, v%d, s[%d:%d]' % (vNeg, vNeg, vTmp, sB0, sB0 + 1))
    a('v_bfe_u32 v%d, v%d, 1, 2' % (vTmp, vLane))
    for rr in range(4):
        a('v_cmp_eq_u32 vcc, %d, v%d' % (rr, vTmp))
        a('s_nop 1')
        a('v_cndmask_b32 v%d, 0, v%d, vcc' % (vMask + rr, vNeg))
    c('staging address of the q partials: (n&7)*1040 + w*128 + (n>>3)*64 + g*16')
    a('v_and_b32 v%d, 7, v%d' % (vTmp, vLane))
    a('v_mul_u32_u24 v%d, 1040, v%d' % (vH1, vTmp))
    a('v_bfe_u32 v%d, v%d, 3, 1' % (vTmp, vLane))
    a('v_lshl_add_u32 v%d, v%d, 6, v%d' % (vH1, vTmp, vH1))
    a('v_lshl_add_u32 v%d, v%d, 4, v%d' % (vH1, vT1, vH1))
    a('s_lshl_b32 s%d, s3, 7' % sT0)
    a('v_add_u32 v%d, s%d, v%d' % (vH1, sT0, vH1))

    def tr_reads(dst, mod):
        for cb in range(2):
            for kb in range(4):
                for hh in range(2):
                    r = dst + (cb * 4 + kb) * 4 + 2 * hh
                    a('ds_read_b64_tr_b16 v[%d:%d], v%d offset:%d' % (r, r + 1, vTr1 if cb else vTr, mod * 32768 + kb * 8192 + hh * 1024))

    def proj_mfma(d, wf, xf):
        for kb in range(4):
            for cb in range(2):
                w = wf + (cb * 4 + kb) * 4
                dd = d + 4 * cb
                a('v_mfma_f32_16x16x32_bf16 v[%d:%d], v[%d:%d], v[%d:%d], %s' % (dd, dd + 3, w, w + 3, xf + 4 * kb, xf + 4 * kb + 3, '0' if kb == 0 else 'v[%d:%d]' % (dd, dd + 3)))

    def select_tag(dst, d):
        for r in range(4):
            a('v_cndmask_b32 v%d, v%d, v%d, s[%d:%d]' % (dst + r, d + r, d + 4 + r, sN8, sN8 + 1))
        for r in range(4):
            a('v_bfi_b32 v%d, v%d, v%d, v%d' % (dst + r, vTmp, vNeg, dst + r))

    a('v_mov_b32 v%d, 0xff' % vTmp)
    a('v_mov_b32 v%d, 0' % vCtl)
    a('v_mov_b32 v%d, 1' % vOne)
    a('s_mov_b32 s%d, 0' % sU)
    if wg:
        a('s_mov_b32 s%d, -4' % sRk)
    c('wave 0 shares its SIMD with wave 4 and would fall behind while that one works: a head start')
    assert early % 4 == 0 and 0 < x0 <= 4 and early + x0 <= 24
    a('s_cmp_lg_u32 s3, 0')
    a('s_cbranch_scc1 L_x0a')
    q0 = list(g.q)
    for j in range(early, early + x0):
        ring_load(sK[0], j)
    g.wait_tag('w')
    a('s_branch L_x0b')
    g.label('L_x0a')
    g.q = q0
    g.wait_tag('w')
    g.label('L_x0b')
    a('s_barrier')
    c('B0: all rows of wq_A and wq_B have landed')
    stamp('B0')
    for mod in range(2):
        tr_reads(vWf[mod], mod)
    for mod in range(2):
        a('s_waitcnt lgkmcnt(%d)' % (15 if mod == 0 else 0))
        proj_mfma(vQD[mod], vWf[mod], vXf[mod])
    make_tag()
    a('v_mov_b32 v%d, s%d' % (vNeg, sTag))
    for mod in range(2):
        a('s_nop 0')
        select_tag(vA[mod], vQD[mod])
        a('ds_write_b128 v%d, v[%d:%d] offset:%d' % (vH1, vA[mod], vA[mod] + 3, L_STG + mod * 512))
    a('s_waitcnt lgkmcnt(0)')
    a('s_barrier')
    c('B0b: wave 4 sends the partials out; fill the ring with K meanwhile')
    stamp('stg')
    a('s_cmp_eq_u32 s3, 0')
    a('s_cbranch_scc1 L_x0c')
    for j in range(early, 32):
        w_ = win1 if j < early + n1 else win
        if j == early + x0:
            g.label('L_x0c')
            a('s_waitcnt vmcnt(%d)' % (w_ - 1))
            g.q = g.q[-(w_ - 1):]
        else:
            g.limit(w_ - 1)
        ring_load(sK[0], j)
    stamp('ring')
    a('s_barrier')
    c('B1: q is in LDS')
    if sprio:
        a('s_setprio %d' % sprio)
    stamp('B1')

    def pos(tau, r):
        return 8 * (r & 1) + 4 * (r >> 1) + 2 * (tau & 1) + (tau >> 1)

    def rotate():
        for i in range(14):
            a('v_mov_b32 v%d, v%d' % (vZ + i, vZ + i + 2))

    def k_group(refill):
        rotate()
        p, cc = vPa, vCc
        for i in range(32):
            k, r = divmod(i, 4)
            g.wait_tag('R%d' % i)
            for e in range(4):
                a('v_dot2_f32_bf16 v%d, v%d, v%d, %s' % (p + r, vRing + 4 * i + e, vQn + e, '0' if e == 0 else 'v%d' % (p + r)))
            refill(i)
            if r == 3:
                a('v_add_f32_dpp v%d, v%d, v%d row_mirror %s' % (p, p, p, DPPF % 3))
                a('v_add_f32_dpp v%d, v%d, v%d row_mirror %s' % (p, p + 1, p + 1, DPPF % 12))
                a('v_add_f32_dpp v%d, v%d, v%d row_mirror %s' % (p + 2, p + 2, p + 2, DPPF % 3))
                a('v_add_f32_dpp v%d, v%d, v%d row_mirror %s' % (p + 2, p + 3, p + 3, DPPF % 12))
                a('s_nop 0')
                a('v_add_f32_dpp v%d, v%d, v%d row_half_mirror %s' % (cc + (k & 3), p, p, DPPF % 5))
                a('v_add_f32_dpp v%d, v%d, v%d row_half_mirror %s' % (cc + (k & 3), p + 2, p + 2, DPPF % 10))
            if i & 15 == 15:
                for t in range(4):
                    a('v_add_f32_dpp v%d, v%d, v%d quad_perm:[2,3,0,1] %s' % (cc + t, cc + t, cc + t, DPPF % 15))
                a('v_cndmask_b32 v%d, v%d, v%d, s[%d:%d]' % (cc, cc, cc + 1, sB1, sB1 + 1))
                a('v_cndmask_b32 v%d, v%d, v%d, s[%d:%d]' % (cc + 2, cc + 2, cc + 3, sB1, sB1 + 1))
                a('s_nop 0')
                a('v_add_f32_dpp v%d, v%d, v%d quad_perm:[1,0,3,2] %s' % (cc, cc, cc, DPPF % 15))
                a('v_add_f32_dpp v%d, v%d, v%d quad_perm:[1,0,3,2] %s' % (cc + 2, cc + 2, cc + 2, DPPF % 15))
                a('v_cndmask_b32 v%d, v%d, v%d, s[%d:%d]' % (vZ + 14 + (i >> 4), cc, cc + 2, sB0, sB0 + 1))

    def v_group(refill):
        def build(i):
            for rr in range(4):
                a('v_and_b32_dpp v%d, v%d, v%d row_newbcast:%d %s' % (vA[i & 1] + rr, vZ + (i >> 4), vMask + rr, pos((i >> 2) & 3, i & 3), DPPF % 15))
        build(0)
        for i in range(32):
            if i < 31:
                build(i + 1)
            else:
                a('s_nop 1')
            g.wait_tag('R%d' % i)
            b = vRing + 4 * i
            a('v_mfma_f32_16x16x32_bf16 v[%d:%d], v[%d:%d], v[%d:%d], v[%d:%d]' % (vAcc, vAcc + 3, vA[i & 1], vA[i & 1] + 3, b, b + 3, vAcc, vAcc + 3))
            refill(i)
        rotate()

    uid = [0]

    def signal(word, rtn=False):
        a('s_mov_b64 exec, 1')
        if rtn:
            a('ds_add_rtn_u32 v%d, v%d, v%d offset:%d' % (vRk, vCtl, vOne, L_CTL + 4 * word))
        else:
            a('ds_add_u32 v%d, v%d offset:%d' % (vCtl, vOne, L_CTL + 4 * word))
        a('s_mov_b64 exec, -1')

    def paced(srd_, i, j):
        r = int('{:04b}'.format(i >> 1)[::-1], 2)
        if i % 2 == 0 and len(g.q) >= W - 1 and r < uflex:
            uid[0] += 1
            g.limit(W)
            a('s_cmp_gt_i32 s%d, %d' % (sU, r))
            a('s_cbranch_scc1 L_u%d' % uid[0])
            a('s_waitcnt vmcnt(%d)' % (W - 1))
            a('s_cmp_ge_i32 s%d, %d' % (sU, -r))
            a('s_cbranch_scc1 L_u%d' % uid[0])
            a('s_waitcnt vmcnt(%d)' % (W - 2))
            g.label('L_u%d' % uid[0])
        else:
            g.limit(W - 1)
        ring_load(srd_, j)

    def group(body, refill, upto=32):
        def take():
            a('s_waitcnt lgkmcnt(0)')
            a('v_readfirstlane_b32 s%d, v%d' % (sU, vU))
            if wg:
                a('v_readfirstlane_b32 s%d, v%d' % (sT0, vRk))
                a('s_add_u32 s%d, s%d, 4' % (sRk, sRk))
                a('s_nop 0')
                a('s_sub_i32 s%d, s%d, s%d' % (sT0, sT0, sRk))
                a('s_mul_i32 s%d, s%d, %d' % (sT0, sT0, 2 * wg))
                a('s_add_i32 s%d, s%d, %d' % (sT0, sT0, 2 - 3 * wg))
                a('s_ashr_i32 s%d, s%d, 2' % (sT0, sT0))
                a('s_add_i32 s%d, s%d, s%d' % (sU, sU, sT0))

        def rf(i):
            refill(i)
            for sa, sr, sx in chk:
                if sx < upto:
                    if i == sa:
                        signal(0, wg)
                    if i == sr:
                        a('ds_read_b32 v%d, v%d offset:%d' % (vU, vCtl, L_CTL + 4))
                    if i == sx and sx < 31:
                        take()
        body(rf)
        if chk[-1][2] == 31 and upto == 32:
            take()

    def phase(name, body, srd_, srd_next, trips):
        g.limit(W)
        steady = ['R%d' % j for j in range(D - W, D)]
        assert g.q == steady[len(steady) - len(g.q):]
        g.q = list(steady)
        a('s_mov_b32 s%d, %d' % (sCnt, trips))
        g.label(name)
        group(body, lambda i: paced(srd_, i, i + D))
        assert g.q == steady
        a('s_sub_u32 s%d, s%d, 1' % (sCnt, sCnt))
        a('s_cmp_lg_u32 s%d, 0' % sCnt)
        a('s_cbranch_scc1 %s' % name)

        def last(i):
            if i + D < 32:
                paced(srd_, i, i + D)
            elif srd_next is not None:
                if i + D == 32:
                    a('s_mov_b32 s%d, s%d' % (sOff, sBase))
                paced(srd_next, i, i + D)
            if srd_next is None and i == b2at:
                signal(3)
        c('last group of the phase: the look-ahead crosses into the next buffer')
        group(body, last, 32 if srd_next is not None else (24 if lastchk else 0))

    def wave_reduce(op, v):
        for ctl in ('row_mirror', 'row_half_mirror', 'quad_perm:[2,3,0,1]', 'quad_perm:[1,0,3,2]'):
            a('s_nop 1')
            a('%s_dpp v%d, v%d, v%d %s %s' % (op, v, v, v, ctl, DPPF % 15))
        a('s_nop 1')
        a('%s_dpp v%d, v%d, v%d row_bcast:15 row_mask:0xa bank_mask:0xf' % (op, v, v, v))
        a('s_nop 1')
        a('%s_dpp v%d, v%d, v%d row_bcast:31 row_mask:0xc bank_mask:0xf' % (op, v, v, v))
        a('s_nop 0')

    def softmax():
        c('softmax of this wave\'s 1024 scores: m = max, p = 2^(c*s - c*m), l = sum p')
        a('v_max3_f32 v%d, v%d, v%d, v%d' % (vTmp, vZ, vZ + 1, vZ + 2))
        for i in range(3, 15, 2):
            a('v_max3_f32 v%d, v%d, v%d, v%d' % (vTmp, vTmp, vZ + i, vZ + i + 1))
        a('v_max_f32 v%d, v%d, v%d' % (vTmp, vTmp, vZ + 15))
        wave_reduce('v_max_f32', vTmp)
        a('v_readlane_b32 s%d, v%d, 63' % (sMt, vTmp))
        a('v_mov_b32 v%d, s%d' % (vNeg, sC))
        a('s_nop 0')
        a('v_mul_f32 v%d, s%d, v%d' % (vNeg, sMt, vNeg))
        for i in range(16):
            a('v_fma_f32 v%d, v%d, s%d, -v%d' % (vZ + i, vZ + i, sC, vNeg))
        for i in range(16):
            a('v_exp_f32 v%d, v%d' % (vZ + i, vZ + i))
        for r in range(4):
            a('v_mov_b32 v%d, 0' % (vAcc + r))
        a('v_add_f32 v%d, v%d, v%d' % (vS, vZ, vZ + 1))
        for i in range(2, 16):
            a('v_add_f32 v%d, v%d, v%d' % (vS, vS, vZ + i))
        for i in range(16):
            a('v_cvt_pk_bf16_f32 v%d, v%d, v%d' % (vZ + i, vZ + i, vZ + i))
        wave_reduce('v_add_f32', vS)
        a('v_readlane_b32 s%d, v%d, 63' % (sL, vS))
        a('v_lshlrev_b32 v%d, 5, v%d' % (vT2, vT0))
        a('v_lshl_add_u32 v%d, v%d, 4, v%d' % (vT2, vT1, vT2))
        a('s_lshl_b32 s%d, s3, 9' % sT0)
        a('v_add_u32 v%d, s%d, v%d' % (vT2, sT0, vT2))
        a('s_lshl_b32 s%d, s3, 3' % sT0)
        a('v_mov_b32 v%d, s%d' % (vT3, sT0))
        a('v_mov_b32 v%d, s%d' % (vPa, sMt))
        a('v_mov_b32 v%d, s%d' % (vPa + 1, sL))

    for mod in range(2):
        c('---------------- K pass, module %s' % 'AB'[mod])
        a('v_lshlrev_b32 v%d, 4, v%d' % (vNeg, vT0))
        a('ds_read_b128 v[%d:%d], v%d offset:%d' % (vQn, vQn + 3, vNeg, L_Q + 256 * mod))
        a('s_waitcnt lgkmcnt(0)')
        if mod == 0:
            c('the ring was filled 32 deep while q was on its way: the look-ahead shrinks to %d over this group' % D)
            nxt = [32]

            def shrink(i):
                while nxt[0] < 32 + (i + 1) * D // 32:
                    paced(sK[0], i, nxt[0])
                    nxt[0] += 1
            group(k_group, shrink)
        phase('L_k%d' % mod, k_group, sK[mod], sV[mod], 6 if mod == 0 else 7)
        stamp('K%d' % mod)
        softmax()
        c('---------------- V pass, module %s' % 'AB'[mod])
        phase('L_v%d' % mod, v_group, sV[mod], sK[1] if mod == 0 else None, 7)
        stamp('V%d' % mod)
        c('leave (acc, m, l) in LDS')
        a('s_mov_b32 exec_hi, 0')
        a('ds_write_b128 v%d, v[%d:%d] offset:%d' % (vT2, vAcc, vAcc + 3, L_ACC + 2048 * mod))
        a('s_mov_b32 exec_lo, 1')
        a('ds_write_b64 v%d, v[%d:%d] offset:%d' % (vT3, vPa, vPa + 1, L_ML + 32 * mod))
        a('s_mov_b64 exec, -1')
    c('---------------- combine the four waves: thread t -> module t>>7, d = t&127')
    a('v_lshrrev_b32 v%d, 7, v0' % vT2)
    a('v_lshlrev_b32 v%d, 5, v%d' % (vT3, vT2))
    a('v_lshlrev_b32 v%d, 11, v%d' % (vT2, vT2))
    a('v_and_b32 v%d, 127, v0' % vNeg)
    a('v_lshl_add_u32 v%d, v%d, 2, v%d' % (vT2, vNeg, vT2))
    a('s_lshl_b32 s%d, s%d, 3' % (sT0, sH))
    a('s_add_u32 s%d, s%d, s%d' % (sT0, sT0, sJ))
    a('s_lshl_b32 s%d, s%d, 10' % (sT0, sT0))
    a('s_add_u32 s%d, s%d, 0x%x' % (sCnt, sT0, WS_H2))
    a('s_waitcnt lgkmcnt(0)')
    c('waves 0-3 meet on an LDS counter (wave 4 is busy)')
    signal(2)
    g.label('L_meet')
    a('ds_read_b32 v%d, v%d offset:%d' % (vU, vCtl, L_CTL + 8))
    a('s_waitcnt lgkmcnt(0)')
    a('v_cmp_gt_u32 vcc, 4, v%d' % vU)
    a('s_cbranch_vccnz L_meet')
    R = vS
    a('ds_read_b128 v[%d:%d], v%d offset:%d' % (R, R + 3, vT3, L_ML))
    a('ds_read_b128 v[%d:%d], v%d offset:%d' % (R + 4, R + 7, vT3, L_ML + 16))
    for w in range(4):
        a('ds_read_b32 v%d, v%d offset:%d' % (vA[0] + w, vT2, L_ACC + 512 * w))
    a('s_waitcnt lgkmcnt(4)')
    a('v_max3_f32 v%d, v%d, v%d, v%d' % (vT2, R, R + 2, R + 4))
    a('v_max_f32 v%d, v%d, v%d' % (vT2, vT2, R + 6))
    a('v_mul_f32 v%d, s%d, v%d' % (vNeg, sC, vT2))
    for w in range(4):
        a('v_fma_f32 v%d, v%d, s%d, -v%d' % (R + 2 * w, R + 2 * w, sC, vNeg))
    for w in range(4):
        a('v_exp_f32 v%d, v%d' % (R + 2 * w, R + 2 * w))
    a('s_nop 0')
    a('v_mul_f32 v%d, v%d, v%d' % (vT2, R, R + 1))
    for w in range(1, 4):
        a('v_fma_f32 v%d, v%d, v%d, v%d' % (vT2, R + 2 * w, R + 2 * w + 1, vT2))
    a('v_rcp_f32 v%d, v%d' % (vT2, vT2))
    a('s_waitcnt lgkmcnt(0)')
    a('v_mul_f32 v%d, v%d, v%d' % (vT3, R, vA[0]))
    for w in range(1, 4):
        a('v_fma_f32 v%d, v%d, v%d, v%d' % (vT3, R + 2 * w, vA[0] + w, vT3))
    a('v_mul_f32 v%d, v%d, v%d' % (vT3, vT3, vT2))
    c('H2: publish o as {two bf16, tag}')
    a('v_mov_b32 v%d, s%d' % (vA[1] + 1, sTag))
    a('v_lshlrev_b32 v%d, 2, v0' % vNeg)
    a('v_mov_b32_dpp v%d, v%d quad_perm:[1,0,3,2] %s' % (vT2, vT3, DPPF % 15))
    a('v_cvt_pk_bf16_f32 v%d, v%d, v%d' % (vA[1], vT3, vT2))
    a('s_mov_b32 exec_lo, 0x55555555')
    a('s_mov_b32 exec_hi, 0x55555555')
    a('buffer_store_dwordx2 v[%d:%d], v%d, s[%d:%d], s%d offen sc1' % (vA[1], vA[1] + 1, vNeg, sWS, sWS + 3, sCnt))
    a('s_mov_b64 exec, -1')
    stamp('pubo')
    vWO, vOf, vD = vRing, vRing + 64, vRing + 96
    c('o fragment address: (n&7)*272 + g*16')
    a('v_and_b32 v%d, 7, v%d' % (vT2, vLane))
    a('v_mul_u32_u24 v%d, 272, v%d' % (vT3, vT2))
    a('v_lshl_add_u32 v%d, v%d, 4, v%d' % (vT3, vT1, vT3))
    a('v_bfe_u32 v%d, v%d, 3, 1' % (vNeg, vLane))
    c('H3 address: (j*32 + h)*8192 + mod*4096 + b*512 + w*128 + (n>>3)*64 + g*16')
    a('v_lshlrev_b32 v%d, 9, v%d' % (vT2, vT2))
    a('s_lshl_b32 s%d, s%d, 5' % (sT0, sJ))
    a('s_add_u32 s%d, s%d, s%d' % (sT0, sT0, sH))
    a('s_lshl_b32 s%d, s%d, 13' % (sT0, sT0))
    a('s_lshl_b32 s%d, s3, 7' % sT1)
    a('s_add_u32 s%d, s%d, s%d' % (sT0, sT0, sT1))
    a('s_add_u32 s%d, s%d, 4096' % (sT1, sT0))
    a('v_lshl_add_u32 v%d, v%d, 6, v%d' % (vT2, vNeg, vT2))
    a('v_lshl_add_u32 v%d, v%d, 4, v%d' % (vT2, vT1, vT2))
    a('v_mov_b32 v%d, 0xff' % vTmp)
    a('v_mov_b32 v%d, s%d' % (vNeg, sTag))
    if og:
        c('H2: wave w gathers o of batches 2w and 2w+1 -> LDS (l>>5)*8*272 + (l&31)*8 + b*272')
        vP2, vB2, vL2 = vZ, vZ + 8, vZ + 9
        a('s_lshl_b32 s%d, s%d, 13' % (sOff, sH))
        a('s_lshl_b32 s%d, s3, 11' % sMt)
        a('s_add_u32 s%d, s%d, s%d' % (sOff, sOff, sMt))
        a('s_add_u32 s%d, s%d, 0x%x' % (sOff, sOff, WS_H2))
        a('v_lshrrev_b32 v%d, 5, v%d' % (vL2, vLane))
        a('v_mul_u32_u24 v%d, %d, v%d' % (vL2, 8 * 272, vL2))
        a('v_and_b32 v%d, 31, v%d' % (vB2, vLane))
        a('v_lshl_add_u32 v%d, v%d, 3, v%d' % (vL2, vB2, vL2))
        a('s_mul_i32 s%d, s3, %d' % (sMt, 2 * 272))
        a('s_add_u32 s%d, s%d, %d' % (sMt, sMt, L_O))
        a('v_add_u32 v%d, s%d, v%d' % (vL2, sMt, vL2))
        a('s_mov_b32 s%d, 0x%x' % (sCnt, tmo))
        g.label('L_po')
        for p in range(2):
            a('buffer_load_dwordx4 v[%d:%d], v%d, s[%d:%d], s%d offen offset:%d sc1' % (vP2 + 4 * p, vP2 + 4 * p + 3, vNat, sWS, sWS + 3, sOff, 1024 * p))
        a('s_waitcnt vmcnt(1)')
        a('v_xor_b32 v%d, s%d, v%d' % (vP2 + 1, sTag, vP2 + 1))
        a('v_xor_b32 v%d, s%d, v%d' % (vP2 + 3, sTag, vP2 + 3))
        a('s_waitcnt vmcnt(0)')
        a('v_xor_b32 v%d, s%d, v%d' % (vP2 + 5, sTag, vP2 + 5))
        a('v_xor_b32 v%d, s%d, v%d' % (vP2 + 7, sTag, vP2 + 7))
        a('v_or3_b32 v%d, v%d, v%d, v%d' % (vB2, vP2 + 1, vP2 + 3, vP2 + 5))
        a('v_or_b32 v%d, v%d, v%d' % (vB2, vB2, vP2 + 7))
        a('v_cmp_ne_u32 vcc, 0, v%d' % vB2)
        a('s_cbranch_vccz L_po_ok')
        a('s_sleep %d' % sleep)
        a('s_sub_u32 s%d, s%d, 1' % (sCnt, sCnt))
        a('s_cmp_lg_u32 s%d, 0' % sCnt)
        a('s_cbranch_scc1 L_po')
        g.label('L_po_ok')
        for p in range(2):
            a('ds_write2_b32 v%d, v%d, v%d offset0:%d offset1:%d' % (vL2, vP2 + 4 * p, vP2 + 4 * p + 2, 68 * p, 68 * p + 1))
        a('s_waitcnt lgkmcnt(0)')
        a('s_barrier')
        c('B4: wo and o of the 8 batches are in LDS')
    else:
        a('s_barrier')
        c('B3: wo is in LDS')
        for mod in range(2):
            tr_reads(vWO + 32 * mod, mod)
        a('s_barrier')
        c('B4: o of the 8 batches is in LDS')
    stamp('B4')
    for mod in range(2):
        for kb in range(4):
            r = vOf + 16 * mod + 4 * kb
            a('ds_read_b128 v[%d:%d], v%d offset:%d' % (r, r + 3, vT3, L_O + mod * 8 * 272 + kb * 64))
        if og:
            tr_reads(vWO + 32 * mod, mod)
    for mod in range(2):
        a('s_waitcnt lgkmcnt(%d)' % ((15 if og else 4) if mod == 0 else 0))
        proj_mfma(vD + 8 * mod, vWO + 32 * mod, vOf + 16 * mod)
    for mod in range(2):
        a('s_nop 0')
        select_tag(vD + 8 * mod, vD + 8 * mod)
        a('buffer_store_dwordx4 v[%d:%d], v%d, s[%d:%d], s%d offen sc1' % (vD + 8 * mod, vD + 8 * mod + 3, vT2, sWS, sWS + 3, (sT0, sT1)[mod]))
    if f5:
        a('s_waitcnt vmcnt(0)')
        signal(1)
    elif b5:
        a('s_waitcnt vmcnt(0)')
        a('s_barrier')
        c('B5: wave 4 starts to look for the other heads only now (lines it has read cost their writers a probe)')
    if stamps:
        a('s_waitcnt vmcnt(0)')
        stamp('end')
        write_stamps(nst[0])
    nst_stream = nst[0]
    a('s_endpgm')

    g.label('L_comm')
    c('================ wave 4')
    nst[0] = 0
    names.append('|')
    vG = 16
    vBad, vWa, vWx = 80, 82, 83
    a('s_setprio 3')
    if touch:
        c('one scalar load per page that comes up later: the address translations are fetched ahead of the stream')
        a('s_lshl_b32 s%d, s%d, 5' % (sT0, sJ))
        a('s_add_u32 s%d, s%d, s%d' % (sT0, sT0, sH))
        a('s_lshl_b32 s%d, s%d, 20' % (sT0, sT0))
        a('s_lshl_b32 s%d, s%d, 20' % (sT1, sJ))
        a('s_lshl_b32 s%d, s%d, 18' % (sL, sH))
        a('s_mov_b32 s%d, 0x%x' % (sMt, WS_H1))
        tl = []
        if touch & 1:
            tl += [(6, sT0), (20, sT1), (28, sMt)]
        if touch & 2:
            tl += [(8, sT0), (16, sT0), (18, sT0), (12, sL), (22, sL), (28, None), (24, None)]
        for n, (p, so) in enumerate(tl):
            a('s_load_dword s%d, s[%d:%d], %s' % (44 + n, p, p + 1, 's%d' % so if so else '0'))
    srd(sWO[0], 12, 1 << 23)
    srd(sWO[1], 22, 1 << 23)
    srd(sOut, 24, 32768)
    a('s_mov_b32 s%d, s%d' % (sBase, sH1))
    a('v_add_u32 v%d, 4096, v%d' % (vHi, vNat))
    a('s_lshl_b32 s%d, s%d, 16' % (sT0, sH))
    a('s_add_u32 s%d, s%d, 0x%x' % (sT0, sT0, WS_H1))
    a('s_lshl_b32 s%d, s%d, 13' % (sT1, sJ))
    a('s_add_u32 s%d, s%d, s%d' % (sOff, sT0, sT1))
    a('s_lshl_b32 s%d, s%d, 10' % (sT1, sJ))
    a('s_add_u32 s%d, s%d, s%d' % (sH1, sT0, sT1))
    a('v_lshlrev_b32 v%d, 3, v%d' % (vT3, vLane))
    npoll = [0]

    def one_round(bytetag, stride):
        for p in range(8):
            if stride:
                a('s_add_u32 s%d, s%d, %d' % (sMt, sOff, p * stride))
                a('buffer_load_dwordx4 v[%d:%d], v%d, s[%d:%d], s%d offen sc1' % (vG + 4 * p, vG + 4 * p + 3, vHi, sWS, sWS + 3, sMt))
            else:
                a('buffer_load_dwordx4 v[%d:%d], v%d, s[%d:%d], s%d offen offset:%d sc1' % (vG + 4 * p, vG + 4 * p + 3, vHi if p & 4 else vNat, sWS, sWS + 3, sOff, 1024 * (p & 3)))
        a('v_mov_b32 v%d, 0' % vBad)
        for p in range(8):
            a('s_waitcnt vmcnt(%d)' % (7 - p))
            es = (0, 1, 2, 3) if bytetag else (1, 3)
            for e in es:
                a('v_xor_b32 v%d, s%d, v%d' % (vG + 4 * p + e, sT8 if bytetag else sTag, vG + 4 * p + e))
            for i in range(0, len(es), 2):
                a('v_or3_b32 v%d, v%d, v%d, v%d' % (vBad, vBad, vG + 4 * p + es[i], vG + 4 * p + es[i + 1]))
        if bytetag:
            a('v_and_b32 v%d, 0xff, v%d' % (vBad, vBad))
        a('v_cmp_ne_u32 vcc, 0, v%d' % vBad)

    def poll(name, bytetag, slp, stride=0):
        a('s_mov_b32 s%d, 0x%x' % (sCnt, tmo))
        g.label(name)
        one_round(bytetag, stride)
        a('s_cbranch_vccz %s_ok' % name)
        a('s_sleep %d   ; back-off before the next look' % slp)
        a('s_sub_u32 s%d, s%d, 1' % (sCnt, sCnt))
        a('s_cmp_lg_u32 s%d, 0' % sCnt)
        a('s_cbranch_scc1 %s' % name)
        g.label(name + '_ok')
        if stamps:
            a('s_sub_u32 s%d, 0x%x, s%d' % (20 + 2 * npoll[0], tmo, sCnt))
            npoll[0] += 1

    def sum8():
        b = vG
        for e in range(4):
            for p in range(0, 8, 2):
                a('v_add_f32 v%d, v%d, v%d' % (b + 4 * p + e, b + 4 * p + e, b + 4 * p + 4 + e))
            a('v_add_f32 v%d, v%d, v%d' % (b + e, b + e, b + 8 + e))
            a('v_add_f32 v%d, v%d, v%d' % (b + 16 + e, b + 16 + e, b + 24 + e))
            a('v_add_f32 v%d, v%d, v%d' % (b + e, b + e, b + 16 + e))

    def post(value_sgpr, soff, pol=''):
        a('v_mov_b32 v%d, s%d' % (vG + 1, value_sgpr))
        a('s_mov_b64 exec, 1')
        a(('buffer_store_dword v%d, v%d, s[%d:%d], s%d offen %s' % (vG + 1, vCtl, sWS, sWS + 3, soff, pol)).rstrip())

    a('v_mov_b32 v%d, 0' % vCtl)
    for r in range(4):
        a('v_mov_b32 v%d, 0' % (vG + r))
    a('ds_write_b128 v%d, v[%d:%d] offset:%d' % (vCtl, vG, vG + 3, L_CTL))
    a('s_barrier')
    make_tag()
    a('s_and_b32 s%d, s%d, 0xff' % (sT8, sTag))
    a('s_barrier')
    c('H1: send the partial sums for the 8 batches, gather the 8 partial sums for batch j')
    for p in range(8):
        a('ds_read_b128 v[%d:%d], v%d offset:%d' % (vG + 4 * p, vG + 4 * p + 3, vNat, L_STG + 1040 * p))
    for p in range(8):
        a('s_waitcnt lgkmcnt(%d)' % (7 - p))
        a('buffer_store_dwordx4 v[%d:%d], v%d, s[%d:%d], s%d offen sc1' % (vG + 4 * p, vG + 4 * p + 3, vNat, sWS, sWS + 3, sH1))
        a('s_add_u32 s%d, s%d, 8192' % (sH1, sH1))
    a('s_waitcnt vmcnt(0)')
    stamp('st')
    poll('L_pq', True, sleep)
    sum8()
    a('v_cvt_pk_bf16_f32 v%d, v%d, v%d' % (vG, vG, vG + 1))
    a('v_cvt_pk_bf16_f32 v%d, v%d, v%d' % (vG + 1, vG + 2, vG + 3))
    a('ds_write_b64 v%d, v[%d:%d] offset:%d' % (vT3, vG, vG + 1, L_Q))
    a('s_waitcnt lgkmcnt(0)')
    stamp('q')
    a('s_barrier')
    c('B1 passed.  wo rows 128h .. + 127, columns 128j .. + 127 will go where wq was')
    weight_voffsets(11)
    a('s_lshl_b32 s%d, s%d, 18' % (sT0, sH))
    a('s_lshl_b32 s%d, s%d, 8' % (sT1, sJ))
    a('s_add_u32 s%d, s%d, s%d' % (sWOff, sT0, sT1))
    a('s_lshl_b32 s%d, s%d, 13' % (sT0, sH))
    a('s_add_u32 s%d, s%d, 0x%x' % (sOff, sT0, WS_H2))
    c('LDS address of the gathered o: (l>>5)*8*272 + (l&31)*8')
    a('v_lshrrev_b32 v%d, 5, v%d' % (vT2, vLane))
    a('v_mul_u32_u24 v%d, %d, v%d' % (vT2, 8 * 272, vT2))
    a('v_and_b32 v%d, 31, v%d' % (vT3, vLane))
    a('v_lshl_add_u32 v%d, v%d, 3, v%d' % (vT2, vT3, vT2))
    a('v_add_u32 v%d, %d, v%d' % (vT2, L_O, vT2))
    a('v_add_u32 v%d, %d, v%d' % (vT3, 4 * 272, vT2))
    a('s_mov_b32 s%d, %d' % (sLdsW, L_W))
    c('Progress words (speed only): one per CU in a block per die, stored plainly and read through that die\'s L2.')
    c('The share of neighbours that are ahead trims the loads in flight' + ('; odd dies run a little faster by nature.' if lpar[0] != lpar[1] else '.'))
    a('s_getreg_b32 s%d, hwreg(HW_REG_XCC_ID)' % sT0)
    a('s_and_b32 s%d, s%d, 15' % (sT0, sT0))
    if lpar[0] != lpar[1]:
        a('s_bitcmp1_b32 s%d, 0' % sT0)
        a('s_cselect_b32 s%d, %d, %d' % (sC, 8 + lpar[1], 8 + lpar[0]))
    else:
        a('s_mov_b32 s%d, %d' % (sC, 8 + lpar[0]))
    a('s_mul_i32 s%d, s%d, 4352' % (sT0, sT0))
    a('s_add_u32 s%d, s%d, 0x%x' % (sLine, sT0, WS_CTL))
    a('s_getreg_b32 s%d, hwreg(HW_REG_HW_ID, 13, 2)' % sT1)
    a('s_getreg_b32 s%d, hwreg(HW_REG_HW_ID, 8, 4)' % sT0)
    a('s_lshl_b32 s%d, s%d, 6' % (sT1, sT1))
    a('s_lshl_b32 s%d, s%d, 2' % (sT0, sT0))
    a('s_add_u32 s%d, s%d, s%d' % (sT1, sT1, sT0))
    a('s_add_u32 s%d, s%d, s%d' % (sOwn, sLine, sT1))
    a('v_lshlrev_b32 v%d, 2, v%d' % (vWa, vLane))
    c('Every %d groups one workgroup per die compares with the other dies; slot 63 passes the result on.' % xp)
    a('v_mul_u32_u24 v%d, 4352, v%d' % (vWx, vLane))
    a('s_add_u32 s%d, s%d, 0x10000' % (sXo, sLine))
    a('s_mov_b32 s%d, 0x%x' % (sXa, WS_CTL + 0x10000))
    a('s_add_u32 s%d, s%d, 252' % (sXb, sLine))
    a('s_lshr_b32 s%d, s2, 3' % sXr)
    a('s_and_b32 s%d, s%d, %d' % (sT0, sXr, xp - 1))
    a('s_cmp_eq_u32 s%d, 0' % sT0)
    a('s_cselect_b32 s%d, s%d, 0' % (sXr, sXr))
    a('s_cmp_le_u32 s%d, %d' % (sXr, xlast))
    a('s_cselect_b32 s%d, s%d, 0' % (sXr, sXr))
    if nchk > 1:
        a('s_mul_i32 s%d, s%d, %d' % (sXr, sXr, nchk))
    a('s_and_b32 s%d, s%d, 0xffffff00' % (sThi, sTag))
    a('s_mov_b32 s%d, %d' % (sL, per))
    if stamps:
        a('s_mov_b32 s18, 0')
        a('s_mov_b32 s16, 0')
    g.label('L_ctl')
    a('s_lshl_b32 s%d, s%d, 2' % (sT0, sL))
    a('s_sub_u32 s%d, s%d, 2' % (sT0, sT0))
    c('wait until two of the four waves have reported the next group')
    g.label('L_ctla')
    a('s_sleep 1')
    a('ds_read_b32 v%d, v%d offset:%d' % (vG, vCtl, L_CTL))
    a('s_waitcnt lgkmcnt(0)')
    a('v_cmp_gt_u32 vcc, s%d, v%d' % (sT0, vG))
    a('s_cbranch_vccnz L_ctla')
    a('s_or_b32 s%d, s%d, s%d' % (sMt, sThi, sL))
    a('s_cmp_lg_u32 s%d, s%d' % (sL, sXr))
    a('s_cbranch_scc1 L_ctlb')
    a('s_mov_b64 exec, 0xff')
    a('buffer_load_dword v%d, v%d, s[%d:%d], s%d offen sc1' % (vG + 3, vWx, sWS, sWS + 3, sXa))
    post(sMt, sXo, 'sc1')
    a('s_mov_b64 exec, -1')
    g.label('L_ctlb')
    post(sMt, sOwn)
    a('s_mov_b64 exec, -1')
    a('buffer_load_dword v%d, v%d, s[%d:%d], s%d offen sc1' % (vG + 2, vWa, sWS, sWS + 3, sLine))
    a('s_waitcnt vmcnt(0)')
    a('v_xor_b32 v%d, s%d, v%d' % (vG + 2, sThi, vG + 2))
    a('s_cmp_lg_u32 s%d, s%d' % (sL, sXr))
    a('s_cbranch_scc1 L_ctly')
    a('v_xor_b32 v%d, s%d, v%d' % (vG + 3, sThi, vG + 3))
    a('v_subrev_u32 v%d, s%d, v%d' % (vG + 3, sL, vG + 3))
    a('s_mov_b64 exec, 0xff')
    a('v_cmp_gt_u32 vcc, 64, v%d' % (vG + 3))
    a('s_nop 1')
    a('s_bcnt1_i32_b64 s%d, vcc' % sU)
    if stamps:
        a('s_add_u32 s16, s16, s%d' % sU)
    a('s_mul_i32 s%d, s%d, %d' % (sU, sU, xg))
    a('s_min_u32 s%d, s%d, 63' % (sU, sU))
    a('s_or_b32 s%d, s%d, 128' % (sU, sU))
    a('s_or_b32 s%d, s%d, s%d' % (sU, sU, sThi))
    post(sU, sXb)
    a('s_mov_b64 exec, -1')
    g.label('L_ctly')
    a('s_nop 0')
    a('v_readlane_b32 s%d, v%d, 63' % (sMt, vG + 2))
    a('v_subrev_u32 v%d, s%d, v%d' % (vG + 2, sL, vG + 2))
    a('v_cmp_gt_u32 vcc, 64, v%d' % (vG + 2))
    a('s_nop 1')
    a('s_bcnt1_i32_b64 s%d, vcc' % sU)
    if stamps:
        a('s_add_u32 s18, s18, s%d' % sU)
    a('s_sub_i32 s%d, s%d, 16' % (sU, sU))
    a('s_mul_i32 s%d, s%d, %d' % (sU, sU, umax))
    a('s_sub_u32 s%d, s%d, 128' % (sMt, sMt))
    a('s_cmp_lt_u32 s%d, 64' % sMt)
    a('s_cselect_b32 s%d, s%d, %d' % (sMt, sMt, xoff))
    a('s_sub_i32 s%d, s%d, %d' % (sMt, sMt, xoff))
    a('s_add_i32 s%d, s%d, s%d' % (sU, sU, sMt))
    a('s_add_i32 s%d, s%d, s%d' % (sU, sU, sC))
    a('s_ashr_i32 s%d, s%d, 4' % (sU, sU))
    a('s_max_i32 s%d, s%d, %d' % (sU, sU, umin))
    a('v_mov_b32 v%d, s%d' % (vG, sU))
    a('ds_write_b32 v%d, v%d offset:%d' % (vCtl, vG, L_CTL + 4))
    a('s_add_u32 s%d, s%d, %d' % (sL, sL, per))
    nlast = 31 * nchk + (sum(1 for x in chk if x[2] < 24) if lastchk else 0)
    assert nlast < 64
    a('s_cmp_le_u32 s%d, %d' % (sL, nlast))
    a('s_cbranch_scc1 L_ctl')
    if ltrig:
        c('fetch wo once this workgroup\'s stream is all but over, or as soon as %d neighbours are there' % ltrig)
        DONE = 60 if nlast < 40 else 100
        g.label('L_tr')
        a('ds_read_b32 v%d, v%d offset:%d' % (vG, vCtl, L_CTL + 12))
        a('buffer_load_dword v%d, v%d, s[%d:%d], s%d offen sc1' % (vG + 2, vWa, sWS, sWS + 3, sLine))
        a('s_waitcnt lgkmcnt(0)')
        a('v_cmp_le_u32 vcc, 2, v%d' % vG)
        a('s_cbranch_vccnz L_trown')
        a('s_waitcnt vmcnt(0)')
        a('v_xor_b32 v%d, s%d, v%d' % (vG + 2, sThi, vG + 2))
        a('v_cmp_eq_u32 vcc, %d, v%d' % (DONE, vG + 2))
        a('s_nop 1')
        a('s_bcnt1_i32_b64 s%d, vcc' % sU)
        a('s_cmp_ge_u32 s%d, %d' % (sU, ltrig))
        a('s_cbranch_scc1 L_trgo')
        a('s_sleep %d   ; back-off before the next look' % trsleep)
        a('s_branch L_tr')
        g.label('L_trown')
        a('s_or_b32 s%d, s%d, %d' % (sMt, sThi, DONE))
        post(sMt, sOwn)
    else:
        c('fetch wo once this workgroup\'s stream is all but over')
        g.label('L_tr')
        a('s_sleep 1')
        a('ds_read_b32 v%d, v%d offset:%d' % (vG, vCtl, L_CTL + 12))
        a('s_waitcnt lgkmcnt(0)')
        a('v_cmp_gt_u32 vcc, 2, v%d' % vG)
        a('s_cbranch_vccnz L_tr')
    if ltrig:
        g.label('L_trgo')
        a('s_mov_b64 exec, -1')
    if woprio != 3:
        a('s_setprio %d' % woprio)
    for mod in range(2):
        a('s_mov_b32 s%d, s%d' % (sT0, sWOff))
        a('s_mov_b32 s%d, 8' % sCnt)
        g.label('L_wo%d' % mod)
        for i in range(4):
            if wowin:
                a('s_waitcnt vmcnt(%d)' % (wowin - 1))
            a('s_mov_b32 m0, s%d' % sLdsW)
            a('s_add_u32 s%d, s%d, 1024' % (sLdsW, sLdsW))
            a('buffer_load_dwordx4 v%d, s[%d:%d], s%d offen nt lds' % (vW1 if i & 2 else vW, sWO[mod], sWO[mod] + 3, sT0))
            a('s_add_u32 s%d, s%d, 8192' % (sT0, sT0))
        a('s_sub_u32 s%d, s%d, 1' % (sCnt, sCnt))
        a('s_cmp_lg_u32 s%d, 0' % sCnt)
        a('s_cbranch_scc1 L_wo%d' % mod)
    if woprio != 3:
        a('s_setprio 3')
    def o_to_lds():
        if f5:
            a('ds_write_b32 v%d, v%d offset:%d' % (vCtl, vCtl, L_CTL + 4))
        for p in range(8):
            a('ds_write2_b32 v%d, v%d, v%d offset0:%d offset1:%d' % (vT2 if p < 4 else vT3, vG + 4 * p, vG + 4 * p + 2, 68 * (p & 3), 68 * (p & 3) + 1))
        a('s_waitcnt lgkmcnt(0)')

    if spec:
        c('H2: a first look right behind the wo loads (returns when they have landed)')
        one_round(False, 0)
        a('s_cbranch_vccnz L_po_late')
        o_to_lds()
        if stamps:
            a('s_memrealtime s[8:9]')
            a('s_memrealtime s[10:11]')
            a('s_mov_b32 s22, 0')
        a('s_barrier')
        a('s_branch L_po_done')
        g.label('L_po_late')
    else:
        a('s_waitcnt vmcnt(0)')
    a('s_barrier')
    c('B3 passed.  H2: gather o of the 8 batches')
    stamp('wo')
    poll('L_po', False, sleep)
    o_to_lds()
    stamp('o')
    g.label('L_po_done')
    a('s_barrier')
    c('B4 passed.  H3: row h of the 32 blocks of slice j = outputs (mod, b, half) with h = mod*16 + b*2 + half')
    a('s_lshl_b32 s%d, s%d, 18' % (sT0, sJ))
    a('s_lshl_b32 s%d, s%d, 8' % (sT1, sH))
    a('s_add_u32 s%d, s%d, s%d' % (sOff, sT0, sT1))
    a('v_lshlrev_b32 v%d, 4, v%d' % (vHi, vT0))
    a('v_lshl_add_u32 v%d, v%d, 13, v%d' % (vHi, vT1, vHi))
    c('out byte offset: b*4096 + mod*2048 + j*256 + half*128 + (l&15)*8')
    a('s_bfe_u32 s%d, s%d, 0x30001' % (sT0, sH))
    a('s_lshl_b32 s%d, s%d, 12' % (sT0, sT0))
    a('s_lshr_b32 s%d, s%d, 4' % (sT1, sH))
    a('s_lshl_b32 s%d, s%d, 11' % (sT1, sT1))
    a('s_add_u32 s%d, s%d, s%d' % (sT0, sT0, sT1))
    a('s_lshl_b32 s%d, s%d, 8' % (sT1, sJ))
    a('s_add_u32 s%d, s%d, s%d' % (sT0, sT0, sT1))
    a('s_and_b32 s%d, s%d, 1' % (sT1, sH))
    a('s_lshl_b32 s%d, s%d, 7' % (sT1, sT1))
    a('s_add_u32 s%d, s%d, s%d' % (sWOff, sT0, sT1))
    a('v_lshlrev_b32 v%d, 3, v%d' % (vT2, vT0))
    if f5:
        c('look for the other heads once this workgroup\'s stores are done and most neighbours have written theirs')
        c('(bounded; lines read too early cost their writers a probe)')
        a('s_or_b32 s%d, s%d, 110' % (sMt, sThi))
        g.label('L_d1')
        a('buffer_load_dword v%d, v%d, s[%d:%d], s%d offen sc1' % (vG + 2, vWa, sWS, sWS + 3, sLine))
        a('s_waitcnt vmcnt(0)')
        a('ds_read_b32 v%d, v%d offset:%d' % (vG, vCtl, L_CTL + 4))
        a('s_waitcnt lgkmcnt(0)')
        a('v_cmp_gt_u32 vcc, 4, v%d' % vG)
        a('s_cbranch_vccnz L_d1')
        post(sMt, sOwn)
        a('s_mov_b64 exec, -1')
        a('s_mov_b32 s%d, 64' % sCnt)
        a('s_branch L_d2b')
        g.label('L_d2')
        a('buffer_load_dword v%d, v%d, s[%d:%d], s%d offen sc1' % (vG + 2, vWa, sWS, sWS + 3, sLine))
        a('s_waitcnt vmcnt(0)')
        g.label('L_d2b')
        a('v_cmp_eq_u32 vcc, s%d, v%d' % (sMt, vG + 2))
        a('s_sub_u32 s%d, s%d, 1' % (sCnt, sCnt))
        a('s_cmp_eq_u32 s%d, 0' % sCnt)
        a('s_cbranch_scc1 L_d2x')
        a('s_bcnt1_i32_b64 s%d, vcc' % sU)
        a('s_cmp_lt_u32 s%d, %d' % (sU, thr2))
        a('s_cbranch_scc1 L_d2')
        g.label('L_d2x')
    elif b5:
        a('s_barrier')
    if thr2 and not f5:
        c('and not before most neighbours have written theirs (bounded)')
        a('s_or_b32 s%d, s%d, 110' % (sMt, sThi))
        post(sMt, sOwn)
        a('s_mov_b64 exec, -1')
        a('s_mov_b32 s%d, 64' % sCnt)
        g.label('L_d2')
        if d2sleep:
            a('s_sleep %d' % d2sleep)
        a('buffer_load_dword v%d, v%d, s[%d:%d], s%d offen sc1' % (vG + 2, vWa, sWS, sWS + 3, sLine))
        a('s_sub_u32 s%d, s%d, 1' % (sCnt, sCnt))
        a('s_waitcnt vmcnt(0)')
        a('v_cmp_eq_u32 vcc, s%d, v%d' % (sMt, vG + 2))
        a('s_cmp_eq_u32 s%d, 0' % sCnt)
        a('s_cbranch_scc1 L_d2x')
        a('s_bcnt1_i32_b64 s%d, vcc' % sU)
        a('s_cmp_lt_u32 s%d, %d' % (sU, thr2))
        a('s_cbranch_scc1 L_d2')
        g.label('L_d2x')
    poll('L_pp', True, sleep3, 32768)
    sum8()
    for swap in ('v_permlane32_swap_b32', 'v_permlane16_swap_b32'):
        for r in range(4):
            a('v_mov_b32 v%d, v%d' % (vG + 4 + r, vG + r))
        a('s_nop 1')
        for r in range(4):
            a('%s v%d, v%d' % (swap, vG + r, vG + 4 + r))
        a('s_nop 1')
        for r in range(4):
            a('v_add_f32 v%d, v%d, v%d' % (vG + r, vG + r, vG + 4 + r))
    a('v_cvt_pk_bf16_f32 v%d, v%d, v%d' % (vG, vG, vG + 1))
    a('v_cvt_pk_bf16_f32 v%d, v%d, v%d' % (vG + 1, vG + 2, vG + 3))
    a('s_mov_b32 exec_lo, 0xffff')
    a('s_mov_b32 exec_hi, 0')
    a('buffer_store_dwordx2 v[%d:%d], v%d, s[%d:%d], s%d offen' % (vG, vG + 1, vT2, sOut, sOut + 3, sWOff))
    c('H3 has arrived, so every workgroup has read the epoch word: workgroup 0 moves it on')
    a('s_cmp_lg_u32 s2, 0')
    a('s_cbranch_scc1 L_comm_end')
    a('v_mov_b32 v%d, s%d' % (vT2, sTag))
    a('v_mov_b32 v%d, 0' % vT3)
    a('s_mov_b64 exec, 1')
    a('buffer_store_dword v%d, v%d, s[%d:%d], s%d offen' % (vT2, vT3, sWS, sWS + 3, sBase))
    g.label('L_comm_end')
    if stamps:
        a('s_waitcnt vmcnt(0)')
        stamp('fin')
        write_stamps(11)
    g.label('L_exit')
    a('s_endpgm')

    tail = '''.section .rodata,"a"
.p2align 6
.amdhsa_kernel %s
  .amdhsa_next_free_vgpr 256
  .amdhsa_next_free_sgpr 100
  .amdhsa_accum_offset 256
  .amdhsa_group_segment_fixed_size 0
  .amdhsa_kernarg_size 104
  .amdhsa_user_sgpr_count 2
  .amdhsa_user_sgpr_kernarg_segment_ptr 1
  .amdhsa_system_sgpr_workgroup_id_x 1
  .amdhsa_float_denorm_mode_32 3
.end_amdhsa_kernel
''' % K1
    head = HEADER + '; @launch grid=(256,1,1) block=(320,1,1) lds=%d\n' % L_END
    if stamps:
        head += '; nst3=%d names: start %s\n' % (nst_stream + 1, ' '.join(names))
    head += ''.join(('; ' + l).rstrip() + '\n' for l in DESIGN.split('\n'))
    return head + '\n'.join(g.L) + '\n' + tail


if __name__ == '__main__':
    import json
    kw = json.loads(sys.argv[2]) if len(sys.argv) > 2 else {}
    src = gen(**kw)
    open(sys.argv[1], 'w').write(src)
```
